```python
import torch

def _softmax(x, axis=-1):
    return torch.softmax(x, dim=axis)
def _gelu(x):
    return torch.nn.functional.gelu(x, approximate="tanh")
def _silu(x):
    return torch.nn.functional.silu(x)
def _sigmoid(x):
    return torch.sigmoid(x)
def _layernorm(x, axis=-1, eps=1e-5):
    m = x.mean(dim=axis, keepdim=True)
    v = x.var(dim=axis, keepdim=True, unbiased=False)
    return (x - m) / torch.sqrt(v + eps)
def _scatter_add(tgt, idx, src, axis=0):
    return tgt.clone().index_add_(axis, idx, src)
def _segment_sum(src, seg, n):
    out = torch.zeros((n,) + src.shape[1:], dtype=src.dtype)
    return out.index_add_(0, seg, src)
def _pad(x, pw):
    flat = tuple(v for pair in reversed(pw) for v in pair)
    return torch.nn.functional.pad(x, flat)

kernel_name = 'concat_heads__softmax_full_mha__compressed_kv_cla__prompt'

def setup_inputs():

    _w = (lambda a: (lambda t: t.to(torch.bfloat16) if t.is_floating_point() else t)(torch.as_tensor(a)))
    def _A_setup():
        B, S, D = 1, 2048, 576
        return {
            "x": _w((lambda *s: torch.randn(*s, dtype=torch.bfloat16) * 0.2)(B, S, D)),
            "wqkv": _w((lambda *s: torch.randn(*s, dtype=torch.bfloat16) * 0.2)(D, 3 * D)),
            "wo": _w((lambda *s: torch.randn(*s, dtype=torch.bfloat16) * 0.05)(D, D)),
        }
    _A_in = _A_setup()

    def _B_setup():
        B, H, Sq, Sk, D, M = 1, 32, 2048, 2048, 128, 576
        Dc = 4 * D
        return {
            "x": _w((lambda *s: torch.randn(*s, dtype=torch.bfloat16) * 0.4)(B, Sq, M)),
            "c_kv": _w((lambda *s: torch.randn(*s, dtype=torch.bfloat16) * 0.4)(B, Sk, Dc)),
            "w_q": _w((lambda *s: torch.randn(*s, dtype=torch.bfloat16) * 3.2)(M, H, D) * (M ** -0.5)),
            "w_uk": _w((lambda *s: torch.randn(*s, dtype=torch.bfloat16) * 3.2)(Dc, H, D) * (Dc ** -0.5)),
            "w_uv": _w((lambda *s: torch.randn(*s, dtype=torch.bfloat16) * 0.4)(Dc, H, D) * (Dc ** -0.5)),
            "w_o": _w((lambda *s: torch.randn(*s, dtype=torch.bfloat16) * 0.4)(H, D, M) * ((H * D) ** -0.5)),
        }
    _B_in = _B_setup()

    return {
        "A_x": _A_in["x"],
        "A_wqkv": _A_in["wqkv"],
        "A_wo": _A_in["wo"],
        "B_x": _B_in["x"],
        "B_c_kv": _B_in["c_kv"],
        "B_w_q": _B_in["w_q"],
        "B_w_uk": _B_in["w_uk"],
        "B_w_uv": _B_in["w_uv"],
        "B_w_o": _B_in["w_o"],
    }

def reference(A_x, A_wqkv, A_wo, B_x, B_c_kv, B_w_q, B_w_uk, B_w_uv, B_w_o):
    def _A_ref(x, wqkv, wo):
        B, S, D = x.shape
        H = 32; Dh = D // H
        qkv = (lambda x, *d: x.permute(*d))((x @ wqkv).reshape(B, S, 3, H, Dh), 2, 0, 3, 1, 4)
        q, k, v = qkv[0], qkv[1], qkv[2]
        scale = Dh ** -0.5
        scores = torch.einsum("bhqd,bhkd->bhqk", q, k) * scale
        p = _softmax(scores, axis=-1)
        o = torch.einsum("bhqk,bhkd->bhqd", p, v)
        return (lambda x, *d: x.permute(*d))(o, 0, 2, 1, 3).reshape(B, S, D) @ wo

    def _B_ref(x, c_kv, w_q, w_uk, w_uv, w_o):
        B, Sq, M = x.shape[0], x.shape[1], x.shape[2]
        Sk = c_kv.shape[1]
        H, D = w_q.shape[1], w_q.shape[2]
        q = torch.einsum("bqm,mhd->bhqd", x, w_q)
        k = torch.einsum("bkc,chd->bhkd", c_kv, w_uk)
        v = torch.einsum("bkc,chd->bhkd", c_kv, w_uv)
        scores = torch.einsum("bhqd,bhkd->bhqk", q, k) * (D ** -0.5)
        off = Sk - Sq
        qi = torch.arange(Sq)[:, None]
        kj = torch.arange(Sk)[None, :]
        cmask = kj <= (qi + off)
        scores = torch.where(cmask[None, None], scores, -1e9)
        p = _softmax(scores, axis=-1)
        ctx = torch.einsum("bhqk,bhkd->bhqd", p, v)
        return torch.einsum("bhqd,hdm->bqm", ctx, w_o)

    a = _A_ref(A_x, A_wqkv, A_wo)
    b = _B_ref(B_x, B_c_kv, B_w_q, B_w_uk, B_w_uv, B_w_o)
    return torch.concatenate([a, b], axis=-1)
```

```python
import re, sys
sys.setrecursionlimit(100000)

def parse_regs(tok):
    tok = tok.strip()
    neg = tok.lstrip('-')
    m = re.fullmatch(r'abs\((.*)\)', neg)
    if m: neg = m.group(1)
    m = re.fullmatch(r'\|(.*)\|', neg)
    if m: neg = m.group(1)
    m = re.fullmatch(r'([vas])(\d+)', neg)
    if m: return {(m.group(1), int(m.group(2)))}
    m = re.fullmatch(r'([vas])\[(\d+):(\d+)\]', neg)
    if m: return {(m.group(1), i) for i in range(int(m.group(2)), int(m.group(3)) + 1)}
    if neg in ('vcc', 'vcc_lo', 'vcc_hi'): return {('vcc', 0)}
    if neg in ('exec', 'exec_lo', 'exec_hi'): return {('exec', 0)}
    if neg == 'm0': return {('m0', 0)}
    return set()

TRANS = ('v_exp_f32', 'v_log_f32', 'v_rcp_f32', 'v_rsq_f32', 'v_sqrt_f32', 'v_sin_f32', 'v_cos_f32')

class Ins:
    def __init__(self, text):
        self.text = text
        t = text.split(';')[0].strip()
        self.label = None
        if t.endswith(':'):
            self.label = t[:-1]; self.mn = None; return
        parts = t.split(None, 1)
        self.mn = mn = parts[0]
        rest = parts[1] if len(parts) > 1 else ''
        ops = [x.strip() for x in rest.split(',')] if rest else []
        mods = []
        if ops:
            last = ops[-1].split()
            if last:
                ops[-1] = last[0]; mods = last[1:]
        self.ops, self.mods = ops, mods
        R = lambda i: parse_regs(ops[i]) if i < len(ops) else set()
        self.w = set(); self.r = set()
        self.kind = 'other'
        self.srcC = set(); self.srcAB = set(); self.addr = set(); self.data = set()
        self.target = None
        base = re.sub(r'_e(32|64)$', '', mn)
        self.base = base
        if mn.startswith('v_mfma'):
            self.kind = 'mfma'; self.w = R(0); self.srcAB = R(1) | R(2); self.srcC = R(3)
            self.r = self.srcAB | self.srcC
            self.passes = 8 if '32x32x16' in mn else 4
        elif mn.startswith('v_'):
            self.kind = 'valu'
            if base.startswith('v_cmp'):
                self.w = R(0); self.r = set().union(*[R(i) for i in range(1, len(ops))])
                if base.startswith('v_cmpx'): self.w |= {('exec', 0)}
            elif base.startswith('v_permlane32_swap') or base.startswith('v_permlane16_swap'):
                self.w = R(0) | R(1); self.r = R(0) | R(1)
            elif '_co_' in base:
                self.w = R(0) | R(1); self.r = set().union(*[R(i) for i in range(2, len(ops))])
            else:
                self.w = R(0); self.r = set().union(*[R(i) for i in range(1, len(ops))]) if len(ops) > 1 else set()
                if base in ('v_fmac_f32', 'v_writelane_b32') or 'UNUSED_PRESERVE' in t: self.r |= R(0)
                if base == 'v_cndmask_b32' and len(ops) == 3: self.r |= {('vcc', 0)}
            self.trans = base in TRANS
        elif mn.startswith('ds_'):
            self.kind = 'ds'
            if 'read' in mn or 'bpermute' in mn or 'swizzle' in mn:
                self.w = R(0); self.r = set().union(*[R(i) for i in range(1, len(ops))]); self.addr = self.r
            else:
                self.r = set().union(*[R(i) for i in range(len(ops))]); self.addr = R(0); self.data = self.r - self.addr
        elif mn.startswith('buffer_') or mn.startswith('global_'):
            self.kind = 'vmem'
            if mn in ('buffer_wbl2', 'buffer_inv'):
                pass
            elif 'load' in mn:
                if 'lds' in mods or 'load_lds' in mn:
                    self.r = set().union(*[R(i) for i in range(len(ops))]) | {('m0', 0)}; self.dma = True
                else:
                    self.w = R(0); self.r = set().union(*[R(i) for i in range(1, len(ops))])
            elif 'atomic' in mn:
                self.r = set().union(*[R(i) for i in range(len(ops))])
                if 'sc0' in mods: self.w = R(0)
            else:
                self.r = set().union(*[R(i) for i in range(len(ops))])
                self.data = R(0) if mn.startswith('buffer_') else R(1)
        elif mn.startswith('s_'):
            self.kind = 'salu'
            if mn.startswith('s_load') or mn.startswith('s_buffer_load') or mn in ('s_memtime', 's_memrealtime'):
                self.kind = 'smem'; self.w = R(0); self.r = set().union(*[R(i) for i in range(1, len(ops))]) if len(ops) > 1 else set()
            elif mn.startswith('s_cmp') or mn.startswith('s_bitcmp'):
                self.r = R(0) | R(1); self.w = {('scc', 0)}
            elif mn.startswith('s_cbranch') or mn == 's_branch':
                self.kind = 'branch'; self.target = ops[0]
            elif mn in ('s_waitcnt', 's_barrier', 's_nop', 's_endpgm', 's_setprio', 's_sleep'):
                self.kind = mn
            else:
                self.w = R(0); self.r = set().union(*[R(i) for i in range(1, len(ops))]) if len(ops) > 1 else set()
                if 'saveexec' in mn: self.w |= {('exec', 0)}; self.r |= {('exec', 0)}
        self.ws = 1
        if mn == 's_nop': self.ws = int(ops[0], 0) + 1
        if mn == 's_waitcnt':
            self.vm = self.lg = None
            m = re.search(r'vmcnt\((\d+)\)', t); self.vm = int(m.group(1)) if m else None
            m = re.search(r'lgkmcnt\((\d+)\)', t); self.lg = int(m.group(1)) if m else None

def vregs(s): return {x for x in s if x[0] in 'va'}
def sregs(s): return {x for x in s if x[0] in ('s', 'vcc')}

def need(p, c):
    n = 0
    if p.kind == 'valu':
        if c.kind == 'mfma' and vregs(p.w) & c.r: n = max(n, 2)
        if c.kind == 'mfma' and ('exec', 0) in p.w: n = max(n, 4)
        if c.kind == 'valu':
            if p.trans and not c.trans and (p.w & c.r): n = max(n, 1)
            if c.base.startswith('v_permlane') and (vregs(p.w) & c.r): n = max(n, 2)
            if c.base in ('v_readfirstlane_b32', 'v_readlane_b32') and (vregs(p.w) & c.r): n = max(n, 1)
            if sregs(p.w) & c.r: n = max(n, 2)
            if 'dpp' in c.text and (vregs(p.w) & c.r): n = max(n, 2)
            if 'sdwa' in p.text and (p.w & (c.r | c.w)): n = max(n, 1)
        if c.kind == 'vmem' and (sregs(p.w) & c.r): n = max(n, 5)
    if p.kind == 'mfma':
        P = p.passes
        big = {4: 8, 8: 12}[P]
        if c.kind == 'mfma':
            if p.w & c.srcAB: n = max(n, big)
            if p.w & c.srcC:
                if not (p.w == c.srcC and c.passes == P): n = max(n, {4: 6, 8: 10}[P])
            if (p.w & c.w) and not (p.w == c.w): n = max(n, big)
        elif c.kind in ('valu', 'ds', 'vmem'):
            if p.w & (c.r | c.w): n = max(n, big)
            if c.kind == 'valu' and (p.srcC & c.w): n = max(n, {4: 3, 8: 7}[P])
            if c.kind in ('ds', 'vmem') and (p.srcC & c.w): n = max(n, {4: 3, 8: 7}[P])
    if p.kind == 'salu' and ('m0', 0) in p.w and c.kind == 'vmem' and ('m0', 0) in c.r: n = max(n, 1)
    if p.kind in ('vmem', 'ds') and p.data and len(p.data) >= 3 and c.kind in ('valu', 'mfma') and (p.data & c.w): n = max(n, 2)
    return n

class Kernel:
    def __init__(self, name):
        self.name = name; self.ins = []
    def __call__(self, text):
        for line in text.split('\n'):
            line = line.strip()
            if not line or line.startswith(';'): continue
            self.ins.append(Ins(line))
    def label(self, name): self.ins.append(Ins(name + ':'))
    def extend(self, lst):
        for x in lst: self(x)
    def cfg(self):
        ins = self.ins; lab = {x.label: i for i, x in enumerate(ins) if x.label}
        succ = []
        for i, x in enumerate(ins):
            s = []
            if x.label is None and x.mn == 's_endpgm': pass
            elif x.label is None and x.kind == 'branch':
                s.append(lab[x.target])
                if x.mn != 's_branch': s.append(i + 1)
            else: s.append(i + 1)
            succ.append([t for t in s if t < len(ins)])
        return succ
    def check_hazards(self):
        ins = self.ins; succ = self.cfg(); pred = [[] for _ in ins]
        for i, s in enumerate(succ):
            for t in s: pred[t].append(i)
        errs = []
        for i, c in enumerate(ins):
            if c.label or c.kind not in ('valu', 'mfma', 'ds', 'vmem'): continue
            seen = {}
            stack = [(p, 0) for p in pred[i]]
            while stack:
                j, d = stack.pop()
                if seen.get(j, 99) <= d: continue
                seen[j] = d
                p = ins[j]
                if p.label is None:
                    n = need(p, c)
                    if n > d: errs.append(f"HAZARD need {n} have {d}: [{j}] {p.text}  ->  [{i}] {c.text}")
                    d2 = d + p.ws
                else: d2 = d
                if d2 < 13:
                    for q in pred[j]: stack.append((q, d2))
        return errs
    def check_waits(self, limit=400000):
        ins = self.ins; succ = self.cfg(); errs = set(); seen = set()
        stack = [(0, (), ())]; steps = 0
        while stack:
            i, vm, lg = stack.pop()
            while True:
                key = (i, vm, lg)
                x = ins[i]
                if x.label is not None or (i > 0 and ins[i-1].label is None and ins[i-1].kind == 'branch'):
                    if key in seen: break
                    seen.add(key)
                steps += 1
                if steps > limit * 50: return list(errs) + ["wait check step limit"]
                if x.label is None:
                    touched = x.r | x.w
                    for nm, q in (('vm', vm), ('lgkm', lg)):
                        for ent in q:
                            if ent and (touched & ent):
                                errs.add(f"WAIT({nm}) pending load regs used at [{i}] {x.text}")
                    if x.kind == 'vmem': vm = (vm + (frozenset(x.w),))[-64:]
                    elif x.kind == 'ds': lg = (lg + (frozenset(x.w),))[-16:]
                    elif x.kind == 'smem': lg = lg + (frozenset(x.w), frozenset())
                    elif x.kind == 's_waitcnt':
                        if x.vm is not None: vm = vm[len(vm) - x.vm:] if x.vm and len(vm) > x.vm else (vm if x.vm else ())
                        if x.lg is not None: lg = lg[len(lg) - x.lg:] if x.lg and len(lg) > x.lg else (lg if x.lg else ())
                s = succ[i]
                if not s: break
                for t in s[1:]: stack.append((t, vm, lg))
                i = s[0]
        return sorted(errs)
    def text(self):
        out = []
        for x in self.ins:
            out.append(x.text if x.label else '  ' + x.text)
        return '\n'.join(out) + '\n'
    def maxregs(self):
        mv = ma = ms = -1
        for x in self.ins:
            if x.label: continue
            for k, n in (x.r | x.w):
                if k == 'v': mv = max(mv, n)
                elif k == 'a': ma = max(ma, n)
                elif k == 's': ms = max(ms, n)
        return mv, ma, ms

def vr(b, n=1, f='v'):
    return f"{f}{b}" if n == 1 else f"{f}[{b}:{b+n-1}]"
def ar(b, n=1): return vr(b, n, 'a')
def sr(b, n=1): return vr(b, n, 's')

def interleave(mfmas, fillers, budget=24, costs=None):
    out = []; fi = 0; n = len(mfmas)
    rem_cost = sum(f[2] for f in fillers)
    for i, m in enumerate(mfmas):
        out.append(m)
        used = 0
        while fi < len(fillers):
            e, t, c = fillers[fi]
            if e > i: break
            if used + c > budget and used > 0 and i < n - 1: break
            out.append(t); used += c; fi += 1
    assert fi == len(fillers), "unplaced fillers"
    return out

def finish(kernels, header, fname):
    s = header
    s += '.amdgcn_target "amdgcn-amd-amdhsa--gfx950"\n.text\n'
    ok = True
    for k in kernels:
        e = k.check_hazards() + k.check_waits()
        for x in e[:12]: print(k.name, x)
        if e: ok = False; print(k.name, len(e), "problems")
        s += f".globl {k.name}\n.p2align 8\n.type {k.name},@function\n{k.name}:\n" + k.text()
    s += '.section .rodata,"a"\n'
    for k in kernels:
        mv, ma, ms = k.maxregs()
        acc = ((mv + 1 + 3) // 4) * 4
        if ma >= 0: acc = 256 if getattr(k, 'full', True) else acc
        nfv = acc + ma + 1 if ma >= 0 else mv + 1
        if getattr(k, 'force_vgpr', None): nfv = k.force_vgpr; acc = 256
        s += f""".p2align 6
.amdhsa_kernel {k.name}
  .amdhsa_next_free_vgpr {nfv}
  .amdhsa_next_free_sgpr {max(ms + 1, 16)}
  .amdhsa_accum_offset {acc}
  .amdhsa_group_segment_fixed_size 0
  .amdhsa_kernarg_size 96
  .amdhsa_user_sgpr_count 2
  .amdhsa_user_sgpr_kernarg_segment_ptr 1
  .amdhsa_system_sgpr_workgroup_id_x 1
.end_amdhsa_kernel
"""
        print(f"{k.name}: {sum(1 for x in k.ins if not x.label)} instrs, v{mv} a{ma} s{ms} nfv={nfv} acc={acc}")
    open(fname, 'w').write(s)
    print(fname, len(s), "bytes", "OK" if ok else "WITH PROBLEMS")
    return ok

import os
STAMP = os.environ.get("STAMP", "0") == "1"
WS_STAMP = 120 << 20
def stamp(K, idx, srd, base=0):
    if not STAMP: return
    K(f"""s_memtime s[98:99]
s_memrealtime s[100:101]
s_waitcnt lgkmcnt(0)
v_mov_b32 v14, s98
v_mov_b32 v15, s100
v_lshrrev_b32 v13, 6, v0
v_lshl_add_u32 v13, s2, 2, v13
v_lshlrev_b32 v13, 7, v13
v_add_u32 v13, {WS_STAMP + base + idx*8}, v13
buffer_store_dwordx2 v[14:15], v13, s[{srd}:{srd+3}], 0 offen""")
```

```python
from dsl import *
from layout import *

SLOT = 36864
XST = 65536
import os
PFMODE = os.environ.get('PF', '1')
S_ACT = 8; S_W = 12; S_WS = 16; S_WSX = 20
sWave = 24; sTb = 25; sChunk = 26; sCb = 27; sCbEnd = 28; sWstride16 = 29
sWbase = 30
sWcolStep = 31; sOutBase = 32; sHS = 33; sDS = 34; sScale = 35
sT0 = 36; sT1 = 37; sT2 = 38; sT3 = 39
sSlotR = 40
sSlotW = 41
sWoff = 42
sOut = 43; sWsize = 44; sActStride = 45; sActBase = 46; sPf = 47; sAc = 48; sPart = 76; sUS = 77; sKt0 = 49; sGw = 50
sPfOff = 51; sPtr = 52
vPF = 30; vJunk = 160; vLane = 1; vW = 16; vT = 17; vLaneT = 19; vO = 20; vXD = 24; vXR = 26; vWF = 32; vAcc = 48; vP = 112; vXV = 128

def xfrag(s, k):
    return ar((s * 32 + k) * 4, 4) if k < 32 else vr(vXV + (s * 4 + k - 32) * 4, 4)

def dma_slab(KD, NS):
    g = []
    for n in range(NS // 4):
        t = f"s_add_u32 m0, {sr(sSlotW)}, {n*1024}\n"
        if n: t += f"s_add_u32 {sr(sWoff)}, {sr(sWoff)}, {sr(sWstride16)}\n"
        else: t += "s_nop 0\n"
        t += f"buffer_load_dwordx4 {vr(vW)}, {sr(S_W,4)}, {sr(sWoff)} offen lds"
        g.append(t)
    return g

def slab_setup():
    return f"""s_mul_i32 {sr(sWoff)}, {sr(sPf)}, {sr(sWcolStep)}
s_add_u32 {sr(sWoff)}, {sr(sWoff)}, {sr(sWbase)}
s_cmp_lt_u32 {sr(sPf)}, {sr(sCbEnd)}
s_cselect_b32 {sr(S_W+2)}, {sr(sWsize)}, 0
s_add_u32 {sr(sPf)}, {sr(sPf)}, 1"""

def slab_done():
    return f"""s_add_u32 {sr(sSlotW)}, {sr(sSlotW)}, {SLOT}
s_sub_u32 {sr(sT0)}, {sr(sSlotW)}, {4*SLOT}
s_cmp_ge_u32 {sr(sSlotW)}, {4*SLOT}
s_cselect_b32 {sr(sSlotW)}, {sr(sT0)}, {sr(sSlotW)}"""

def av_offsets(k):
    return [
     f"s_lshl_b32 {sr(sT1)}, {sr(sT1)}, 5",
     f"v_and_b32 v2, 31, {vr(vLane)}",
     f"v_add_u32 v2, {sr(sT1)}, v2",
     f"v_mul_u32_u24 v3, 3641, v2",
     f"v_lshrrev_b32 v3, 16, v3",
     f"v_mul_u32_u24 v4, 18, v3",
     f"v_sub_u32 v2, v2, v4",
     f"v_lshlrev_b32 v3, 18, v3",
     f"v_lshlrev_b32 v2, 4, v2",
     f"v_add_u32 v2, v2, v3",
     f"v_lshrrev_b32 v3, 5, {vr(vLane)}",
     f"v_lshlrev_b32 v3, 9, v3",
     f"v_add_u32 {vr(vO)}, v2, v3",
     f"v_add_u32 {vr(vO+1)}, 1024, {vr(vO)}",
     f"v_add_u32 {vr(vO+2)}, 4096, {vr(vO)}",
     f"v_add_u32 {vr(vO+3)}, 5120, {vr(vO)}",
    ]

def epilogue(par, scale, av):
    e = []
    e.append((f"s_sub_u32 {sr(sT1)}, {sr(sCb)}, 1", 4))
    if av:
        e.append((f"s_mov_b32 {sr(sOut)}, {sr(sOutBase)}", 4))
        e += [(x, 4) for x in av_offsets(0)]
    else:
        e += [(x, 4) for x in [
            f"s_lshr_b32 {sr(sT2)}, {sr(sT1)}, 2", f"s_mul_i32 {sr(sT2)}, {sr(sT2)}, {sr(sHS)}",
            f"s_and_b32 {sr(sT1)}, {sr(sT1)}, 3", f"s_mul_i32 {sr(sT1)}, {sr(sT1)}, {sr(sDS)}",
            f"s_add_u32 {sr(sOut)}, {sr(sT1)}, {sr(sT2)}", f"s_add_u32 {sr(sOut)}, {sr(sOut)}, {sr(sOutBase)}"]]
    nscal = len(e)
    for s in range(2):
        a = vAcc + par * 32 + s * 16
        for t in range(2):
            if scale:
                for r in range(8): e.append((f"v_mul_f32 {vr(a+8*t+r)}, {sr(sScale)}, {vr(a+8*t+r)}", 4))
            for r in range(4):
                e.append((f"v_cvt_pk_bf16_f32 {vr(vP+(s*2+t)*4+r)}, {vr(a+8*t+2*r)}, {vr(a+8*t+2*r+1)}", 4))
            e.append((f"buffer_store_dwordx4 {vr(vP+(s*2+t)*4,4)}, {vr(vO+s*2+t)}, {sr(S_WSX,4)}, {sr(sOut)} offen", 16))
    return e, nscal

def wreads(k, par):
    r = vWF + (k & 3) * 4
    return [f"ds_read_b64_tr_b16 {vr(r,2)}, {vr(vT+par)} offset:{k*1024}",
            f"ds_read_b64_tr_b16 {vr(r+2,2)}, {vr(vT+par)} offset:{k*1024+256}"]

def mfma(k, s, par, order):
    a = vr(vAcc + par * 32 + s * 16, 16); w = vr(vWF + (k & 3) * 4, 4); x = xfrag(s, k)
    c = a if k else "0"
    return f"v_mfma_f32_32x32x16_bf16 {a}, {w}, {x}, {c}" if order == 'T' else f"v_mfma_f32_32x32x16_bf16 {a}, {x}, {w}, {c}"

def body(K, NS, order, par, scale, av):
    epi, nscal = epilogue(par ^ 1, scale, av)
    dm = dma_slab(None, NS)
    q = []
    for i, (t, c) in enumerate(epi): q.append((0 if i < nscal else 5, t, c))
    q.append((0, f"s_mov_b32 {sr(S_WSX+2)}, {WS_SIZE}", 4))
    q.append((0, slab_setup(), 20))
    for g in dm: q.append((0, g, 24))
    q.append((0, slab_done(), 16))
    qi = 0
    for k in range(NS):
        if k == NS - 3:
            assert qi == len(q), (qi, len(q))
            K(f"s_waitcnt vmcnt({4 + NS//4})")
            K("s_barrier")
            K(f"s_add_u32 {sr(sSlotR)}, {sr(sSlotR)}, {SLOT}")
            K(f"s_cmp_ge_u32 {sr(sSlotR)}, {4*SLOT}")
            K(f"s_cselect_b32 {sr(sSlotR)}, 0, {sr(sSlotR)}")
            K(f"v_add_u32 {vr(vT+(par^1))}, {sr(sSlotR)}, {vr(vLaneT)}")
        K("s_waitcnt lgkmcnt(4)")
        for s in range(2):
            K(mfma(k, s, par, order))
            used = 0
            if s == 0:
                kk = k + 3
                for r in (wreads(kk, par) if kk < NS else wreads(kk - NS, par ^ 1)): K(r)
                used = 8
            gap = 2 * k + s
            while qi < len(q) and q[qi][0] <= gap and (used + q[qi][2] <= 24 or used == 0):
                K(q[qi][1]); used += q[qi][2]; qi += 1
    K(f"s_add_u32 {sr(sCb)}, {sr(sCb)}, 1")

def tail(K, par, scale, av):
    stamp(K, 2, S_WS)
    K("s_nop 15")
    epi, _ = epilogue(par, scale, av)
    for t, c in epi: K(t)

def pf_load(K, n):
    K(f"buffer_load_dwordx4 {vr(vJunk+4*n,4)}, {vr(vPF)}, {sr(S_W,4)}, {sr(sPfOff)} offen")
    K(f"s_add_u32 {sr(sPfOff)}, {sr(sPfOff)}, {sr(sT2)}")

def xprologue(K, NS):
    NC = NS // 4
    NX = 3
    order = []
    def issue(c):
        K(f"s_add_u32 {sr(sT0)}, {sr(sActBase)}, {c*128}")
        for n in range(8):
            K(f"s_add_u32 m0, {sr(sT3)}, {(c%NX)*8192 + n*1024}")
            if n: K(f"s_add_u32 {sr(sT0)}, {sr(sT0)}, {sr(sActStride)}")
            else: K("s_nop 0")
            K(f"buffer_load_dwordx4 {vr(vXD+(n&1))}, {sr(S_ACT,4)}, {sr(sT0)} offen lds")
            order.append(('x', c))
    def slab():
        K(slab_setup())
        for g in dma_slab(None, NS): K(g); order.append(('w', 0))
        K(slab_done())
    K(f"s_mul_i32 {sr(sT3)}, {sr(sWave)}, {NX*8192}")
    K(f"s_add_u32 {sr(sT3)}, {sr(sT3)}, {XST}")
    for i in range(4): K(f"v_add_u32 {vr(vXR+i)}, {sr(sT3)}, {vr(vXR+i)}")
    K(f"""s_lshr_b32 {sr(sT2)}, {sr(sWstride16)}, 4
s_lshr_b32 {sr(sPfOff)}, {sr(sKt0)}, 1
s_mul_i32 {sr(sPfOff)}, {sr(sPfOff)}, {NS//2}
s_mul_i32 {sr(sPfOff)}, {sr(sPfOff)}, {sr(sT2)}
s_mul_i32 {sr(sT0)}, {sr(sCb)}, {sr(sWcolStep)}
s_add_u32 {sr(sPfOff)}, {sr(sPfOff)}, {sr(sT0)}
s_add_u32 {sr(sPfOff)}, {sr(sPfOff)}, {sr(sPart)}
v_lshlrev_b32 {vr(vPF)}, 4, {vr(vLane)}""")
    for c in range(NX): issue(c)
    slab()
    npf = 0
    for c in range(NC):
        last = max(i for i, o in enumerate(order) if o == ('x', c))
        K(f"s_waitcnt vmcnt({len(order) - 1 - last})")
        for s in range(2):
            for i in range(4):
                K(f"ds_read_b128 {xfrag(s, 4*c+i)}, {vr(vXR+i)} offset:{(c%NX)*8192 + s*4096}")
        if PFMODE == '1':
            while npf < (NS // 2) * (c + 1) // (NC - 2) and npf < NS // 2:
                pf_load(K, npf); order.append(('p', npf)); npf += 1
        K("s_waitcnt lgkmcnt(0)")
        if c + NX < NC: issue(c + NX)
    stamp(K, 1, S_WS)
    if STAMP: K("s_waitcnt vmcnt(0)")
    K("s_barrier")
    slab()
    K(f"v_mov_b32 {vr(vT)}, {vr(vLaneT)}")
    K(f"s_mov_b32 {sr(sSlotR)}, 0")
    for k in range(3):
        for r in wreads(k, 0): K(r)

def mainloop(K, name, NS, order, scale, av, done):
    K.label(name)
    xprologue(K, NS)
    K.label(name + "_l0")
    body(K, NS, order, 0, scale, av)
    K(f"s_cmp_ge_u32 {sr(sCb)}, {sr(sCbEnd)}")
    K(f"s_cbranch_scc1 {name}_t0")
    body(K, NS, order, 1, scale, av)
    K(f"s_cmp_lt_u32 {sr(sCb)}, {sr(sCbEnd)}")
    K(f"s_cbranch_scc1 {name}_l0")
    K("s_waitcnt lgkmcnt(0)")
    tail(K, 1, scale, av)
    K(f"s_branch {done}")
    K.label(name + "_t0")
    K("s_waitcnt lgkmcnt(0)")
    tail(K, 0, scale, av)
    K(f"s_branch {done}")

def srd(K, d, p, size):
    K(f"s_mov_b32 {sr(d)}, {sr(p)}\ns_mov_b32 {sr(d+1)}, {sr(p+1)}\ns_mov_b32 {sr(d+2)}, {size}\ns_mov_b32 {sr(d+3)}, 0x20000")

def build():
    K = Kernel("proj_kernel"); K.force_vgpr = 512
    P = lambda ka: sPtr + ka // 4
    K(f"""s_cmp_ge_u32 s2, 256
s_cbranch_scc1 k1_exit
s_load_dwordx16 {sr(sPtr,16)}, s[0:1], 0
s_load_dwordx8 {sr(sPtr+16,8)}, s[0:1], 64
v_and_b32 {vr(vLane)}, 63, v0
v_lshrrev_b32 v2, 6, v0
s_and_b32 {sr(sT0)}, s2, 7
s_lshr_b32 {sr(sT1)}, s2, 3
v_readfirstlane_b32 {sr(sWave)}, v2
s_lshr_b32 {sr(sTb)}, {sr(sT1)}, 2
s_and_b32 {sr(sT1)}, {sr(sT1)}, 3
s_lshl_b32 {sr(sChunk)}, {sr(sT0)}, 2
s_add_u32 {sr(sChunk)}, {sr(sChunk)}, {sr(sT1)}
s_lshl_b32 {sr(sKt0)}, {sr(sTb)}, 3
s_lshl_b32 {sr(sT0)}, {sr(sWave)}, 1
s_add_u32 {sr(sKt0)}, {sr(sKt0)}, {sr(sT0)}
v_lshrrev_b32 v2, 5, {vr(vLane)}
v_lshlrev_b32 {vr(vLaneT)}, 9, v2
v_bfe_u32 v3, {vr(vLane)}, 2, 2
v_lshlrev_b32 v3, 6, v3
v_add_u32 {vr(vLaneT)}, {vr(vLaneT)}, v3
v_bfe_u32 v3, {vr(vLane)}, 4, 1
v_lshlrev_b32 v3, 5, v3
v_add_u32 {vr(vLaneT)}, {vr(vLaneT)}, v3
v_and_b32 v3, 3, {vr(vLane)}
v_lshlrev_b32 v3, 3, v3
v_add_u32 {vr(vLaneT)}, {vr(vLaneT)}, v3
v_and_b32 v3, 31, {vr(vLane)}
v_bfe_u32 v4, {vr(vLane)}, 1, 3
v_lshlrev_b32 v3, 7, v3""")
    for i in range(4):
        K(f"v_add_u32 v5, {2*i}, v2\nv_xor_b32 v5, v5, v4\nv_lshlrev_b32 v5, 4, v5\nv_add_u32 {vr(vXR+i)}, v3, v5")
    K("s_waitcnt lgkmcnt(0)")
    srd(K, S_WS, P(KA_WS), WS_SIZE)
    srd(K, S_WSX, P(KA_WS), 0)
    stamp(K, 0, S_WS)
    K(f"""s_mov_b32 {sr(sScale)}, 1.0
s_mov_b32 {sr(sWcolStep)}, 64
s_mov_b32 {sr(sPart)}, 0
s_mov_b32 {sr(sDS)}, 2048
v_lshlrev_b32 {vr(vO)}, 4, {vr(vLane)}
v_and_b32 v6, 3, {vr(vLane)}
v_lshlrev_b32 v6, 4, v6
v_lshrrev_b32 v7, 2, {vr(vLane)}
s_cmp_ge_u32 {sr(sChunk)}, 26
s_cbranch_scc1 k1_typeA
s_cmp_ge_u32 {sr(sChunk)}, 16
s_cbranch_scc1 k1_typeQ""")
    def common(K, actp, actsz, actstride, wstride, rows_per_wave):
        srd(K, S_ACT, actp, actsz)
        K(f"""s_mov_b32 {sr(sActStride)}, {8*actstride}
s_mul_i32 {sr(sActBase)}, {sr(sKt0)}, {32*actstride}
s_mov_b32 {sr(sWstride16)}, {16*wstride}
s_mul_i32 {sr(sWbase)}, {sr(sWave)}, {rows_per_wave*wstride}
s_mul_i32 {sr(sSlotW)}, {sr(sWave)}, {rows_per_wave*64}
v_mul_u32_u24 {vr(vW)}, {wstride}, v7
v_add_u32 {vr(vW)}, {vr(vW)}, v6
v_lshrrev_b32 v8, 3, {vr(vLane)}
v_mul_u32_u24 v8, {actstride}, v8
v_and_b32 v9, 7, {vr(vLane)}
v_lshrrev_b32 v10, 4, {vr(vLane)}
v_xor_b32 v9, v9, v10
v_lshlrev_b32 v10, 4, v9
v_add_u32 {vr(vXD)}, v8, v10
v_xor_b32 v9, 4, v9
v_lshlrev_b32 v10, 4, v9
v_add_u32 {vr(vXD+1)}, v8, v10""")
    def ovec(K, dt, ds):
        K(f"""v_add_u32 {vr(vO+1)}, {dt}, {vr(vO)}
v_add_u32 {vr(vO+2)}, {ds}, {vr(vO)}
v_add_u32 {vr(vO+3)}, {ds+dt}, {vr(vO)}""")
    common(K, P(KA_CKV), SZ_CKV, 1024, 8192, 128)
    ovec(K, 1024, 16384)
    K(f"""s_and_b32 {sr(sCb)}, {sr(sChunk)}, 7
s_lshl_b32 {sr(sCb)}, {sr(sCb)}, 4
s_add_u32 {sr(sCbEnd)}, {sr(sCb)}, 16
s_mov_b32 {sr(sPf)}, {sr(sCb)}
s_mov_b32 {sr(sWsize)}, {SZ_WUK}
s_mov_b32 {sr(sHS)}, {64*16384}
s_lshl_b32 {sr(sOutBase)}, {sr(sKt0)}, 14
s_add_u32 {sr(sOutBase)}, {sr(sOutBase)}, {WS_KVB}
s_cmp_ge_u32 {sr(sChunk)}, 8
s_cbranch_scc1 k1_typeV""")
    srd(K, S_W, P(KA_WUK), SZ_WUK)
    mainloop(K, "k1_K", 32, 'T', False, False, "k1_end")
    K.label("k1_typeV")
    srd(K, S_W, P(KA_WUV), SZ_WUK)
    K(f"s_add_u32 {sr(sOutBase)}, {sr(sOutBase)}, 8192")
    mainloop(K, "k1_V", 32, 'N', False, False, "k1_end")
    K.label("k1_typeQ")
    common(K, P(KA_BX), SZ_BX, 1152, 8192, 144)
    ovec(K, 1024, 8192)
    srd(K, S_W, P(KA_WQ), SZ_WQ)
    K(f"""s_sub_u32 {sr(sT0)}, {sr(sChunk)}, 16
s_mul_i32 {sr(sCb)}, {sr(sT0)}, 13
s_add_u32 {sr(sCbEnd)}, {sr(sCb)}, 13
s_cmp_eq_u32 {sr(sT0)}, 8
s_cselect_b32 {sr(sCbEnd)}, 116, {sr(sCbEnd)}
s_cmp_eq_u32 {sr(sT0)}, 9
s_cselect_b32 {sr(sCb)}, 116, {sr(sCb)}
s_cselect_b32 {sr(sCbEnd)}, 128, {sr(sCbEnd)}
s_mov_b32 {sr(sPf)}, {sr(sCb)}
s_mov_b32 {sr(sWsize)}, {SZ_WQ}
s_mov_b32 {sr(sHS)}, {64*8192}
s_mov_b32 {sr(sScale)}, {f32bits(C_B)}
s_lshl_b32 {sr(sOutBase)}, {sr(sKt0)}, 13
s_add_u32 {sr(sOutBase)}, {sr(sOutBase)}, {WS_QB}
s_branch k1_T576""")
    K.label("k1_typeA")
    common(K, P(KA_AX), SZ_AX, 1152, 3456, 144)
    srd(K, S_W, P(KA_AWQKV), SZ_AWQKV)
    K(f"""s_sub_u32 {sr(sAc)}, {sr(sChunk)}, 26
s_mov_b32 {sr(sWsize)}, {SZ_AWQKV}
s_and_b32 {sr(sT0)}, {sr(sAc)}, 1
s_mul_i32 {sr(sCb)}, {sr(sT0)}, 9
s_mov_b32 {sr(sPf)}, {sr(sCb)}
s_lshr_b32 {sr(sT1)}, {sr(sAc)}, 1
s_mul_i32 {sr(sT2)}, {sr(sT1)}, 1152
s_add_u32 {sr(sWbase)}, {sr(sWbase)}, {sr(sT2)}
s_mov_b32 {sr(sPart)}, {sr(sT2)}
s_cmp_eq_u32 {sr(sT1)}, 2
s_cbranch_scc1 k1_typeAV
s_lshl_b32 {sr(sCb)}, {sr(sT0)}, 3
s_mov_b32 {sr(sPf)}, {sr(sCb)}
s_add_u32 {sr(sCbEnd)}, {sr(sCb)}, 8
s_mov_b32 {sr(sWcolStep)}, 72
s_lshl_b32 {sr(sUS)}, 2048, {sr(sT1)}
s_lshl_b32 {sr(sDS)}, {sr(sUS)}, 7
s_lshl_b32 {sr(sHS)}, {sr(sUS)}, 9
s_mul_i32 {sr(sOutBase)}, {sr(sKt0)}, {sr(sUS)}
s_mul_i32 {sr(sT2)}, {sr(sT1)}, {WS_KVA-WS_QA}
s_add_u32 {sr(sOutBase)}, {sr(sOutBase)}, {sr(sT2)}
s_add_u32 {sr(sOutBase)}, {sr(sOutBase)}, {WS_QA}
s_lshl_b32 {sr(sT2)}, {sr(sUS)}, 6
v_add_u32 {vr(vO+1)}, {sr(sT2)}, {vr(vO)}
v_add_u32 {vr(vO+2)}, {sr(sUS)}, {vr(vO)}
v_add_u32 {vr(vO+3)}, {sr(sUS)}, {vr(vO+1)}
s_cmp_eq_u32 {sr(sT1)}, 0
s_cselect_b32 {sr(sScale)}, {f32bits(C_A)}, 1.0
v_mul_u32_u24 {vr(vW)}, 3456, v7
v_bfe_u32 v8, {vr(vLane)}, 1, 1
v_mul_u32_u24 v8, 36, v8
v_add_u32 {vr(vW)}, {vr(vW)}, v8
v_and_b32 v8, 1, {vr(vLane)}
v_lshlrev_b32 v8, 4, v8
v_add_u32 {vr(vW)}, {vr(vW)}, v8""")
    mainloop(K, "k1_T576", 36, 'T', True, False, "k1_after576T")
    K.label("k1_typeAV")
    K(f"""s_add_u32 {sr(sCbEnd)}, {sr(sCb)}, 9
s_lshl_b32 {sr(sOutBase)}, {sr(sKt0)}, 12
s_add_u32 {sr(sOutBase)}, {sr(sOutBase)}, {WS_KVA+1024}""")
    mainloop(K, "k1_N576", 36, 'N', False, True, "k1_Aextra")
    K.label("k1_after576T")
    K(f"""s_cmp_lt_u32 {sr(sChunk)}, 26
s_cbranch_scc1 k1_end
s_mov_b32 {sr(S_W+2)}, {SZ_AWQKV}
v_lshrrev_b32 v2, 4, {vr(vLane)}
v_mul_u32_u24 v2, 3456, v2
v_and_b32 v3, 15, {vr(vLane)}
v_mul_u32_u24 v3, 36, v3
v_add_u32 {vr(vW)}, v2, v3
v_add_u32 {vr(vW)}, 32, {vr(vW)}
v_mov_b32 {vr(vT)}, {vr(vLaneT)}
v_and_b32 v2, 31, {vr(vLane)}
v_lshlrev_b32 v2, 2, v2
v_lshrrev_b32 v3, 5, {vr(vLane)}
v_mul_lo_u32 v3, v3, {sr(sDS)}
v_add_u32 {vr(vO)}, v2, v3
v_add_u32 {vr(vO+1)}, {sr(sUS)}, {vr(vO)}
s_sub_u32 {sr(sT1)}, {sr(sUS)}, 1024
s_add_u32 {sr(sOutBase)}, {sr(sOutBase)}, {sr(sT1)}
s_lshr_b32 {sr(sDS)}, {sr(sDS)}, 1
s_mul_i32 {sr(sSlotW)}, {sr(sWave)}, {144*64}
s_and_b32 {sr(sCb)}, {sr(sAc)}, 1""")
    K.label("k1_left")
    K(f"""s_barrier
s_mul_i32 {sr(sWoff)}, {sr(sCb)}, {16*36}
s_add_u32 {sr(sWoff)}, {sr(sWoff)}, {sr(sWbase)}
s_mov_b32 m0, {sr(sSlotW)}
s_mov_b32 {sr(sT0)}, 36""")
    K.label("k1_left_dma")
    K(f"""buffer_load_dword {vr(vW)}, {sr(S_W,4)}, {sr(sWoff)} offen lds
s_add_u32 m0, m0, 256
s_add_u32 {sr(sWoff)}, {sr(sWoff)}, {4*3456}
s_sub_u32 {sr(sT0)}, {sr(sT0)}, 1
s_cmp_lg_u32 {sr(sT0)}, 0
s_cbranch_scc1 k1_left_dma
s_waitcnt vmcnt(0)
s_barrier""")
    for k in range(3):
        for r in wreads(k, 0): K(r)
    for k in range(36):
        K(f"s_waitcnt lgkmcnt({min(4, 2*(35-k))})")
        K(mfma(k, 0, 0, 'T'))
        if k + 3 < 36:
            for r in wreads(k + 3, 0): K(r)
        K(mfma(k, 1, 0, 'T'))
    K("s_nop 15")
    K(f"s_lshl_b32 {sr(sOut)}, {sr(sCb)}, 4\ns_mul_i32 {sr(sOut)}, {sr(sOut)}, {sr(sDS)}\ns_add_u32 {sr(sOut)}, {sr(sOut)}, {sr(sOutBase)}")
    for s in range(2):
        a = vAcc + s * 16
        for r in range(16): K(f"v_mul_f32 {vr(a+r)}, {sr(sScale)}, {vr(a+r)}")
        for p in range(8): K(f"v_cvt_pk_bf16_f32 {vr(vP+s*8+p)}, {vr(a+2*p)}, {vr(a+2*p+1)}")
    for p in range(8):
        K(f"s_mul_i32 {sr(sT0)}, {sr(sDS)}, {4*(p>>1) + (p&1)}\ns_add_u32 {sr(sT0)}, {sr(sT0)}, {sr(sOut)}")
        for s in range(2):
            K(f"buffer_store_dword {vr(vP+s*8+p)}, {vr(vO+s)}, {sr(S_WS,4)}, {sr(sT0)} offen")
    K("s_branch k1_end")
    K.label("k1_Aextra")
    K(f"""s_cmp_lg_u32 {sr(sAc)}, 4
s_cbranch_scc1 k1_end
v_lshrrev_b32 v2, 4, {vr(vLane)}
v_lshlrev_b32 v2, 18, v2
v_bfe_u32 v3, {vr(vLane)}, 1, 2
v_lshlrev_b32 v3, 9, v3
v_add_u32 v2, v2, v3
v_bfe_u32 v3, {vr(vLane)}, 3, 1
v_lshlrev_b32 v3, 12, v3
v_add_u32 v2, v2, v3
v_and_b32 v3, 1, {vr(vLane)}
v_lshlrev_b32 v3, 6, v3
v_add_u32 v2, v2, v3
v_add_u32 v2, {18*16}, v2
v_mov_b32 v4, 0x3f803f80
v_mov_b32 v5, 0x3f803f80
v_mov_b32 v6, 0x3f803f80
v_mov_b32 v7, 0x3f803f80
s_lshl_b32 {sr(sT0)}, {sr(sKt0)}, 12
s_add_u32 {sr(sT0)}, {sr(sT0)}, {WS_KVA+1024}""")
    for n in range(8):
        K(f"buffer_store_dwordx4 v[4:7], v2, {sr(S_WS,4)}, {sr(sT0)} offen")
        K(f"s_add_u32 {sr(sT0)}, {sr(sT0)}, {4*262144}")
    K.label("k1_end")
    stamp(K, 3, S_WS)
    if STAMP:
        K("s_waitcnt vmcnt(0)")
        stamp(K, 4, S_WS)
    K.label("k1_exit")
    K("s_endpgm")
    return K
```

```python
from dsl import *
from layout import *

S_WS = 8; S_KV = 12; S_W1 = 28; S_W2 = 32
sH = 16; sJ = 17; sWave = 18; sK = 19; sKf = 20; sNP3 = 21; sDoff = 22; sDslot = 23
sT0 = 24; sT1 = 25; sT2 = 26; sT3 = 27
sKVbase = 36; sQt0 = 37; sFB = 38; sU = 39; sN = 40; sAoff = 41; sJunk = 42; sM0 = 43; sLo = 44; sHi = 45; sGw = 46
sPtr = 48
sTri = 64
JUNK = 131072
aO = 0; aQ = 128; aK = 192; aV = 224
vLane = 1; vL16 = 2; vAK = 3; vAV = 4; vD = 5; vNinf = 6; vL = 8
vM = 10
vT = 12
vNegM = 16; vS = 48; vP = 112; vE = 144
def Oa(s, d): return ar(aO + (s * 4 + d) * 16, 16)
def Qa(s, ds): return ar(aQ + (s * 8 + ds) * 4, 4)
def Sv(p, s): return vS + (p * 2 + s) * 16
def Pv(p, s, ks): return vP + ((p * 2 + s) * 2 + ks) * 4

def X(p, subs=(0, 1), raw=False):
    out = []
    for ds in range(8):
        for s in subs:
            d = vr(Sv(p, s), 16)
            c = d if ds else ("0" if raw else vr(vNegM + s * 16, 16))
            out.append(f"v_mfma_f32_32x32x16_bf16 {d}, {ar(aK + ds*4, 4)}, {Qa(s, ds)}, {c}")
    return out
def Y(p, subs=(0, 1)):
    out = []
    for ks in range(2):
        for d in range(4):
            for s in subs:
                out.append(f"v_mfma_f32_32x32x16_bf16 {Oa(s, d)}, {ar(aV + (d*2+ks)*4, 4)}, {vr(Pv(p, s, ks), 4)}, {Oa(s, d)}")
    return out
def softmax_ops(p, subs=(0, 1)):
    seq = []
    for ks in range(2):
        for s in subs:
            for r in range(8 * ks, 8 * ks + 8): seq.append((s, ks, r))
    ops = []
    n = len(seq)
    for i in range(n + 2):
        if i < n:
            s, ks, r = seq[i]; ops.append((f"v_exp_f32 {vr(Sv(p,s)+r)}, {vr(Sv(p,s)+r)}", 8))
        if 0 <= i - 1 < n:
            s, ks, r = seq[i - 1]; ops.append((f"v_add_f32 {vr(vL+s)}, {vr(Sv(p,s)+r)}, {vr(vL+s)}", 4))
        if 0 <= i - 2 < n and (i - 2) % 2 == 1:
            s, ks, r = seq[i - 2]
            ops.append((f"v_cvt_pk_bf16_f32 {vr(Pv(p,s,ks)+(r%8)//2)}, {vr(Sv(p,s)+r-1)}, {vr(Sv(p,s)+r)}", 4))
    return ops
def kread(u2, ds): return f"ds_read_b128 {ar(aK + ds*4, 4)}, {vr(vAK)} offset:{u2*16384 + ds*1024}"
def vread(u2, i): return f"ds_read_b128 {ar(aV + i*4, 4)}, {vr(vAV)} offset:{u2*16384 + 8192 + i*1024}"
VORD = [0, 2, 4, 6, 1, 3, 5, 7]
def dma(i):
    t = ""
    if i % 4 == 0:
        t += f"s_add_u32 m0, {sr(sM0)}, {(i//4)*4096}\n"
        t += f"s_add_u32 {sr(sDoff)}, {sr(sDoff)}, {4096 if i else 28672}\n"
    return t + f"buffer_load_dwordx4 {vr(vL16)}, {sr(S_KV,4)}, {sr(sDoff)} offen offset:{(i%4)*1024} lds"
def tri(s): return [f"v_cndmask_b32 {vr(vNegM+s*16+r)}, {vr(vNegM+s*16+r)}, {vr(vNinf)}, {sr(sTri+2*r,2)}" for r in range(16)]

START = 3
def assign(ops, fixed, ngaps, start, budget=24):
    room = [max(0, budget - fixed.get((start + g) % 32, 0)) for g in range(ngaps)]
    tot = sum(c for _, c in ops); cap = sum(room)
    res = []; g = 0; acc = 0.0; target = 0.0; used = 0
    frac = tot / cap
    target = room[0] * frac
    for t, c in ops:
        while acc + c / 2 > target and g < ngaps - 1:
            g += 1; target += room[g] * frac
        res.append(start + g); acc += c
    return res

def barrier_block(K, name):
    K(f"""s_cmp_gt_u32 {sr(sK)}, {sr(sNP3)}
s_cbranch_scc1 {name}_nb
s_cmp_eq_u32 {sr(sK)}, {sr(sNP3)}
s_cbranch_scc1 {name}_b0
s_waitcnt vmcnt(8)
s_branch {name}_b1
{name}_b0:
s_waitcnt vmcnt(0)
{name}_b1:
s_barrier
{name}_nb:
s_cmp_lt_u32 {sr(sK)}, {sr(sNP3)}
s_cselect_b32 {sr(S_KV+2)}, {WS_SIZE}, 0
s_cselect_b32 {sr(sM0)}, {sr(sDslot)}, {sr(sJunk)}
s_add_u32 {sr(sDslot)}, {sr(sDslot)}, 32768
s_and_b32 {sr(sDslot)}, {sr(sDslot)}, 0x1ffff""")

RD_GAPS = [0, 1, 2, 4, 6, 8, 10, 12]
DMA_GAPS_Y = [3, 7, 11, 14]; DMA_GAPS_X = [3, 7, 11, 14]
FIXED = {}
for g in RD_GAPS: FIXED[g] = FIXED.get(g, 0) + 6; FIXED[16 + g] = FIXED.get(16 + g, 0) + 6
for g in DMA_GAPS_Y: FIXED[g] = FIXED.get(g, 0) + 12
for g in DMA_GAPS_X: FIXED[16 + g] = FIXED.get(16 + g, 0) + 12
FIXED[15] = FIXED.get(15, 0) + 4; FIXED[31] = FIXED.get(31, 0) + 4
_ops = softmax_ops(0)
GAPOF = assign(_ops, FIXED, 32, START)

def body(K, name, final):
    fill = {g: [] for g in range(64)}
    ev, od = softmax_ops(0), softmax_ops(1, (1,) if final else (0, 1))
    for (t, c), g in zip(ev, GAPOF):
        if g >= 16: fill[g - 16].append(t)
    if not final:
        for (t, c), g in zip(od, GAPOF): fill[16 + g].append(t)
        for (t, c), g in zip(ev, GAPOF):
            if g < 16: fill[48 + g].append(t)
        ms = X(1) + Y(0) + X(0) + Y(1)
        pre = {g: [] for g in range(64)}
        for i, g in enumerate(RD_GAPS):
            pre[g].append(vread(0, VORD[i])); pre[16 + g].append(kread(0, i))
            pre[32 + g].append(vread(1, VORD[i])); pre[48 + g].append(kread(1, i))
        for i, g in enumerate(DMA_GAPS_Y): pre[16 + g].append(dma(i))
        for i, g in enumerate(DMA_GAPS_X): pre[32 + g].append(dma(4 + i))
        for g in range(64):
            if g % 16 == 0: K("s_waitcnt lgkmcnt(0)")
            if g == 16: barrier_block(K, name)
            if g == 32:
                K(f"s_add_u32 {sr(sT0)}, {sr(sK)}, 1\ns_cmp_lg_u32 {sr(sT0)}, {sr(sKf)}\ns_cbranch_scc1 {name}_nm")
                K.extend(tri(0)); K("s_nop 1"); K.label(name + "_nm")
            K(ms[g])
            K.extend(pre[g]); K.extend(fill[g])
            if g == 47: K(f"v_mov_b32 {vr(vAV)}, {vr(vAK)}")
        K(f"""v_add_u32 {vr(vAK)}, 32768, {vr(vAK)}
v_and_b32 {vr(vAK)}, 0x1ffff, {vr(vAK)}
s_add_u32 {sr(sK)}, {sr(sK)}, 1""")
    else:
        K.extend(tri(1))
        K("s_nop 0\ns_waitcnt lgkmcnt(0)")
        ms = X(1, (1,))
        rest = [t for g in range(16 + START) for t in fill[g]]
        per = (len(rest) + 7) // 8
        for g in range(8):
            K(ms[g]); K(vread(0, VORD[g])); K.extend(rest[g * per:(g + 1) * per])
        K("s_waitcnt lgkmcnt(0)")
        barrier_block(K, name)
        ms = Y(0); odl = [t for t, c in od]
        for g in range(16):
            K(ms[g])
            if g < 8: K(dma(g))
            if g >= 4: K.extend(odl[(g - 4) * 4:(g - 3) * 4])
        assert len(odl) <= 48
        for i in range(8): K(vread(1, VORD[i]))
        K("s_waitcnt lgkmcnt(0)")
        K.extend(Y(1, (1,)))

def rowmax(K, regs, dst, init=None):
    r = list(regs)
    if init is None: K(f"v_max_f32 {vr(dst)}, {vr(r[0])}, {vr(r[1])}"); r = r[2:]
    while r: K(f"v_max3_f32 {vr(dst)}, {vr(dst)}, {vr(r[0])}, {vr(r[1])}"); r = r[2:]
def xhalf(K, reg, op):
    K(f"v_mov_b32 {vr(vT)}, {vr(reg)}\ns_nop 1\nv_permlane32_swap_b32 {vr(reg)}, {vr(vT)}\n{op} {vr(reg)}, {vr(reg)}, {vr(vT)}")

def check_l(K, regs, okl):
    K(f"s_mov_b64 vcc, exec")
    for r in regs:
        K(f"v_cmp_le_f32 {sr(sT0,2)}, {sr(sLo)}, {vr(r)}\nv_cmp_ge_f32 {sr(sT2,2)}, {sr(sHi)}, {vr(r)}")
        K(f"s_and_b64 vcc, vcc, {sr(sT0,2)}\ns_and_b64 vcc, vcc, {sr(sT2,2)}")
    K(f"s_cmp_eq_u64 vcc, exec\ns_cbranch_scc1 {okl}")

def attnB(K):
    K(f"""s_lshl_b32 {sr(sKf)}, {sr(sJ)}, 2
s_add_u32 {sr(sNP3)}, {sr(sKf)}, 1
s_add_u32 {sr(sKf)}, {sr(sKf)}, {sr(sWave)}
s_lshl_b32 {sr(sQt0)}, {sr(sKf)}, 1
s_lshl_b32 {sr(sKVbase)}, {sr(sH)}, 20
s_add_u32 {sr(sKVbase)}, {sr(sKVbase)}, {WS_KVB}
s_lshl_b32 {sr(sDslot)}, {sr(sWave)}, 13
s_add_u32 {sr(sJunk)}, {sr(sDslot)}, {JUNK}
s_add_u32 {sr(sDoff)}, {sr(sKVbase)}, {sr(sDslot)}
s_sub_u32 {sr(sDoff)}, {sr(sDoff)}, 28672
s_mov_b32 {sr(sK)}, 0
s_lshl_b32 {sr(sT1)}, {sr(sH)}, 6
s_add_u32 {sr(sT1)}, {sr(sT1)}, {sr(sQt0)}
s_lshl_b32 {sr(sT1)}, {sr(sT1)}, 13
s_add_u32 {sr(sT1)}, {sr(sT1)}, {WS_QB}""")
    for p in range(3):
        K(f"s_mov_b32 {sr(sM0)}, {sr(sDslot)}\ns_add_u32 {sr(sDslot)}, {sr(sDslot)}, 32768")
        for i in range(8): K(dma(i))
        if p == 0:
            for i in range(16):
                K(f"buffer_load_dwordx4 {ar(aQ+4*i,4)}, {vr(vL16)}, {sr(S_WS,4)}, {sr(sT1)} offen offset:{(i%4)*1024}")
                if i % 4 == 3: K(f"s_add_u32 {sr(sT1)}, {sr(sT1)}, 4096")
    for i in range(128): K(f"v_accvgpr_write_b32 {ar(aO+i)}, 0")
    K(f"""v_mov_b32 {vr(vAK)}, {vr(vL16)}
v_mov_b32 {vr(vAV)}, {vr(vL16)}
v_mov_b32 {vr(vL)}, 0
v_mov_b32 {vr(vL+1)}, 0
s_waitcnt vmcnt(16)
s_barrier""")
    for ds in range(8): K(kread(0, ds))
    K("s_waitcnt lgkmcnt(0)")
    K.extend(X(0, raw=True))
    for ds in range(8): K(kread(1, ds))
    K(f"v_add_u32 {vr(vAK)}, 32768, {vr(vAK)}\ns_nop 3")
    for s in range(2):
        rowmax(K, range(Sv(0, s), Sv(0, s) + 16), vM + s); xhalf(K, vM + s, "v_max_f32")
    for s in range(2):
        for r in range(16): K(f"v_sub_f32 {vr(vNegM+s*16+r)}, 0, {vr(vM+s)}")
    K(f"s_cmp_lg_u32 {sr(sKf)}, 0\ns_cbranch_scc1 b_nm0")
    K.extend(tri(0)); K.label("b_nm0")
    for s in range(2):
        for r in range(16): K(f"v_add_f32 {vr(Sv(0,s)+r)}, {vr(vNegM+s*16+r)}, {vr(Sv(0,s)+r)}")
    for (t, c), g in zip(softmax_ops(0), GAPOF):
        if g < 16: K(t)
    stamp(K, 1, S_WS, 1 << 17)
    K(f"s_cmp_eq_u32 {sr(sKf)}, 0\ns_cbranch_scc1 b_final")
    K.label("b_loop")
    body(K, "b_r", False)
    K(f"s_cmp_lt_u32 {sr(sK)}, {sr(sKf)}\ns_cbranch_scc1 b_loop")
    K.label("b_final")
    body(K, "b_f", True)
    K(f"s_waitcnt vmcnt(0)\ns_cmp_lg_u32 {sr(sWave)}, 0\ns_cbranch_scc1 b_nopub\ns_barrier")
    K.label("b_nopub")
    stamp(K, 2, S_WS, 1 << 17)
    for s in range(2): xhalf(K, vL + s, "v_add_f32")
    check_l(K, [vL, vL + 1], "b_ok")
    fallbackB(K)
    K.label("b_ok")
    K(f"""v_rcp_f32 {vr(vL)}, {vr(vL)}
v_rcp_f32 {vr(vL+1)}, {vr(vL+1)}
s_lshl_b32 {sr(sT0)}, {sr(sQt0)}, 18
s_lshl_b32 {sr(sT1)}, {sr(sH)}, 13
s_add_u32 {sr(sT0)}, {sr(sT0)}, {sr(sT1)}
s_add_u32 {sr(sT0)}, {sr(sT0)}, {WS_CTX}
s_nop 7""")
    for s in range(2):
        for d in range(4):
            b = vS + ((s * 4 + d) % 4) * 16; pk = vP + ((s * 4 + d) % 4) * 8
            for r in range(16): K(f"v_accvgpr_read_b32 {vr(b+r)}, {ar(aO+(s*4+d)*16+r)}")
            for r in range(16): K(f"v_mul_f32 {vr(b+r)}, {vr(vL+s)}, {vr(b+r)}")
            for r in range(8): K(f"v_cvt_pk_bf16_f32 {vr(pk+r)}, {vr(b+2*r)}, {vr(b+2*r+1)}")
            for t in range(2):
                K(f"buffer_store_dwordx4 {vr(pk+4*t,4)}, {vr(vL16)}, {sr(S_WS,4)}, {sr(sT0)} offen offset:{(d%2)*2048+t*1024}")
            if d % 2 == 1: K(f"s_add_u32 {sr(sT0)}, {sr(sT0)}, {4096 if d == 1 else 262144-4096}")

def fallbackB(K):
    def loadK():
        for ds in range(8):
            K(f"buffer_load_dwordx4 {ar(aK+4*ds,4)}, {vr(vL16)}, {sr(S_WS,4)}, {sr(sAoff)} offen offset:{(ds%4)*1024}")
            if ds % 4 == 3: K(f"s_add_u32 {sr(sAoff)}, {sr(sAoff)}, 4096")
    def masks(nm):
        K(f"s_cmp_lg_u32 {sr(sU)}, {sr(sQt0)}\ns_cbranch_scc1 {nm}_a")
        K.extend(tri(0)); K.label(nm + "_a")
        K(f"s_cmp_le_u32 {sr(sU)}, {sr(sQt0)}\ns_cbranch_scc1 {nm}_b")
        for r in range(16): K(f"v_mov_b32 {vr(vNegM+r)}, {vr(vNinf)}")
        K.extend(tri(1)); K.label(nm + "_b"); K("s_nop 1")
    for r in range(32): K(f"v_mov_b32 {vr(vNegM+r)}, 0")
    K(f"v_mov_b32 {vr(vM)}, {vr(vNinf)}\nv_mov_b32 {vr(vM+1)}, {vr(vNinf)}\ns_mov_b32 {sr(sU)}, 0\ns_mov_b32 {sr(sAoff)}, {sr(sKVbase)}")
    K.label("fb1")
    loadK(); K(f"s_add_u32 {sr(sAoff)}, {sr(sAoff)}, 8192")
    masks("fb1m"); K("s_waitcnt vmcnt(0)")
    K.extend(X(0)); K("s_nop 15")
    for s in range(2): rowmax(K, range(Sv(0, s), Sv(0, s) + 16), vM + s, init=True)
    K(f"s_add_u32 {sr(sU)}, {sr(sU)}, 1\ns_add_u32 {sr(sT0)}, {sr(sQt0)}, 2\ns_cmp_lt_u32 {sr(sU)}, {sr(sT0)}\ns_cbranch_scc1 fb1")
    for s in range(2):
        xhalf(K, vM + s, "v_max_f32")
        for r in range(16): K(f"v_sub_f32 {vr(vNegM+s*16+r)}, 0, {vr(vM+s)}")
    for i in range(128): K(f"v_accvgpr_write_b32 {ar(aO+i)}, 0")
    K(f"v_mov_b32 {vr(vL)}, 0\nv_mov_b32 {vr(vL+1)}, 0\ns_mov_b32 {sr(sU)}, 0\ns_mov_b32 {sr(sAoff)}, {sr(sKVbase)}")
    K.label("fb2")
    loadK()
    for i in range(8):
        K(f"buffer_load_dwordx4 {ar(aV+4*i,4)}, {vr(vL16)}, {sr(S_WS,4)}, {sr(sAoff)} offen offset:{(i%4)*1024}")
        if i % 4 == 3: K(f"s_add_u32 {sr(sAoff)}, {sr(sAoff)}, 4096")
    masks("fb2m"); K("s_waitcnt vmcnt(0)")
    K.extend(X(0)); K("s_nop 15")
    for t, c in softmax_ops(0): K(t)
    K("s_nop 1"); K.extend(Y(0))
    K(f"s_add_u32 {sr(sU)}, {sr(sU)}, 1\ns_add_u32 {sr(sT0)}, {sr(sQt0)}, 2\ns_cmp_lt_u32 {sr(sU)}, {sr(sT0)}\ns_cbranch_scc1 fb2")
    for s in range(2): xhalf(K, vL + s, "v_add_f32")

xO = 16; xQ = 80; xS = 112; xP = 144; xB = 160
vKL = 7
def attnA(K, n, D):
    nm = f"att{n}"
    KB = lambda b: b * 16
    log = []
    def loads(b, u):
        K(f"buffer_load_dwordx4 {ar(KB(b),4)}, {vr(vL16)}, {sr(S_WS,4)}, {sr(sAoff)} offen")
        K(f"buffer_load_dword {ar(KB(b)+4)}, {vr(vKL)}, {sr(S_WS,4)}, {sr(sAoff)} offen offset:3072")
        K(f"buffer_load_dwordx4 {ar(KB(b)+8,4)}, {vr(vL16)}, {sr(S_WS,4)}, {sr(sAoff)} offen offset:1024")
        K(f"buffer_load_dwordx4 {ar(KB(b)+12,4)}, {vr(vL16)}, {sr(S_WS,4)}, {sr(sAoff)} offen offset:2048")
        K(f"s_add_u32 {sr(sAoff)}, {sr(sAoff)}, 4096")
    def QK(b, s, p):
        d = vr(xS + p * 16, 16)
        return [f"v_mfma_f32_32x32x16_bf16 {d}, {ar(KB(b),4)}, {vr(xQ+s*8,4)}, 0",
                f"v_mfma_f32_32x32x16_bf16 {d}, {ar(KB(b)+4,4)}, {vr(xQ+s*8+4,4)}, {d}"]
    def PV(b, s, p):
        o = vr(xO + s * 16, 16)
        return [f"v_mfma_f32_32x32x16_bf16 {o}, {ar(KB(b)+8+4*t,4)}, {vr(xP+p*8+4*t,4)}, {o}" for t in range(2)]
    def SM(p):
        g = []
        for q in range(4):
            t = [f"v_exp_f32 {vr(xS+p*16+4*q+r)}, {vr(xS+p*16+4*q+r)}" for r in range(4)]
            t += [f"v_cvt_pk_bf16_f32 {vr(xP+p*8+2*q+r)}, {vr(xS+p*16+4*q+2*r)}, {vr(xS+p*16+4*q+2*r+1)}" for r in range(2)]
            g.append(t)
        return g
    K.label(nm)
    K(f"""s_lshl_b32 {sr(sT0)}, {sr(sH)}, 6
s_add_u32 {sr(sT0)}, {sr(sT0)}, {sr(sQt0)}
s_lshl_b32 {sr(sT0)}, {sr(sT0)}, 11
s_add_u32 {sr(sT0)}, {sr(sT0)}, {WS_QA}""")
    for s in range(n):
        K(f"buffer_load_dwordx4 {vr(xQ+s*8,4)}, {vr(vL16)}, {sr(S_WS,4)}, {sr(sT0)} offen")
        K(f"buffer_load_dword {vr(xQ+s*8+4)}, {vr(vKL)}, {sr(S_WS,4)}, {sr(sT0)} offen offset:1024")
        K(f"s_add_u32 {sr(sT0)}, {sr(sT0)}, 2048")
    K(f"s_mov_b32 {sr(sAoff)}, {sr(sKVbase)}")
    loads(0, 0)
    for b in range(D):
        K(f"v_accvgpr_write_b32 {ar(KB(b)+5)}, {vr(vT+1)}\nv_accvgpr_write_b32 {ar(KB(b)+6)}, 0\nv_accvgpr_write_b32 {ar(KB(b)+7)}, 0")
    for s in range(n):
        for r in range(5, 8): K(f"v_mov_b32 {vr(xQ+s*8+r)}, 0")
    K("s_waitcnt vmcnt(4)")
    for s in range(n): K(f"v_cndmask_b32 {vr(xQ+s*8+4)}, {vr(xQ+s*8+4)}, 0, {sr(sTri+32,2)}")
    K("s_waitcnt vmcnt(0)")
    for s in range(n):
        K.extend(QK(0, s, 0)); K("s_nop 15")
        rowmax(K, range(xS, xS + 16), vM); xhalf(K, vM, "v_max_f32")
        K(f"v_sub_f32 {vr(vM)}, 0, {vr(vM)}\nv_cvt_pk_bf16_f32 {vr(vM)}, {vr(vM)}, 0")
        K(f"v_cndmask_b32 {vr(xQ+s*8+5)}, {vr(vM)}, 0, {sr(sTri+32,2)}")
    K.label(nm + "_run")
    K(f"s_mov_b32 {sr(sAoff)}, {sr(sKVbase)}")
    for b in range(D - 1): loads(b, b)
    for r in range(16 * n): K(f"v_mov_b32 {vr(xO+r)}, 0")
    for r in range(16): K(f"v_mov_b32 {vr(xP+r)}, 0")
    for r in range(8): K(f"v_accvgpr_write_b32 {ar(KB(D-1)+8+r)}, 0")
    K(f"s_mov_b32 {sr(sU)}, {64 // D}")
    K(f"s_waitcnt vmcnt({4*(D-2)})")
    K.extend(QK(0, 0, 0))
    K("s_nop 13")
    K.label(nm + "_loop")
    T = D * n
    for t in range(T):
        u, s = divmod(t, n); p = t & 1
        un, sn = divmod(t + 1, n); up, sp = divmod(t - 1 + T, n)
        sm = SM(p)
        if sn == 0: K(f"s_waitcnt vmcnt({4*(D-2) if n > 1 else 4*(D-3)})")
        ms = QK(un % D, sn, p ^ 1) + PV(up % D, sp, p ^ 1)
        for q in range(4):
            K(ms[q]); K.extend(sm[q])
        if s == 0: loads((u - 1) % D, None)
    assert T % 2 == 0 or True
    K(f"s_sub_u32 {sr(sU)}, {sr(sU)}, 1\ns_cmp_lg_u32 {sr(sU)}, 0\ns_cbranch_scc1 {nm}_loop")
    K("s_nop 1")
    K.extend(PV((D - 1), n - 1, (T - 1) & 1))
    K("s_nop 15\ns_waitcnt vmcnt(0)")
    K(f"s_cmp_lg_u32 {sr(sFB)}, 0\ns_cbranch_scc1 {nm}_ok")
    check_l(K, [xO + s * 16 + 10 for s in range(n)], nm + "_ok")
    K(f"s_mov_b32 {sr(sFB)}, 1\ns_mov_b32 {sr(sAoff)}, {sr(sKVbase)}\ns_mov_b32 {sr(sU)}, 64")
    for s in range(n): K(f"v_mov_b32 {vr(xQ+s*8+5)}, 0\nv_mov_b32 {vr(xO+s)}, {vr(vNinf)}")
    K.label(nm + "_fb")
    loads(0, None); K("s_waitcnt vmcnt(0)")
    for s in range(n):
        K.extend(QK(0, s, 0)); K("s_nop 15"); rowmax(K, range(xS, xS + 16), xO + s, init=True)
    K(f"s_sub_u32 {sr(sU)}, {sr(sU)}, 1\ns_cmp_lg_u32 {sr(sU)}, 0\ns_cbranch_scc1 {nm}_fb")
    for s in range(n):
        xhalf(K, xO + s, "v_max_f32")
        K(f"v_sub_f32 {vr(vM)}, 0, {vr(xO+s)}\nv_cvt_pk_bf16_f32 {vr(vM)}, {vr(vM)}, 0")
        K(f"v_cndmask_b32 {vr(xQ+s*8+5)}, {vr(vM)}, 0, {sr(sTri+32,2)}")
    K(f"s_branch {nm}_run")
    K.label(nm + "_ok")
    K(f"""s_mul_i32 {sr(sT0)}, {sr(sQt0)}, {36*1024}
s_add_u32 {sr(sT0)}, {sr(sT0)}, {WS_OAF}
s_lshl_b32 {sr(sT1)}, {sr(sH)}, 10
s_add_u32 {sr(sT1)}, {sr(sT1)}, {sr(sT0)}
s_lshr_b32 {sr(sT2)}, {sr(sH)}, 3
s_lshl_b32 {sr(sT2)}, {sr(sT2)}, 10
s_add_u32 {sr(sT0)}, {sr(sT0)}, {sr(sT2)}
s_bfe_u32 {sr(sT2)}, {sr(sH)}, 0x10002
s_lshl_b32 {sr(sT2)}, {sr(sT2)}, 9
s_add_u32 {sr(sT0)}, {sr(sT0)}, {sr(sT2)}
s_and_b32 {sr(sT2)}, {sr(sH)}, 3
s_lshl_b32 {sr(sT2)}, {sr(sT2)}, 2
s_add_u32 {sr(sT0)}, {sr(sT0)}, {sr(sT2)}
s_add_u32 {sr(sT0)}, {sr(sT0)}, {32*1024}
v_mov_b32 {vr(vT+2)}, 0x80000000
v_cndmask_b32 {vr(vT+2)}, {vr(vL16)}, {vr(vT+2)}, {sr(sTri+32,2)}""")
    for s in range(n):
        o = xO + s * 16
        K(f"v_rcp_f32 {vr(o+10)}, {vr(o+10)}\ns_nop 0")
        for r in range(10): K(f"v_mul_f32 {vr(o+r)}, {vr(o+10)}, {vr(o+r)}")
        for r in range(5): K(f"v_cvt_pk_bf16_f32 {vr(xS+s*8+r)}, {vr(o+2*r)}, {vr(o+2*r+1)}")
        K(f"buffer_store_dwordx4 {vr(xS+s*8,4)}, {vr(vL16)}, {sr(S_WS,4)}, {sr(sT1)} offen")
        K(f"buffer_store_dword {vr(xS+s*8+4)}, {vr(vT+2)}, {sr(S_WS,4)}, {sr(sT0)} offen")
        K(f"s_add_u32 {sr(sT0)}, {sr(sT0)}, {36*1024}\ns_add_u32 {sr(sT1)}, {sr(sT1)}, {36*1024}")
    K("s_branch k2_wo")

def wo_job(K):
    vW = 16; vWl = 17; vTr = 18; R0 = 32
    K.label("k2_wo")
    stamp(K, 4, S_WS, 1 << 17)
    K(f"""s_mul_hi_u32 {sr(sT0)}, {sr(sJ)}, {(1<<32)//3+1}
s_mul_i32 {sr(sT1)}, {sr(sT0)}, 3
s_cmp_lg_u32 {sr(sT1)}, {sr(sJ)}
s_cbranch_scc1 k2_end
s_lshl_b32 {sr(sGw)}, {sr(sT0)}, 5
s_add_u32 {sr(sGw)}, {sr(sGw)}, {sr(sH)}
s_lshl_b32 {sr(sGw)}, {sr(sGw)}, 2
s_add_u32 {sr(sGw)}, {sr(sGw)}, {sr(sWave)}
v_lshrrev_b32 v20, 2, {vr(vLane)}
v_mul_u32_u24 v21, 1152, v20
v_and_b32 v22, 3, {vr(vLane)}
v_lshlrev_b32 v22, 4, v22
v_add_u32 {vr(vW)}, v21, v22
v_bfe_u32 v23, v20, 2, 1
v_lshlrev_b32 v23, 2, v23
v_lshrrev_b32 v24, 3, v20
v_lshlrev_b32 v24, 1, v24
v_add_u32 v23, v23, v24
v_bfe_u32 v24, v20, 1, 1
v_add_u32 v23, v23, v24
v_mul_u32_u24 v23, 18, v23
v_and_b32 v24, 1, v20
v_add_u32 v23, v23, v24
v_add_u32 v23, 16, v23
v_mul_u32_u24 v23, 1152, v23
v_add_u32 {vr(vWl)}, v23, v22
v_lshrrev_b32 v20, 5, {vr(vLane)}
v_lshlrev_b32 {vr(vTr)}, 8, v20
v_bfe_u32 v21, {vr(vLane)}, 2, 2
v_lshlrev_b32 v21, 6, v21
v_add_u32 {vr(vTr)}, {vr(vTr)}, v21
v_bfe_u32 v21, {vr(vLane)}, 4, 1
v_lshlrev_b32 v21, 5, v21
v_add_u32 {vr(vTr)}, {vr(vTr)}, v21
v_and_b32 v21, 3, {vr(vLane)}
v_lshlrev_b32 v21, 3, v21
v_add_u32 {vr(vTr)}, {vr(vTr)}, v21
v_add_u32 {vr(vTr)}, {sr(sJunk)}, {vr(vTr)}""")
    M18 = (1 << 32) // 18 + 1
    dsts = list(range(sTri, sTri + 8))
    jobs = [('B', i) for i in range(12)] + [('M', 0), ('M', 1), ('L', 0)]
    for batch in (jobs[:8], jobs[8:]):
        for i, (ty, q) in enumerate(batch):
            mul = {'B': 12, 'M': 2, 'L': 1}[ty]
            K(f"s_mul_i32 {sr(sT0)}, {sr(sGw)}, {mul}\ns_add_u32 {sr(sT0)}, {sr(sT0)}, {q}")
            K(f"s_mul_hi_u32 {sr(sT1)}, {sr(sT0)}, {M18}\ns_mul_i32 {sr(sT2)}, {sr(sT1)}, 18\ns_sub_u32 {sr(sT2)}, {sr(sT0)}, {sr(sT2)}")
            rm = {'B': 16, 'M': 18, 'L': 144}[ty]
            d = dsts[i]
            K(f"s_mul_i32 {sr(d)}, {sr(sT2)}, {256*1024 if ty == 'B' else 36*1024}")
            K(f"s_lshl_b32 {sr(sT3)}, {sr(sT1)}, 10\ns_add_u32 {sr(d)}, {sr(d)}, {sr(sT3)}")
            K(f"s_add_u32 {sr(d)}, {sr(d)}, {WS_WOF if ty == 'B' else WS_WOFA + (32*1024 if ty == 'L' else 0)}")
            K(f"s_mul_i32 {sr(sT0)}, {sr(sT1)}, {rm*1152}\ns_lshl_b32 {sr(sT3)}, {sr(sT2)}, 6\ns_add_u32 m0, {sr(sJunk)}, {i*1024}\ns_add_u32 {sr(sT0)}, {sr(sT0)}, {sr(sT3)}")
            K(f"buffer_load_dwordx4 {vr(vWl if ty == 'L' else vW)}, {sr(S_W2 if ty == 'B' else S_W1,4)}, {sr(sT0)} offen lds")
        K("s_waitcnt vmcnt(0)")
        for i in range(len(batch)):
            K(f"ds_read_b64_tr_b16 {vr(R0+4*i,2)}, {vr(vTr)} offset:{i*1024}")
            K(f"ds_read_b64_tr_b16 {vr(R0+4*i+2,2)}, {vr(vTr)} offset:{i*1024+512}")
            if i == 5: K("s_waitcnt lgkmcnt(4)")
        K("s_waitcnt lgkmcnt(0)")
        for i, job in enumerate(batch):
            if job == ('M', 0): K(f"s_cmp_ge_u32 {sr(sGw)}, 288\ns_cbranch_scc1 k2_end")
            if job == ('L', 0): K(f"s_cmp_ge_u32 {sr(sGw)}, 72\ns_cbranch_scc1 k2_end")
            K(f"buffer_store_dwordx4 {vr(R0+4*i,4)}, {vr(vL16)}, {sr(S_WS,4)}, {sr(dsts[i])} offen")
        R0 += 32

def srd(K, d, p, size):
    K(f"s_mov_b32 {sr(d)}, {sr(p)}\ns_mov_b32 {sr(d+1)}, {sr(p+1)}\ns_mov_b32 {sr(d+2)}, {size}\ns_mov_b32 {sr(d+3)}, 0x20000")

def build():
    K = Kernel("attn_kernel"); K.force_vgpr = 512
    K(f"""s_cmp_ge_u32 s2, 256
s_cbranch_scc1 k2_exit
s_load_dwordx2 {sr(sPtr,2)}, s[0:1], {KA_AWO}
s_load_dwordx2 {sr(sPtr+2,2)}, s[0:1], {KA_WO}
s_load_dwordx2 {sr(sPtr+4,2)}, s[0:1], {KA_WS}
v_and_b32 {vr(vLane)}, 63, v0
v_lshrrev_b32 {vr(vT)}, 6, v0
v_lshlrev_b32 {vr(vL16)}, 4, {vr(vLane)}
s_and_b32 {sr(sT0)}, s2, 7
s_lshr_b32 {sr(sT1)}, s2, 3
v_readfirstlane_b32 {sr(sWave)}, {vr(vT)}
s_lshr_b32 {sr(sJ)}, {sr(sT1)}, 2
s_sub_u32 {sr(sJ)}, 7, {sr(sJ)}
s_and_b32 {sr(sT1)}, {sr(sT1)}, 3
s_lshl_b32 {sr(sH)}, {sr(sT0)}, 2
s_add_u32 {sr(sH)}, {sr(sH)}, {sr(sT1)}
v_mov_b32 {vr(vNinf)}, 0xff800000
s_mov_b32 {sr(sLo)}, {f32bits(2.0**-64)}
s_mov_b32 {sr(sHi)}, {f32bits(2.0**64)}
v_and_b32 {vr(vD)}, 31, {vr(vLane)}
v_lshlrev_b32 {vr(vKL)}, 2, {vr(vD)}
v_lshrrev_b32 {vr(vT)}, 5, {vr(vLane)}
v_lshlrev_b32 {vr(vT)}, 2, {vr(vT)}
v_sub_u32 {vr(vD)}, {vr(vD)}, {vr(vT)}""")
    for r in range(16): K(f"v_cmp_gt_i32 {sr(sTri+2*r,2)}, {8*(r>>2)+(r&3)}, {vr(vD)}")
    K(f"v_cmp_lt_u32 {sr(sTri+32,2)}, 31, {vr(vLane)}")
    K("s_waitcnt lgkmcnt(0)")
    srd(K, S_WS, sPtr + 4, WS_SIZE); srd(K, S_KV, sPtr + 4, WS_SIZE)
    srd(K, S_W1, sPtr, SZ_AWO); srd(K, S_W2, sPtr + 2, SZ_WO)
    stamp(K, 0, S_WS, 1 << 17)
    if STAMP: K("s_waitcnt vmcnt(0)")
    attnB(K)
    stamp(K, 3, S_WS, 1 << 17)
    K(f"""s_lshl_b32 {sr(sT0)}, {sr(sJ)}, 2
s_lshr_b32 {sr(sN)}, 0x00122344, {sr(sT0)}
s_and_b32 {sr(sN)}, {sr(sN)}, 15
s_cmp_eq_u32 {sr(sN)}, 0
s_cbranch_scc1 k2_wo
s_lshr_b32 {sr(sQt0)}, 0x00fdb840, {sr(sT0)}
s_and_b32 {sr(sQt0)}, {sr(sQt0)}, 15
s_lshl_b32 {sr(sQt0)}, {sr(sQt0)}, 2
s_mul_i32 {sr(sT1)}, {sr(sN)}, {sr(sWave)}
s_add_u32 {sr(sQt0)}, {sr(sQt0)}, {sr(sT1)}
s_lshl_b32 {sr(sKVbase)}, {sr(sH)}, 18
s_add_u32 {sr(sKVbase)}, {sr(sKVbase)}, {WS_KVA}
s_mov_b32 {sr(sFB)}, 0
v_mov_b32 {vr(vT+1)}, 0x3f80
s_cmp_eq_u32 {sr(sN)}, 4
s_cbranch_scc1 att4
s_cmp_eq_u32 {sr(sN)}, 3
s_cbranch_scc1 att3
s_cmp_eq_u32 {sr(sN)}, 2
s_cbranch_scc1 att2""")
    attnA(K, 1, 8); attnA(K, 2, 4); attnA(K, 3, 4); attnA(K, 4, 4)
    wo_job(K)
    K.label("k2_end")
    stamp(K, 5, S_WS, 1 << 17)
    K.label("k2_exit")
    K("s_endpgm")
    return K
```

```python
from dsl import *
from layout import *

S_WS = 8; S_OUT = 12
sWave = 16; sQb = 17; sMc = 18; sT0 = 19; sT1 = 20; sT2 = 21; sC = 22; sW = 24; sN = 28; sOut = 29; sCnt = 30; sPtr = 32
vLane = 1; vL16 = 2; vWr = 3; vRd = 4; vOut = 5; vAcc = 16; vR = 112; vPk = 144
D = 8
def frag(b, i): return ar((b * 5 + i) * 4, 4)
def loads(K, b, off):
    for s in range(2): K(f"buffer_load_dwordx4 {frag(b, s)}, {vr(vL16)}, {sr(S_WS,4)}, {sr(sC+s)} offen offset:{off}")
    for m in range(3): K(f"buffer_load_dwordx4 {frag(b, 2+m)}, {vr(vL16)}, {sr(S_WS,4)}, {sr(sW+m)} offen offset:{off}")
def adv(K):
    for r in (sC, sC + 1, sW, sW + 1, sW + 2): K(f"s_add_u32 {sr(r)}, {sr(r)}, 4096")
def mf(b, first):
    out = []
    for s in range(2):
        for m in range(3):
            a = vr(vAcc + (s * 3 + m) * 16, 16)
            out.append(f"v_mfma_f32_32x32x16_bf16 {a}, {frag(b, 2+m)}, {frag(b, s)}, {'0' if first else a}")
    return out
def reduce_store(K):
    K("s_nop 15")
    for blk in range(6):
        for a in range(4):
            K(f"ds_write_b128 {vr(vWr)}, {vr(vAcc+blk*16+a*4,4)} offset:{(blk*4+a)*1024}")
    K("s_waitcnt lgkmcnt(0)\ns_barrier")
    for i in range(3):
        for a in range(2):
            for w in range(4):
                if w < 2: K(f"ds_read_b128 {vr(vAcc+i*32+(a*4+w)*4,4)}, {vr(vRd)} offset:{w*24576 + i*2048 + a*1024}")
                else: K(f"ds_read_b128 {vr(vAcc+i*32+(a*4+w)*4,4)}, {vr(vRd+2)} offset:{(w-2)*24576 + i*2048 + a*1024}")
        if i: K("s_waitcnt lgkmcnt(8)")
    for i in range(3):
        K(f"s_waitcnt lgkmcnt({8 if i == 0 else 0})")
        for a in range(2):
            b = vAcc + i * 32 + a * 16
            for r in range(4):
                K(f"v_add_f32 {vr(b+r)}, {vr(b+r)}, {vr(b+4+r)}\nv_add_f32 {vr(b+8+r)}, {vr(b+8+r)}, {vr(b+12+r)}")
            for r in range(4): K(f"v_add_f32 {vr(b+r)}, {vr(b+r)}, {vr(b+8+r)}")
            for r in range(2): K(f"v_cvt_pk_bf16_f32 {vr(vPk+i*4+a*2+r)}, {vr(b+2*r)}, {vr(b+2*r+1)}")
        K(f"s_nop 1\nv_permlane32_swap_b32 {vr(vPk+i*4)}, {vr(vPk+i*4+2)}\nv_permlane32_swap_b32 {vr(vPk+i*4+1)}, {vr(vPk+i*4+3)}")
        K(f"""s_mul_i32 {sr(sT0)}, {sr(sWave)}, 3
s_add_u32 {sr(sT0)}, {sr(sT0)}, {i}
s_cmp_ge_u32 {sr(sT0)}, 6
s_cselect_b32 {sr(sT1)}, {32*2304 - 6*32}, 0
s_lshl_b32 {sr(sT0)}, {sr(sT0)}, 5
s_add_u32 {sr(sT0)}, {sr(sT0)}, {sr(sT1)}
s_add_u32 {sr(sT0)}, {sr(sT0)}, {sr(sOut)}
buffer_store_dwordx4 {vr(vPk+i*4,4)}, {vr(vOut)}, {sr(S_OUT,4)}, {sr(sT0)} offen""")

def srd(K, d, p, size):
    K(f"s_mov_b32 {sr(d)}, {sr(p)}\ns_mov_b32 {sr(d+1)}, {sr(p+1)}\ns_mov_b32 {sr(d+2)}, {size}\ns_mov_b32 {sr(d+3)}, 0x20000")

def build():
    K = Kernel("oproj_kernel"); K.force_vgpr = 512
    K(f"""s_cmp_ge_u32 s2, 256
s_cbranch_scc1 k3_exit
s_load_dwordx2 {sr(sPtr,2)}, s[0:1], {KA_OUT}
s_load_dwordx2 {sr(sPtr+2,2)}, s[0:1], {KA_WS}
v_and_b32 {vr(vLane)}, 63, v0
v_lshrrev_b32 v6, 6, v0
v_lshlrev_b32 {vr(vL16)}, 4, {vr(vLane)}
s_and_b32 {sr(sT0)}, s2, 7
s_lshr_b32 {sr(sT1)}, s2, 3
v_readfirstlane_b32 {sr(sWave)}, v6
s_and_b32 {sr(sQb)}, {sr(sT1)}, 3
s_lshl_b32 {sr(sT0)}, {sr(sT0)}, 2
s_add_u32 {sr(sQb)}, {sr(sQb)}, {sr(sT0)}
s_lshr_b32 {sr(sMc)}, {sr(sT1)}, 2
v_mul_u32_u24 v7, 24576, v6
v_add_u32 {vr(vWr)}, v7, {vr(vL16)}
v_mul_u32_u24 v7, 6144, v6
v_add_u32 {vr(vRd)}, v7, {vr(vL16)}
v_add_u32 {vr(vRd+2)}, 49152, {vr(vRd)}
v_and_b32 v7, 31, {vr(vLane)}
v_mul_u32_u24 v7, 2304, v7
v_lshrrev_b32 v8, 5, {vr(vLane)}
v_lshlrev_b32 v8, 4, v8
v_add_u32 {vr(vOut)}, v7, v8
s_mul_i32 {sr(sOut)}, {sr(sQb)}, {64*2304}
s_waitcnt lgkmcnt(0)""")
    srd(K, S_WS, sPtr + 2, WS_SIZE); srd(K, S_OUT, sPtr, SZ_OUT)
    stamp(K, 0, S_WS, 2 << 17)
    if STAMP: K("s_waitcnt vmcnt(0)")
    K(f"""s_cmp_ge_u32 {sr(sMc)}, 6
s_cbranch_scc1 k3_A
s_lshl_b32 {sr(sT0)}, {sr(sWave)}, 16
s_lshl_b32 {sr(sC)}, {sr(sQb)}, 19
s_add_u32 {sr(sC)}, {sr(sC)}, {sr(sT0)}
s_add_u32 {sr(sC)}, {sr(sC)}, {WS_CTX}
s_add_u32 {sr(sC+1)}, {sr(sC)}, 262144
s_mul_i32 {sr(sW)}, {sr(sMc)}, {3*262144}
s_add_u32 {sr(sW)}, {sr(sW)}, {sr(sT0)}
s_add_u32 {sr(sW)}, {sr(sW)}, {WS_WOF}
s_add_u32 {sr(sW+1)}, {sr(sW)}, 262144
s_add_u32 {sr(sW+2)}, {sr(sW)}, 524288
s_mul_i32 {sr(sT0)}, {sr(sMc)}, 192
s_add_u32 {sr(sOut)}, {sr(sOut)}, {sr(sT0)}
s_add_u32 {sr(sOut)}, {sr(sOut)}, 1152
s_mov_b32 {sr(sN)}, {64 // D}""")
    for r in range(96): K(f"v_mov_b32 {vr(vAcc+r)}, 0")
    for b in range(D - 1):
        loads(K, b, (b % 4) * 1024)
        if b % 4 == 3: adv(K)
    K.label("k3_loop")
    for b in range(D):
        bb = (b + D - 1) % D
        loads(K, bb, (bb % 4) * 1024)
        if bb % 4 == 3: adv(K)
        K(f"s_waitcnt vmcnt({5*(D-1)})")
        K.extend(mf(b, False))
    K(f"s_sub_u32 {sr(sN)}, {sr(sN)}, 1\ns_cmp_lg_u32 {sr(sN)}, 0\ns_cbranch_scc1 k3_loop")
    stamp(K, 1, S_WS, 2 << 17)
    reduce_store(K)
    K("s_branch k3_end")
    K.label("k3_A")
    K(f"""s_sub_u32 {sr(sMc)}, {sr(sMc)}, 6
s_mul_i32 {sr(sMc)}, {sr(sMc)}, 3
s_mul_i32 {sr(sT0)}, {sr(sMc)}, 192
s_add_u32 {sr(sOut)}, {sr(sOut)}, {sr(sT0)}
s_mov_b32 {sr(sCnt)}, 3""")
    K.label("k3_Aloop")
    K(f"""s_mul_i32 {sr(sT0)}, {sr(sWave)}, {9*1024}
s_mul_i32 {sr(sC)}, {sr(sQb)}, {2*36*1024}
s_add_u32 {sr(sC)}, {sr(sC)}, {sr(sT0)}
s_add_u32 {sr(sC)}, {sr(sC)}, {WS_OAF}
s_add_u32 {sr(sC+1)}, {sr(sC)}, {36*1024}
s_mul_i32 {sr(sW)}, {sr(sMc)}, {3*36*1024}
s_add_u32 {sr(sW)}, {sr(sW)}, {sr(sT0)}
s_add_u32 {sr(sW)}, {sr(sW)}, {WS_WOFA}
s_add_u32 {sr(sW+1)}, {sr(sW)}, {36*1024}
s_add_u32 {sr(sW+2)}, {sr(sW)}, {72*1024}""")
    for b in range(9):
        loads(K, b, (b % 4) * 1024)
        if b % 4 == 3: adv(K)
    for b in range(9):
        K(f"s_waitcnt vmcnt({5*(8-b)})")
        K.extend(mf(b, b == 0))
    stamp(K, 1, S_WS, 2 << 17)
    reduce_store(K)
    K(f"""s_barrier
s_add_u32 {sr(sMc)}, {sr(sMc)}, 1
s_add_u32 {sr(sOut)}, {sr(sOut)}, 192
s_sub_u32 {sr(sCnt)}, {sr(sCnt)}, 1
s_cmp_lg_u32 {sr(sCnt)}, 0
s_cbranch_scc1 k3_Aloop""")
    K.label("k3_end")
    stamp(K, 2, S_WS, 2 << 17)
    K.label("k3_exit")
    K("s_endpgm")
    return K
```

```python
import math, struct
import os
MB = 1 << 20
WS0 = int(os.environ.get('WS0', '0')) * MB
WS_QB   = WS0 + 0
WS_KVB  = WS0 + 16 * MB
WS_CTX  = WS0 + 48 * MB
WS_QA   = WS0 + 92 * MB
WS_KVA  = WS0 + 100 * MB
WS_OAF  = WS0 + 76 * MB
WS_WOF  = WS0 + 79 * MB
WS_WOFA = WS0 + 84 * MB
WS_SIZE = 256 * MB
def f32bits(x): return struct.unpack('<I', struct.pack('<f', x))[0]
LOG2E = 1.4426950408889634
C_B = 128 ** -0.5 * LOG2E
C_A = 18 ** -0.5 * LOG2E
KA_AX, KA_AWQKV, KA_AWO, KA_BX, KA_CKV, KA_WQ, KA_WUK, KA_WUV, KA_WO, KA_OUT, KA_DBG, KA_WS = [8 * i for i in range(12)]
SZ_AX = 2048 * 576 * 2; SZ_AWQKV = 576 * 1728 * 2; SZ_AWO = 576 * 576 * 2; SZ_BX = SZ_AX
SZ_CKV = 2048 * 512 * 2; SZ_WQ = 576 * 4096 * 2; SZ_WUK = 512 * 4096 * 2; SZ_WO = 4096 * 576 * 2
SZ_OUT = 2048 * 1152 * 2
WS_XCH  = WS0 + 86 * MB
```

```python
import sys
from dsl import *
import k1
HDR = open('concat_heads__softmax_full_mha__compressed_kv_cla__prompt.s.ref').read().split('; Override launch')[0]
def main(which, out):
    ks = []; hdr = HDR
    if '1' in which:
        ks.append(k1.build()); hdr += "; @launch kernel=proj_kernel grid=(256,1,1) block=(256,1,1) lds=163840\n"
    if '2' in which:
        import k2
        ks.append(k2.build()); hdr += "; @launch kernel=attn_kernel grid=(256,1,1) block=(256,1,1) lds=163840\n"
    if '3' in which:
        import k3
        ks.append(k3.build()); hdr += "; @launch kernel=oproj_kernel grid=(256,1,1) block=(256,1,1) lds=163840\n"
    return finish(ks, hdr, out)
if __name__ == '__main__':
    main(sys.argv[1], sys.argv[2])
```

```python
import re, sys
sys.setrecursionlimit(100000)

def parse_regs(tok):
    tok = tok.strip()
    neg = tok.lstrip('-')
    m = re.fullmatch(r'abs\((.*)\)', neg)
    if m: neg = m.group(1)
    m = re.fullmatch(r'\|(.*)\|', neg)
    if m: neg = m.group(1)
    m = re.fullmatch(r'([vas])(\d+)', neg)
    if m: return {(m.group(1), int(m.group(2)))}
    m = re.fullmatch(r'([vas])\[(\d+):(\d+)\]', neg)
    if m: return {(m.group(1), i) for i in range(int(m.group(2)), int(m.group(3)) + 1)}
    if neg in ('vcc', 'vcc_lo', 'vcc_hi'): return {('vcc', 0)}
    if neg in ('exec', 'exec_lo', 'exec_hi'): return {('exec', 0)}
    if neg == 'm0': return {('m0', 0)}
    return set()

TRANS = ('v_exp_f32', 'v_log_f32', 'v_rcp_f32', 'v_rsq_f32', 'v_sqrt_f32', 'v_sin_f32', 'v_cos_f32')

class Ins:
    def __init__(self, text):
        self.text = text
        t = text.split(';')[0].strip()
        self.label = None
        if t.endswith(':'):
            self.label = t[:-1]; self.mn = None; return
        parts = t.split(None, 1)
        self.mn = mn = parts[0]
        rest = parts[1] if len(parts) > 1 else ''
        ops = [x.strip() for x in rest.split(',')] if rest else []
        mods = []
        if ops:
            last = ops[-1].split()
            if last:
                ops[-1] = last[0]; mods = last[1:]
        self.ops, self.mods = ops, mods
        R = lambda i: parse_regs(ops[i]) if i < len(ops) else set()
        self.w = set(); self.r = set()
        self.kind = 'other'
        self.srcC = set(); self.srcAB = set(); self.addr = set(); self.data = set()
        self.target = None
        base = re.sub(r'_e(32|64)$', '', mn)
        self.base = base
        if mn.startswith('v_mfma'):
            self.kind = 'mfma'; self.w = R(0); self.srcAB = R(1) | R(2); self.srcC = R(3)
            self.r = self.srcAB | self.srcC
            self.passes = 8 if '32x32x16' in mn else 4
        elif mn.startswith('v_'):
            self.kind = 'valu'
            if base.startswith('v_cmp'):
                self.w = R(0); self.r = set().union(*[R(i) for i in range(1, len(ops))])
                if base.startswith('v_cmpx'): self.w |= {('exec', 0)}
            elif base.startswith('v_permlane32_swap') or base.startswith('v_permlane16_swap'):
                self.w = R(0) | R(1); self.r = R(0) | R(1)
            elif '_co_' in base:
                self.w = R(0) | R(1); self.r = set().union(*[R(i) for i in range(2, len(ops))])
            else:
                self.w = R(0); self.r = set().union(*[R(i) for i in range(1, len(ops))]) if len(ops) > 1 else set()
                if base in ('v_fmac_f32', 'v_writelane_b32') or 'UNUSED_PRESERVE' in t: self.r |= R(0)
                if base == 'v_cndmask_b32' and len(ops) == 3: self.r |= {('vcc', 0)}
            self.trans = base in TRANS
        elif mn.startswith('ds_'):
            self.kind = 'ds'
            if 'read' in mn or 'bpermute' in mn or 'swizzle' in mn:
                self.w = R(0); self.r = set().union(*[R(i) for i in range(1, len(ops))]); self.addr = self.r
            else:
                self.r = set().union(*[R(i) for i in range(len(ops))]); self.addr = R(0); self.data = self.r - self.addr
        elif mn.startswith('buffer_') or mn.startswith('global_'):
            self.kind = 'vmem'
            if mn in ('buffer_wbl2', 'buffer_inv'):
                pass
            elif 'load' in mn:
                if 'lds' in mods or 'load_lds' in mn:
                    self.r = set().union(*[R(i) for i in range(len(ops))]) | {('m0', 0)}; self.dma = True
                else:
                    self.w = R(0); self.r = set().union(*[R(i) for i in range(1, len(ops))])
                    if '; junk' in text: self.junk = self.w; self.w = set()
            elif 'atomic' in mn:
                self.r = set().union(*[R(i) for i in range(len(ops))])
                if 'sc0' in mods: self.w = R(0)
            else:
                self.r = set().union(*[R(i) for i in range(len(ops))])
                self.data = R(0) if mn.startswith('buffer_') else R(1)
        elif mn.startswith('s_'):
            self.kind = 'salu'
            if mn.startswith('s_load') or mn.startswith('s_buffer_load') or mn in ('s_memtime', 's_memrealtime'):
                self.kind = 'smem'; self.w = R(0); self.r = set().union(*[R(i) for i in range(1, len(ops))]) if len(ops) > 1 else set()
            elif mn.startswith('s_cmp') or mn.startswith('s_bitcmp'):
                self.r = R(0) | R(1); self.w = {('scc', 0)}
            elif mn.startswith('s_cbranch') or mn == 's_branch':
                self.kind = 'branch'; self.target = ops[0]
            elif mn in ('s_waitcnt', 's_barrier', 's_nop', 's_endpgm', 's_setprio', 's_sleep'):
                self.kind = mn
            else:
                self.w = R(0); self.r = set().union(*[R(i) for i in range(1, len(ops))]) if len(ops) > 1 else set()
                if 'saveexec' in mn: self.w |= {('exec', 0)}; self.r |= {('exec', 0)}
        self.ws = 1
        if mn == 's_nop': self.ws = int(ops[0], 0) + 1
        if mn == 's_waitcnt':
            self.vm = self.lg = None
            m = re.search(r'vmcnt\((\d+)\)', t); self.vm = int(m.group(1)) if m else None
            m = re.search(r'lgkmcnt\((\d+)\)', t); self.lg = int(m.group(1)) if m else None

def vregs(s): return {x for x in s if x[0] in 'va'}
def sregs(s): return {x for x in s if x[0] in ('s', 'vcc')}

def need(p, c):
    n = 0
    if p.kind == 'valu':
        if c.kind == 'mfma' and vregs(p.w) & c.r: n = max(n, 2)
        if c.kind == 'mfma' and ('exec', 0) in p.w: n = max(n, 4)
        if c.kind == 'valu':
            if p.trans and not c.trans and (p.w & c.r): n = max(n, 1)
            if c.base.startswith('v_permlane') and (vregs(p.w) & c.r): n = max(n, 2)
            if c.base in ('v_readfirstlane_b32', 'v_readlane_b32') and (vregs(p.w) & c.r): n = max(n, 1)
            if sregs(p.w) & c.r: n = max(n, 2)
            if 'dpp' in c.text and (vregs(p.w) & c.r): n = max(n, 2)
            if 'sdwa' in p.text and (p.w & (c.r | c.w)): n = max(n, 1)
        if c.kind == 'vmem' and (sregs(p.w) & c.r): n = max(n, 5)
    if p.kind == 'mfma':
        P = p.passes
        big = {4: 8, 8: 12}[P]
        if c.kind == 'mfma':
            if p.w & c.srcAB: n = max(n, big)
            if p.w & c.srcC:
                if not (p.w == c.srcC and c.passes == P): n = max(n, {4: 6, 8: 10}[P])
            if (p.w & c.w) and not (p.w == c.w): n = max(n, big)
        elif c.kind in ('valu', 'ds', 'vmem'):
            if p.w & (c.r | c.w): n = max(n, big)
            if c.kind == 'valu' and (p.srcC & c.w): n = max(n, {4: 3, 8: 7}[P])
            if c.kind in ('ds', 'vmem') and (p.srcC & c.w): n = max(n, {4: 3, 8: 7}[P])
    if p.kind == 'salu' and ('m0', 0) in p.w and c.kind == 'vmem' and ('m0', 0) in c.r: n = max(n, 1)
    if p.kind in ('vmem', 'ds') and p.data and len(p.data) >= 3 and c.kind in ('valu', 'mfma') and (p.data & c.w): n = max(n, 2)
    return n

class Kernel:
    def __init__(self, name):
        self.name = name; self.ins = []
    def __call__(self, text):
        for line in text.split('\n'):
            line = line.strip()
            if not line or line.startswith(';'): continue
            self.ins.append(Ins(line))
    def label(self, name): self.ins.append(Ins(name + ':'))
    def extend(self, lst):
        for x in lst: self(x)
    def cfg(self):
        ins = self.ins; lab = {x.label: i for i, x in enumerate(ins) if x.label}
        succ = []
        for i, x in enumerate(ins):
            s = []
            if x.label is None and x.mn == 's_endpgm': pass
            elif x.label is None and x.kind == 'branch':
                s.append(lab[x.target])
                if x.mn != 's_branch': s.append(i + 1)
            else: s.append(i + 1)
            succ.append([t for t in s if t < len(ins)])
        return succ
    def check_hazards(self):
        ins = self.ins; succ = self.cfg(); pred = [[] for _ in ins]
        for i, s in enumerate(succ):
            for t in s: pred[t].append(i)
        errs = []; self.deficit = {}
        for i, c in enumerate(ins):
            if c.label or c.kind not in ('valu', 'mfma', 'ds', 'vmem'): continue
            seen = {}
            stack = [(p, 0) for p in pred[i]]
            while stack:
                j, d = stack.pop()
                if seen.get(j, 99) <= d: continue
                seen[j] = d
                p = ins[j]
                if p.label is None:
                    n = need(p, c)
                    if n > d:
                        errs.append(f"HAZARD need {n} have {d}: [{j}] {p.text}  ->  [{i}] {c.text}")
                        self.deficit[i] = max(self.deficit.get(i, 0), n - d)
                    d2 = d + p.ws
                else: d2 = d
                if d2 < 13:
                    for q in pred[j]: stack.append((q, d2))
        return errs
    def auto_nop(self):
        tot = 0
        while self.check_hazards():
            i = min(self.deficit);
            done = -100
            for i in sorted(self.deficit):
                pass
            shift = 0; lastpad = -100
            for i in sorted(self.deficit):
                if i - lastpad < 14: continue
                self.ins.insert(i + shift, Ins(f"s_nop {self.deficit[i] - 1}")); shift += 1; lastpad = i; tot += 1
        return tot
    def check_waits(self, limit=400000):
        ins = self.ins; succ = self.cfg(); errs = set(); seen = set()
        stack = [(0, (), ())]; steps = 0
        while stack:
            i, vm, lg = stack.pop()
            while True:
                key = (i, vm, lg)
                x = ins[i]
                if x.label is not None or (i > 0 and ins[i-1].label is None and ins[i-1].kind == 'branch'):
                    if key in seen: break
                    seen.add(key)
                steps += 1
                if steps > limit * 50: return list(errs) + ["wait check step limit"]
                if x.label is None:
                    touched = x.r | x.w
                    for nm, q in (('vm', vm), ('lgkm', lg)):
                        for ent in q:
                            if ent and (touched & ent):
                                errs.add(f"WAIT({nm}) pending load regs used at [{i}] {x.text}")
                    if x.kind == 'vmem': vm = (vm + (frozenset(x.w),))[-64:]
                    elif x.kind == 'ds': lg = (lg + (frozenset(x.w),))[-16:]
                    elif x.kind == 'smem': lg = lg + (frozenset(x.w), frozenset())
                    elif x.kind == 's_waitcnt':
                        if x.vm is not None: vm = vm[len(vm) - x.vm:] if x.vm and len(vm) > x.vm else (vm if x.vm else ())
                        if x.lg is not None: lg = lg[len(lg) - x.lg:] if x.lg and len(lg) > x.lg else (lg if x.lg else ())
                s = succ[i]
                if not s: break
                for t in s[1:]: stack.append((t, vm, lg))
                i = s[0]
        return sorted(errs)
    def text(self):
        out = []
        for x in self.ins:
            out.append(x.text if x.label else '  ' + x.text)
        return '\n'.join(out) + '\n'
    def maxregs(self):
        mv = ma = ms = -1
        for x in self.ins:
            if x.label: continue
            for k, n in (x.r | x.w | getattr(x, 'junk', set())):
                if k == 'v': mv = max(mv, n)
                elif k == 'a': ma = max(ma, n)
                elif k == 's': ms = max(ms, n)
        return mv, ma, ms

def vr(b, n=1, f='v'):
    return f"{f}{b}" if n == 1 else f"{f}[{b}:{b+n-1}]"
def ar(b, n=1): return vr(b, n, 'a')
def sr(b, n=1): return vr(b, n, 's')

def interleave(mfmas, fillers, budget=24, costs=None):
    out = []; fi = 0; n = len(mfmas)
    rem_cost = sum(f[2] for f in fillers)
    for i, m in enumerate(mfmas):
        out.append(m)
        used = 0
        while fi < len(fillers):
            e, t, c = fillers[fi]
            if e > i: break
            if used + c > budget and used > 0 and i < n - 1: break
            out.append(t); used += c; fi += 1
    assert fi == len(fillers), "unplaced fillers"
    return out

def finish(kernels, header, fname):
    s = header
    s += '.amdgcn_target "amdgcn-amd-amdhsa--gfx950"\n.text\n'
    ok = True
    for k in kernels:
        n = k.auto_nop()
        if n: print(k.name, "padded", n, "hazards")
        e = k.check_hazards() + k.check_waits()
        for x in e[:12]: print(k.name, x)
        if e: ok = False; print(k.name, len(e), "problems")
        s += f".globl {k.name}\n.p2align 8\n.type {k.name},@function\n{k.name}:\n" + k.text()
    s += '.section .rodata,"a"\n'
    for k in kernels:
        mv, ma, ms = k.maxregs()
        acc = ((mv + 1 + 3) // 4) * 4
        if ma >= 0: acc = 256 if getattr(k, 'full', True) else acc
        nfv = acc + ma + 1 if ma >= 0 else mv + 1
        if getattr(k, 'force_vgpr', None): nfv = k.force_vgpr; acc = 256
        s += f""".p2align 6
.amdhsa_kernel {k.name}
  .amdhsa_next_free_vgpr {nfv}
  .amdhsa_next_free_sgpr {max(ms + 1, 16)}
  .amdhsa_accum_offset {acc}
  .amdhsa_group_segment_fixed_size 0
  .amdhsa_kernarg_size 96
  .amdhsa_user_sgpr_count 2
  .amdhsa_user_sgpr_kernarg_segment_ptr 1
  .amdhsa_system_sgpr_workgroup_id_x 1
.end_amdhsa_kernel
"""
        print(f"{k.name}: {sum(1 for x in k.ins if not x.label)} instrs, v{mv} a{ma} s{ms} nfv={nfv} acc={acc}")
    open(fname, 'w').write(s)
    print(fname, len(s), "bytes", "OK" if ok else "WITH PROBLEMS")
    return ok

import os
STAMP = os.environ.get("STAMP", "0") == "1"
WS_STAMP = 120 << 20
def stamp(K, idx, srd, base=0):
    if not STAMP: return
    K(f"""s_memtime s[98:99]
s_memrealtime s[100:101]
s_waitcnt lgkmcnt(0)
v_mov_b32 v14, s98
v_mov_b32 v15, s100
v_lshrrev_b32 v13, 6, v0
v_lshl_add_u32 v13, s2, 2, v13
v_lshlrev_b32 v13, 7, v13
v_add_u32 v13, {WS_STAMP + base + idx*8}, v13
buffer_store_dwordx2 v[14:15], v13, s[{srd}:{srd+3}], 0 offen""")

def dstamp(K, sidx, srd, base):
    if not STAMP or os.environ.get("DST", "0") != "1": return
    K(f"""s_memtime s[98:99]
s_and_b32 s100, s{sidx}, 31
s_lshl_b32 s100, s100, 2
s_waitcnt lgkmcnt(0)
v_mov_b32 v14, s98
v_lshrrev_b32 v13, 6, v0
v_lshl_add_u32 v13, s2, 2, v13
v_lshlrev_b32 v13, 7, v13
v_add_u32 v13, {WS_STAMP + base}, v13
buffer_store_dword v14, v13, s[{srd}:{srd+3}], s100 offen""")
```

```python
from dsl import *
from layout import *

SLOT = 36864
XST = 65536
import os
PFMODE = os.environ.get('PF', '1')
ROTM = int(os.environ.get('ROTM', '3')); ROTS = int(os.environ.get('ROTS', '2'))
DIAG = os.environ.get('DIAG', '')
STF = os.environ.get('STF', 'sc1')
S_ACT = 8; S_W = 12; S_WS = 16; S_WSX = 20
sWave = 24; sTb = 25; sChunk = 26; sCb = 27; sCbEnd = 28; sWstride16 = 29
sWbase = 30
sWcolStep = 31; sOutBase = 32; sHS = 33; sDS = 34; sScale = 35
sT0 = 36; sT1 = 37; sT2 = 38; sT3 = 39
sSlotR = 40
sSlotW = 41
sWoff = 42
sOut = 43; sWsize = 44; sActStride = 45; sActBase = 46; sPf = 47; sAc = 48; sPart = 76; sUS = 77; sRot = 78; sCb0 = 79; sMask = 80; sRow = 81; sPfN = 82; S_PF = 84; S_ZERO = 88; sKt0 = 49; sGw = 50
sPfOff = 51; sPtr = 52
vPF = 30; vJunk = 160; vLane = 1; vW = 16; vT = 17; vLaneT = 19; vO = 20; vXD = 24; vXR = 26; vWF = 32; vAcc = 48; vP = 112; vXV = 128

def xfrag(s, k):
    return ar((s * 32 + k) * 4, 4) if k < 32 else vr(vXV + (s * 4 + k - 32) * 4, 4)

def dma_slab(KD, NS):
    g = []
    for n in range(NS // 4):
        t = f"s_add_u32 m0, {sr(sSlotW)}, {n*1024}\n"
        if n: t += f"s_add_u32 {sr(sWoff)}, {sr(sWoff)}, {sr(sWstride16)}\n"
        else: t += "s_nop 0\n"
        t += f"buffer_load_dwordx4 {vr(vW)}, {sr(S_W,4)}, {sr(sWoff)} offen lds"
        g.append(t)
    return g

def slab_setup():
    return f"""s_add_u32 {sr(sWoff)}, {sr(sPf)}, {sr(sRot)}
s_and_b32 {sr(sWoff)}, {sr(sWoff)}, {sr(sMask)}
s_or_b32 {sr(sWoff)}, {sr(sWoff)}, {sr(sCb0)}
s_mul_i32 {sr(sWoff)}, {sr(sWoff)}, {sr(sWcolStep)}
s_add_u32 {sr(sWoff)}, {sr(sWoff)}, {sr(sWbase)}
s_cmp_lt_u32 {sr(sPf)}, {sr(sCbEnd)}
s_cselect_b32 {sr(S_W+2)}, {sr(sWsize) if 'nodma' not in DIAG else 0}, 0
s_add_u32 {sr(sPf)}, {sr(sPf)}, 1"""

def slab_done(SLOT):
    return f"""s_add_u32 {sr(sSlotW)}, {sr(sSlotW)}, {SLOT}
s_sub_u32 {sr(sT0)}, {sr(sSlotW)}, {4*SLOT}
s_cmp_ge_u32 {sr(sSlotW)}, {4*SLOT}
s_cselect_b32 {sr(sSlotW)}, {sr(sT0)}, {sr(sSlotW)}"""

def av_offsets(k):
    return [
     f"s_lshl_b32 {sr(sT1)}, {sr(sT1)}, 5",
     f"v_and_b32 v2, 31, {vr(vLane)}",
     f"v_add_u32 v2, {sr(sT1)}, v2",
     f"v_mul_u32_u24 v3, 3641, v2",
     f"v_lshrrev_b32 v3, 16, v3",
     f"v_mul_u32_u24 v4, 18, v3",
     f"v_sub_u32 v2, v2, v4",
     f"v_lshlrev_b32 v3, 18, v3",
     f"v_lshlrev_b32 v2, 4, v2",
     f"v_add_u32 v2, v2, v3",
     f"v_lshrrev_b32 v3, 5, {vr(vLane)}",
     f"v_lshlrev_b32 v3, 9, v3",
     f"v_add_u32 {vr(vO)}, v2, v3",
     f"v_add_u32 {vr(vO+1)}, 1024, {vr(vO)}",
     f"v_add_u32 {vr(vO+2)}, 4096, {vr(vO)}",
     f"v_add_u32 {vr(vO+3)}, 5120, {vr(vO)}",
    ]

def epilogue(par, scale, av):
    e = []
    e.append((f"s_sub_u32 {sr(sT1)}, {sr(sCb)}, 1", 4))
    e += [(x, 4) for x in [f"s_add_u32 {sr(sT1)}, {sr(sT1)}, {sr(sRot)}", f"s_and_b32 {sr(sT1)}, {sr(sT1)}, {sr(sMask)}", f"s_or_b32 {sr(sT1)}, {sr(sT1)}, {sr(sCb0)}"]]
    if av:
        e.append((f"s_mov_b32 {sr(sOut)}, {sr(sOutBase)}", 4))
        e += [(x, 4) for x in av_offsets(0)]
    else:
        e += [(x, 4) for x in [
            f"s_lshr_b32 {sr(sT2)}, {sr(sT1)}, 2", f"s_mul_i32 {sr(sT2)}, {sr(sT2)}, {sr(sHS)}",
            f"s_and_b32 {sr(sT1)}, {sr(sT1)}, 3", f"s_mul_i32 {sr(sT1)}, {sr(sT1)}, {sr(sDS)}",
            f"s_add_u32 {sr(sOut)}, {sr(sT1)}, {sr(sT2)}", f"s_add_u32 {sr(sOut)}, {sr(sOut)}, {sr(sOutBase)}"]]
    nscal = len(e)
    for s in range(2):
        a = vAcc + par * 32 + s * 16
        for t in range(2):
            if scale:
                for r in range(8): e.append((f"v_mul_f32 {vr(a+8*t+r)}, {sr(sScale)}, {vr(a+8*t+r)}", 4))
            for r in range(4):
                e.append((f"v_cvt_pk_bf16_f32 {vr(vP+(s*2+t)*4+r)}, {vr(a+8*t+2*r)}, {vr(a+8*t+2*r+1)}", 4))
            e.append((f"buffer_store_dwordx4 {vr(vP+(s*2+t)*4,4)}, {vr(vO+s*2+t)}, {sr(S_WSX,4)}, {sr(sOut)} offen {STF}", 16))
    return e, nscal

def wreads(k, par):
    r = vWF + (k & 3) * 4
    return [f"ds_read_b64_tr_b16 {vr(r,2)}, {vr(vT+par)} offset:{k*1024}",
            f"ds_read_b64_tr_b16 {vr(r+2,2)}, {vr(vT+par)} offset:{k*1024+256}"]

def mfma(k, s, par, order):
    a = vr(vAcc + par * 32 + s * 16, 16); w = vr(vWF + (k & 3) * 4, 4); x = xfrag(s, k)
    c = a if k else "0"
    return f"v_mfma_f32_32x32x16_bf16 {a}, {w}, {x}, {c}" if order == 'T' else f"v_mfma_f32_32x32x16_bf16 {a}, {x}, {w}, {c}"

NPF = 6
def body(K, NS, order, par, scale, av):
    epi, nscal = epilogue(par ^ 1, scale, av)
    SLOT = geom(NS)[0]
    ND = NS // 4
    su = slab_setup().split('\n'); sd = slab_done(SLOT).split('\n')
    mem = {}; pre = {}
    pre[0] = su[:4]; pre[1] = su[4:]
    steps = list(range(1, NS - 4))
    dsteps = steps[0::3][:ND]; psteps = [k for k in steps[1::3]][:NPF]; ssteps = [k for k in steps[2::3]]
    assert len(dsteps) == ND and len(psteps) == NPF
    for n, k in enumerate(dsteps):
        g = dma_slab(None, NS)[n].split('\n')
        pre.setdefault(2 * k, []).extend(x for x in g[:2] if x != "s_nop 0"); mem[2 * k + 1] = g[2]
    pre.setdefault(2 * dsteps[-1] + 2, []).extend(sd)
    for n, k in enumerate(psteps):
        mem[2 * k + 1] = f"buffer_load_dwordx4 {vr(vJunk+4*n,4)}, {vr(vPF)}, {sr(S_PF,4)}, {sr(sPfOff)} offen ; junk"
        pre.setdefault(2 * k + 2, []).append(f"s_add_u32 {sr(sPfOff)}, {sr(sPfOff)}, {sr(sRow)}")
    pre.setdefault(2 * psteps[-1] + 2, []).extend([f"s_sub_u32 {sr(sPfN)}, {sr(sPfN)}, 1", f"s_cmp_gt_i32 {sr(sPfN)}, 0", f"s_cselect_b32 {sr(S_PF+2)}, {sr(sWsize)}, 0"])
    q = list(epi); log = []
    for k in range(NS):
        K("s_waitcnt lgkmcnt(4)")
        for s in range(2):
            g = 2 * k + s
            K(mfma(k, s, par, order))
            room = 24
            if s == 0:
                if k == NS - 3:
                    assert not q
                    last = max(i for i, x in enumerate(log) if x == 'D')
                    K(f"s_waitcnt vmcnt({len(log) - 1 - last + len(log)})\ns_barrier")
                kk = k + 3
                for r in (wreads(kk, par) if kk < NS else wreads(kk - NS, par ^ 1)): K(r)
                room -= 10
            else:
                room -= 4
                if g in mem: K(mem[g]); room -= 16; log.append('D' if 'lds' in mem[g] else 'P')
                elif q and q[0][0].startswith("buffer_store") and k in ssteps: K(q.pop(0)[0]); room -= 16; log.append('S')
            for x in pre.get(g, []): K(x); room -= 4
            if k == NS - 4 and s == 1:
                K(f"s_add_u32 {sr(sSlotR)}, {sr(sSlotR)}, {SLOT}\ns_cmp_ge_u32 {sr(sSlotR)}, {4*SLOT}\ns_cselect_b32 {sr(sSlotR)}, 0, {sr(sSlotR)}")
                K(f"v_add_u32 {vr(vT+(par^1))}, {sr(sSlotR)}, {vr(vLaneT)}")
            while q and g >= 3 and not q[0][0].startswith("buffer_store") and q[0][1] <= room:
                t, c = q.pop(0); K(t); room -= c
    K(f"s_add_u32 {sr(sCb)}, {sr(sCb)}, 1")
    dstamp(K, sCb, S_WS, 3 << 17)
    last = max(i for i, x in enumerate(log) if x == 'D')
    return len(log) - 1 - last

def tail(K, par, scale, av):
    stamp(K, 2, S_WS)
    K("s_nop 15")
    epi, _ = epilogue(par, scale, av)
    for t, c in epi: K(t)

PFAT = int(os.environ.get('PFAT', '2'))
def geom(NS):
    return (32768, 65536, 3) if NS == 32 else (36864, 73728, 2)

def xprologue(K, NS, order_, scale, av):
    NC = NS // 4
    SL, XB, NX = geom(NS)
    order = []
    def issue(c):
        K(f"s_add_u32 {sr(sT0)}, {sr(sActBase)}, {c*128}")
        for n in range(8):
            K(f"s_add_u32 m0, {sr(sT3)}, {(c%NX)*8192 + n*1024}")
            if n: K(f"s_add_u32 {sr(sT0)}, {sr(sT0)}, {sr(sActStride)}")
            else: K("s_nop 0")
            K(f"buffer_load_dwordx4 {vr(vXD+(n&1))}, {sr(S_ACT,4)}, {sr(sT0)} offen lds")
            order.append(('x', c))
    def slab(i):
        K(slab_setup())
        for g in dma_slab(None, NS): K(g); order.append(('w', i))
        K(slab_done(SL))
    def upto(tag): return len(order) - 1 - max(i for i, o in enumerate(order) if o == tag)
    K(f"s_mul_i32 {sr(sT3)}, {sr(sWave)}, {NX*8192}")
    K(f"s_add_u32 {sr(sT3)}, {sr(sT3)}, {XB}")
    issue(0); slab(0)
    for c in range(1, NX): issue(c)
    for i in range(4): K(f"v_add_u32 {vr(vXR+i)}, {sr(sT3)}, {vr(vXR+i)}")
    K(f"""s_lshr_b32 {sr(sRow)}, {sr(sWstride16)}, 4
s_lshr_b32 {sr(sPfOff)}, {sr(sKt0)}, 1
s_mul_i32 {sr(sPfOff)}, {sr(sPfOff)}, {NS//2}
s_mul_i32 {sr(sPfOff)}, {sr(sPfOff)}, {sr(sRow)}
s_mul_i32 {sr(sT1)}, {sr(sCb)}, {sr(sWcolStep)}
s_add_u32 {sr(sPfOff)}, {sr(sPfOff)}, {sr(sT1)}
s_add_u32 {sr(sPfOff)}, {sr(sPfOff)}, {sr(sPart)}
s_mov_b32 {sr(S_PF)}, {sr(S_W)}
s_mov_b32 {sr(S_PF+1)}, {sr(S_W+1)}
s_mov_b32 {sr(S_PF+2)}, {sr(sWsize) if PFMODE == '1' else 0}
s_mov_b32 {sr(S_PF+3)}, 0x20000
s_mov_b32 {sr(sPfN)}, {(NS//2 + NPF - 1)//NPF if PFMODE == '1' else 0}
s_lshl_b32 {sr(sT1)}, {sr(sRot)}, 6
s_lshl_b32 {sr(sT2)}, {sr(sMask)}, 6
s_or_b32 {sr(sT2)}, {sr(sT2)}, 63
v_and_b32 v2, 15, {vr(vLane)}
v_lshlrev_b32 v2, 4, v2
v_add_u32 v2, {sr(sT1)}, v2
v_add_u32 v2, 128, v2
v_and_b32 v2, {sr(sT2)}, v2
v_lshrrev_b32 v3, 4, {vr(vLane)}
v_mul_lo_u32 v3, v3, {sr(sRow)}
v_add_u32 v2, v2, v3
v_lshlrev_b32 {vr(vPF)}, 4, {vr(vLane)}
v_add_u32 {vr(vPF)}, {sr(sT1)}, {vr(vPF)}
v_add_u32 {vr(vPF)}, 384, {vr(vPF)}
v_and_b32 {vr(vPF)}, {sr(sT2)}, {vr(vPF)}
v_cmp_gt_u32 vcc, 40, {vr(vLane)}
v_mov_b32 v3, 0x80000000
s_lshl_b32 {sr(sT2)}, {sr(sRow)}, 2
v_cndmask_b32 {vr(vPF)}, v3, {vr(vPF)}, vcc
s_mov_b32 {sr(sT1)}, {sr(sPfOff)}
v_mov_b32 {vr(vT)}, {vr(vLaneT)}
v_add_u32 {vr(vT+1)}, {SL}, {vr(vLaneT)}
s_mov_b32 {sr(sSlotR)}, {SL}""")
    for n in range((NS // 2 + 3) // 4):
        K(f"buffer_load_dwordx4 {vr(vJunk+4*(NPF+n),4)}, v2, {sr(S_PF,4)}, {sr(sT1)} offen\ns_add_u32 {sr(sT1)}, {sr(sT1)}, {sr(sT2)}"); order.append(('p', n))
    for c in range(NC):
        if c == 0: K(f"s_waitcnt vmcnt({upto(('w', 0))})\ns_barrier")
        else: K(f"s_waitcnt vmcnt({upto(('x', c))})")
        for s in range(2):
            for i in range(4):
                K(f"ds_read_b128 {xfrag(s, 4*c+i)}, {vr(vXR+i)} offset:{(c%NX)*8192 + s*4096}")
        K("s_waitcnt lgkmcnt(6)")
        for i in range(4):
            for r in wreads(4 * c + i, 0): K(r)
        K("s_waitcnt lgkmcnt(8)")
        if c + NX < NC: issue(c + NX)
        if c == NC - NX - 2: slab(1)
        K("s_waitcnt lgkmcnt(0)")
        for i in range(4):
            for s in range(2): K(mfma(4 * c + i, s, 0, order_))
    stamp(K, 1, S_WS)
    K("s_barrier")
    for k in range(3):
        for r in wreads(k, 1): K(r)
    slab(2)
    dstamp(K, sPf, S_WS, (3 << 17) + 64)
    for n in range(body(Kernel("x"), NS, order_, 0, scale, av)):
        K(f"buffer_load_dwordx4 {vr(vJunk+4*(NPF+5+n),4)}, {vr(vPF)}, {sr(S_ZERO,4)}, 0 offen")
    K(f"s_add_u32 {sr(sCb)}, {sr(sCb)}, 1")

def mainloop(K, name, NS, order, scale, av, done):
    K.label(name)
    xprologue(K, NS, order, scale, av)
    K.label(name + "_l1")
    body(K, NS, order, 1, scale, av)
    K(f"s_cmp_ge_u32 {sr(sCb)}, {sr(sCbEnd)}")
    K(f"s_cbranch_scc1 {name}_t1")
    body(K, NS, order, 0, scale, av)
    K(f"s_cmp_lt_u32 {sr(sCb)}, {sr(sCbEnd)}")
    K(f"s_cbranch_scc1 {name}_l1")
    K("s_waitcnt lgkmcnt(0)")
    tail(K, 0, scale, av)
    K(f"s_branch {done}")
    K.label(name + "_t1")
    K("s_waitcnt lgkmcnt(0)")
    tail(K, 1, scale, av)
    K(f"s_branch {done}")

def srd(K, d, p, size):
    K(f"s_mov_b32 {sr(d)}, {sr(p)}\ns_mov_b32 {sr(d+1)}, {sr(p+1)}\ns_mov_b32 {sr(d+2)}, {size}\ns_mov_b32 {sr(d+3)}, 0x20000")

def build():
    K = Kernel("proj_kernel"); K.force_vgpr = 512
    P = lambda ka: sPtr + ka // 4
    K(f"""s_cmp_ge_u32 s2, 256
s_cbranch_scc1 k1_exit
s_load_dwordx16 {sr(sPtr,16)}, s[0:1], 0
s_load_dwordx8 {sr(sPtr+16,8)}, s[0:1], 64
v_and_b32 {vr(vLane)}, 63, v0
v_lshrrev_b32 v2, 6, v0
s_and_b32 {sr(sT0)}, s2, 7
s_lshr_b32 {sr(sT1)}, s2, 3
v_readfirstlane_b32 {sr(sWave)}, v2
s_lshr_b32 {sr(sTb)}, {sr(sT1)}, 2
s_and_b32 {sr(sT1)}, {sr(sT1)}, 3
s_lshl_b32 {sr(sChunk)}, {sr(sT0)}, 2
s_add_u32 {sr(sChunk)}, {sr(sChunk)}, {sr(sT1)}
s_lshl_b32 {sr(sKt0)}, {sr(sTb)}, 3
s_lshl_b32 {sr(sT0)}, {sr(sWave)}, 1
s_add_u32 {sr(sKt0)}, {sr(sKt0)}, {sr(sT0)}
v_lshrrev_b32 v2, 5, {vr(vLane)}
v_lshlrev_b32 {vr(vLaneT)}, 9, v2
v_bfe_u32 v3, {vr(vLane)}, 2, 2
v_lshlrev_b32 v3, 6, v3
v_add_u32 {vr(vLaneT)}, {vr(vLaneT)}, v3
v_bfe_u32 v3, {vr(vLane)}, 4, 1
v_lshlrev_b32 v3, 5, v3
v_add_u32 {vr(vLaneT)}, {vr(vLaneT)}, v3
v_and_b32 v3, 3, {vr(vLane)}
v_lshlrev_b32 v3, 3, v3
v_add_u32 {vr(vLaneT)}, {vr(vLaneT)}, v3
v_and_b32 v3, 31, {vr(vLane)}
v_bfe_u32 v4, {vr(vLane)}, 1, 3
v_lshlrev_b32 v3, 7, v3""")
    for i in range(4):
        K(f"v_add_u32 v5, {2*i}, v2\nv_xor_b32 v5, v5, v4\nv_lshlrev_b32 v5, 4, v5\nv_add_u32 {vr(vXR+i)}, v3, v5")
    K("s_waitcnt lgkmcnt(0)")
    srd(K, S_WS, P(KA_WS), WS_SIZE)
    stamp(K, 0, S_WS)
    srd(K, S_ZERO, P(KA_WS), 0)
    srd(K, S_WSX, P(KA_WS), 0 if 'nost' in DIAG else WS_SIZE)
    K(f"""s_mov_b32 {sr(sScale)}, 1.0
s_mov_b32 {sr(sWcolStep)}, 64
s_mov_b32 {sr(sPart)}, 0
s_mov_b32 {sr(sRot)}, 0
s_mov_b32 {sr(sCb0)}, 0
s_mov_b32 {sr(sMask)}, -1
s_mov_b32 {sr(sDS)}, 2048
v_lshlrev_b32 {vr(vO)}, 4, {vr(vLane)}
v_and_b32 v6, 3, {vr(vLane)}
v_lshlrev_b32 v6, 4, v6
v_lshrrev_b32 v7, 2, {vr(vLane)}
s_cmp_ge_u32 {sr(sChunk)}, 26
s_cbranch_scc1 k1_typeA
s_cmp_ge_u32 {sr(sChunk)}, 16
s_cbranch_scc1 k1_typeQ""")
    def common(K, actp, actsz, actstride, wstride, rows_per_wave):
        srd(K, S_ACT, actp, actsz)
        K(f"""s_mov_b32 {sr(sActStride)}, {8*actstride}
s_mul_i32 {sr(sActBase)}, {sr(sKt0)}, {32*actstride}
s_mov_b32 {sr(sWstride16)}, {16*wstride}
s_mul_i32 {sr(sWbase)}, {sr(sWave)}, {rows_per_wave*wstride}
s_mul_i32 {sr(sSlotW)}, {sr(sWave)}, {rows_per_wave*64}
v_mul_u32_u24 {vr(vW)}, {wstride}, v7
v_add_u32 {vr(vW)}, {vr(vW)}, v6
v_lshrrev_b32 v8, 3, {vr(vLane)}
v_mul_u32_u24 v8, {actstride}, v8
v_and_b32 v9, 7, {vr(vLane)}
v_lshrrev_b32 v10, 4, {vr(vLane)}
v_xor_b32 v9, v9, v10
v_lshlrev_b32 v10, 4, v9
v_add_u32 {vr(vXD)}, v8, v10
v_xor_b32 v9, 4, v9
v_lshlrev_b32 v10, 4, v9
v_add_u32 {vr(vXD+1)}, v8, v10""")
    def ovec(K, dt, ds):
        K(f"""v_add_u32 {vr(vO+1)}, {dt}, {vr(vO)}
v_add_u32 {vr(vO+2)}, {ds}, {vr(vO)}
v_add_u32 {vr(vO+3)}, {ds+dt}, {vr(vO)}""")
    common(K, P(KA_CKV), SZ_CKV, 1024, 8192, 128)
    ovec(K, 1024, 16384)
    K(f"""s_and_b32 {sr(sCb)}, {sr(sChunk)}, 7
s_lshl_b32 {sr(sCb)}, {sr(sCb)}, 4
s_add_u32 {sr(sCbEnd)}, {sr(sCb)}, 16
s_mov_b32 {sr(sPf)}, {sr(sCb)}
s_mov_b32 {sr(sCb0)}, {sr(sCb)}
s_mov_b32 {sr(sMask)}, 15
s_and_b32 {sr(sRot)}, {sr(sChunk)}, {ROTM}
s_lshl_b32 {sr(sRot)}, {sr(sRot)}, {ROTS}
s_mov_b32 {sr(sWsize)}, {SZ_WUK}
s_mov_b32 {sr(sHS)}, {64*16384}
s_lshl_b32 {sr(sOutBase)}, {sr(sKt0)}, 14
s_add_u32 {sr(sOutBase)}, {sr(sOutBase)}, {WS_KVB}
s_cmp_ge_u32 {sr(sChunk)}, 8
s_cbranch_scc1 k1_typeV""")
    srd(K, S_W, P(KA_WUK), SZ_WUK)
    mainloop(K, "k1_K", 32, 'T', False, False, "k1_end")
    K.label("k1_typeV")
    srd(K, S_W, P(KA_WUV), SZ_WUK)
    K(f"s_add_u32 {sr(sOutBase)}, {sr(sOutBase)}, 8192")
    mainloop(K, "k1_V", 32, 'N', False, False, "k1_end")
    K.label("k1_typeQ")
    common(K, P(KA_BX), SZ_BX, 1152, 8192, 144)
    ovec(K, 1024, 8192)
    srd(K, S_W, P(KA_WQ), SZ_WQ)
    K(f"""s_sub_u32 {sr(sT0)}, {sr(sChunk)}, 16
s_mul_i32 {sr(sCb)}, {sr(sT0)}, 13
s_add_u32 {sr(sCbEnd)}, {sr(sCb)}, 13
s_cmp_eq_u32 {sr(sT0)}, 8
s_cselect_b32 {sr(sCbEnd)}, 116, {sr(sCbEnd)}
s_cmp_eq_u32 {sr(sT0)}, 9
s_cselect_b32 {sr(sCb)}, 116, {sr(sCb)}
s_cselect_b32 {sr(sCbEnd)}, 128, {sr(sCbEnd)}
s_mov_b32 {sr(sPf)}, {sr(sCb)}
s_mov_b32 {sr(sWsize)}, {SZ_WQ}
s_mov_b32 {sr(sHS)}, {64*8192}
s_mov_b32 {sr(sScale)}, {f32bits(C_B)}
s_lshl_b32 {sr(sOutBase)}, {sr(sKt0)}, 13
s_add_u32 {sr(sOutBase)}, {sr(sOutBase)}, {WS_QB}
s_branch k1_T576""")
    K.label("k1_typeA")
    common(K, P(KA_AX), SZ_AX, 1152, 3456, 144)
    srd(K, S_W, P(KA_AWQKV), SZ_AWQKV)
    K(f"""s_sub_u32 {sr(sAc)}, {sr(sChunk)}, 26
s_mov_b32 {sr(sWsize)}, {SZ_AWQKV}
s_and_b32 {sr(sT0)}, {sr(sAc)}, 1
s_mul_i32 {sr(sCb)}, {sr(sT0)}, 9
s_mov_b32 {sr(sPf)}, {sr(sCb)}
s_lshr_b32 {sr(sT1)}, {sr(sAc)}, 1
s_mul_i32 {sr(sT2)}, {sr(sT1)}, 1152
s_add_u32 {sr(sWbase)}, {sr(sWbase)}, {sr(sT2)}
s_mov_b32 {sr(sPart)}, {sr(sT2)}
s_cmp_eq_u32 {sr(sT1)}, 2
s_cbranch_scc1 k1_typeAV
s_lshl_b32 {sr(sCb)}, {sr(sT0)}, 3
s_mov_b32 {sr(sPf)}, {sr(sCb)}
s_add_u32 {sr(sCbEnd)}, {sr(sCb)}, 8
s_mov_b32 {sr(sWcolStep)}, 72
s_lshl_b32 {sr(sUS)}, 2048, {sr(sT1)}
s_lshl_b32 {sr(sDS)}, {sr(sUS)}, 7
s_lshl_b32 {sr(sHS)}, {sr(sUS)}, 9
s_mul_i32 {sr(sOutBase)}, {sr(sKt0)}, {sr(sUS)}
s_mul_i32 {sr(sT2)}, {sr(sT1)}, {WS_KVA-WS_QA}
s_add_u32 {sr(sOutBase)}, {sr(sOutBase)}, {sr(sT2)}
s_add_u32 {sr(sOutBase)}, {sr(sOutBase)}, {WS_QA}
s_lshl_b32 {sr(sT2)}, {sr(sUS)}, 6
v_add_u32 {vr(vO+1)}, {sr(sT2)}, {vr(vO)}
v_add_u32 {vr(vO+2)}, {sr(sUS)}, {vr(vO)}
v_add_u32 {vr(vO+3)}, {sr(sUS)}, {vr(vO+1)}
s_cmp_eq_u32 {sr(sT1)}, 0
s_cselect_b32 {sr(sScale)}, {f32bits(C_A)}, 1.0
v_mul_u32_u24 {vr(vW)}, 3456, v7
v_bfe_u32 v8, {vr(vLane)}, 1, 1
v_mul_u32_u24 v8, 36, v8
v_add_u32 {vr(vW)}, {vr(vW)}, v8
v_and_b32 v8, 1, {vr(vLane)}
v_lshlrev_b32 v8, 4, v8
v_add_u32 {vr(vW)}, {vr(vW)}, v8""")
    mainloop(K, "k1_T576", 36, 'T', True, False, "k1_after576T")
    K.label("k1_typeAV")
    K(f"""s_add_u32 {sr(sCbEnd)}, {sr(sCb)}, 9
s_lshl_b32 {sr(sOutBase)}, {sr(sKt0)}, 12
s_add_u32 {sr(sOutBase)}, {sr(sOutBase)}, {WS_KVA+1024}""")
    mainloop(K, "k1_N576", 36, 'N', False, True, "k1_Aextra")
    K.label("k1_after576T")
    K(f"""s_cmp_lt_u32 {sr(sChunk)}, 26
s_cbranch_scc1 k1_end
s_mov_b32 {sr(S_W+2)}, {SZ_AWQKV}
v_lshrrev_b32 v2, 4, {vr(vLane)}
v_mul_u32_u24 v2, 3456, v2
v_and_b32 v3, 15, {vr(vLane)}
v_mul_u32_u24 v3, 36, v3
v_add_u32 {vr(vW)}, v2, v3
v_add_u32 {vr(vW)}, 32, {vr(vW)}
v_mov_b32 {vr(vT)}, {vr(vLaneT)}
v_and_b32 v2, 31, {vr(vLane)}
v_lshlrev_b32 v2, 2, v2
v_lshrrev_b32 v3, 5, {vr(vLane)}
v_mul_lo_u32 v3, v3, {sr(sDS)}
v_add_u32 {vr(vO)}, v2, v3
v_add_u32 {vr(vO+1)}, {sr(sUS)}, {vr(vO)}
s_sub_u32 {sr(sT1)}, {sr(sUS)}, 1024
s_add_u32 {sr(sOutBase)}, {sr(sOutBase)}, {sr(sT1)}
s_lshr_b32 {sr(sDS)}, {sr(sDS)}, 1
s_mul_i32 {sr(sSlotW)}, {sr(sWave)}, {144*64}
s_and_b32 {sr(sCb)}, {sr(sAc)}, 1""")
    K.label("k1_left")
    K(f"""s_barrier
s_mul_i32 {sr(sWoff)}, {sr(sCb)}, {16*36}
s_add_u32 {sr(sWoff)}, {sr(sWoff)}, {sr(sWbase)}
s_mov_b32 m0, {sr(sSlotW)}
s_mov_b32 {sr(sT0)}, 36""")
    K.label("k1_left_dma")
    K(f"""buffer_load_dword {vr(vW)}, {sr(S_W,4)}, {sr(sWoff)} offen lds
s_add_u32 m0, m0, 256
s_add_u32 {sr(sWoff)}, {sr(sWoff)}, {4*3456}
s_sub_u32 {sr(sT0)}, {sr(sT0)}, 1
s_cmp_lg_u32 {sr(sT0)}, 0
s_cbranch_scc1 k1_left_dma
s_waitcnt vmcnt(0)
s_barrier""")
    for k in range(3):
        for r in wreads(k, 0): K(r)
    for k in range(36):
        K(f"s_waitcnt lgkmcnt({min(4, 2*(35-k))})")
        K(mfma(k, 0, 0, 'T'))
        if k + 3 < 36:
            for r in wreads(k + 3, 0): K(r)
        K(mfma(k, 1, 0, 'T'))
    K("s_nop 15")
    K(f"s_lshl_b32 {sr(sOut)}, {sr(sCb)}, 4\ns_mul_i32 {sr(sOut)}, {sr(sOut)}, {sr(sDS)}\ns_add_u32 {sr(sOut)}, {sr(sOut)}, {sr(sOutBase)}")
    for s in range(2):
        a = vAcc + s * 16
        for r in range(16): K(f"v_mul_f32 {vr(a+r)}, {sr(sScale)}, {vr(a+r)}")
        for p in range(8): K(f"v_cvt_pk_bf16_f32 {vr(vP+s*8+p)}, {vr(a+2*p)}, {vr(a+2*p+1)}")
    for p in range(8):
        K(f"s_mul_i32 {sr(sT0)}, {sr(sDS)}, {4*(p>>1) + (p&1)}\ns_add_u32 {sr(sT0)}, {sr(sT0)}, {sr(sOut)}")
        for s in range(2):
            K(f"buffer_store_dword {vr(vP+s*8+p)}, {vr(vO+s)}, {sr(S_WS,4)}, {sr(sT0)} offen")
    K("s_branch k1_end")
    K.label("k1_Aextra")
    K(f"""s_cmp_lg_u32 {sr(sAc)}, 4
s_cbranch_scc1 k1_end
v_lshrrev_b32 v2, 4, {vr(vLane)}
v_lshlrev_b32 v2, 18, v2
v_bfe_u32 v3, {vr(vLane)}, 1, 2
v_lshlrev_b32 v3, 9, v3
v_add_u32 v2, v2, v3
v_bfe_u32 v3, {vr(vLane)}, 3, 1
v_lshlrev_b32 v3, 12, v3
v_add_u32 v2, v2, v3
v_and_b32 v3, 1, {vr(vLane)}
v_lshlrev_b32 v3, 6, v3
v_add_u32 v2, v2, v3
v_add_u32 v2, {18*16}, v2
v_mov_b32 v4, 0x3f803f80
v_mov_b32 v5, 0x3f803f80
v_mov_b32 v6, 0x3f803f80
v_mov_b32 v7, 0x3f803f80
s_lshl_b32 {sr(sT0)}, {sr(sKt0)}, 12
s_add_u32 {sr(sT0)}, {sr(sT0)}, {WS_KVA+1024}""")
    for n in range(8):
        K(f"buffer_store_dwordx4 v[4:7], v2, {sr(S_WS,4)}, {sr(sT0)} offen")
        K(f"s_add_u32 {sr(sT0)}, {sr(sT0)}, {4*262144}")
    K.label("k1_end")
    stamp(K, 3, S_WS)
    if STAMP:
        K("s_waitcnt vmcnt(0)")
        stamp(K, 4, S_WS)
    K.label("k1_exit")
    K("s_endpgm")
    return K
```

```python
from dsl import *
from layout import *
import os
STF2 = os.environ.get('STF2', 'sc1')

S_WS = 8; S_KV = 12; S_W1 = 28; S_W2 = 32
sH = 16; sJ = 17; sWave = 18; sK = 19; sKf = 20; sMaskK = 21; sDoff = 22; sDslot = 23
sT0 = 24; sT1 = 25; sT2 = 26; sT3 = 27
sKVbase = 36; sQt0 = 37; sFB = 38; sU = 39; sN = 40; sAoff = 41; sJunk = 42; sM0 = 43; sLo = 44; sHi = 45; sGw = 46; sKslot = 47; sPair = 54; sQt1 = 56
sPtr = 48
sTri = 64
JUNK = 98304
aO = 0; aQ = 128; aK = 192; aV = 224
vLane = 1; vL16 = 2; vAK = 3; vAV = 4; vD = 5; vNinf = 6; vL = 8
vM = 10
vT = 12
vNegM = 16; vS = 48; vP = 112; vE = 144
def Oa(s, d): return ar(aO + (s * 4 + d) * 16, 16)
def Qa(s, ds): return ar(aQ + (s * 8 + ds) * 4, 4)
def Sv(p, s): return vS + (p * 2 + s) * 16
def Pv(p, s, ks): return vP + ((p * 2 + s) * 2 + ks) * 4

def X(p, subs=(0, 1), raw=False):
    out = []
    for ds in range(8):
        for s in subs:
            d = vr(Sv(p, s), 16)
            c = d if ds else ("0" if raw else vr(vNegM + s * 16, 16))
            out.append(f"v_mfma_f32_32x32x16_bf16 {d}, {ar(aK + ds*4, 4)}, {Qa(s, ds)}, {c}")
    return out
def Y(p, subs=(0, 1), vb=aV):
    out = []
    for ks in range(2):
        for d in range(4):
            for s in subs:
                out.append(f"v_mfma_f32_32x32x16_bf16 {Oa(s, d)}, {ar(vb + (d*2+ks)*4, 4)}, {vr(Pv(p, s, ks), 4)}, {Oa(s, d)}")
    return out
def softmax_ops(p, subs=(0, 1)):
    seq = []
    for ks in range(2):
        for s in subs:
            for r in range(8 * ks, 8 * ks + 8): seq.append((s, ks, r))
    ops = []
    n = len(seq)
    for i in range(n + 2):
        if i < n:
            s, ks, r = seq[i]; ops.append((f"v_exp_f32 {vr(Sv(p,s)+r)}, {vr(Sv(p,s)+r)}", 8))
        if 0 <= i - 1 < n:
            s, ks, r = seq[i - 1]; ops.append((f"v_add_f32 {vr(vL+s)}, {vr(Sv(p,s)+r)}, {vr(vL+s)}", 4))
        if 0 <= i - 2 < n and (i - 2) % 2 == 1:
            s, ks, r = seq[i - 2]
            ops.append((f"v_cvt_pk_bf16_f32 {vr(Pv(p,s,ks)+(r%8)//2)}, {vr(Sv(p,s)+r-1)}, {vr(Sv(p,s)+r)}", 4))
    return ops
def kread(u2, ds): return f"ds_read_b128 {ar(aK + ds*4, 4)}, {vr(vAK)} offset:{u2*16384 + ds*1024}"
def vread(u2, i): return f"ds_read_b128 {ar(aV + i*4, 4)}, {vr(vAV)} offset:{u2*16384 + 8192 + i*1024}"
VORD = [0, 2, 4, 6, 1, 3, 5, 7]
def dma(i):
    t = ""
    if i % 4 == 0:
        t += f"s_add_u32 m0, {sr(sM0)}, {(i//4)*4096}\n"
        t += f"s_add_u32 {sr(sDoff)}, {sr(sDoff)}, {4096 if i else 28672}\n"
    return t + f"buffer_load_dwordx4 {vr(vL16)}, {sr(S_KV,4)}, {sr(sDoff)} offen offset:{(i%4)*1024} lds"
def tri(s): return [f"v_cndmask_b32 {vr(vNegM+s*16+r)}, {vr(vNegM+s*16+r)}, {vr(vNinf)}, {sr(sTri+2*r,2)}" for r in range(16)]

START = 3
NSLOT = 5; RING = NSLOT * 32768
COST = {'R': 4, 'R2': 6, 'D': 16, 'S': 4}
def spread(ops, room, g0, g1):
    n = len(room); tot = sum(c for _, c in ops); cap = sum(room[g % n] for g in range(g0, g1))
    res = []; g = g0; acc = 0.0; tgt = room[g0 % n] * tot / cap; used = 0
    for t, c in ops:
        while (acc + c / 2 > tgt or used + c > room[g % n]) and g < g1 - 1:
            g += 1; tgt += room[g % n] * tot / cap; used = 0
        assert used + c <= room[g % n], ("no room", g, t)
        res.append(g); acc += c; used += c
    return res

RD = [0, 1, 2, 4, 6, 8, 10, 11]
DG = [21, 25, 29, 35, 39, 45, 51, 57]
def steady_plan():
    mem = {g: [] for g in range(64)}; fix = {g: [] for g in range(64)}; room = [24] * 64
    for i, g in enumerate(RD):
        mem[g].append(vread(0, VORD[i])); mem[16 + g].append(kread(0, i))
        mem[32 + g].append(vread(1, VORD[i])); mem[48 + g].append(kread(1, i))
    mem[16] = ["s_waitcnt vmcnt(16)", "s_barrier"] + mem[16]
    for i, g in enumerate(DG):
        mem[g].append(f"buffer_load_dwordx4 {vr(vL16)}, {sr(S_KV,4)}, {sr(sDoff)} offen offset:{(i%4)*1024} lds")
    fix[19] += [f"s_mov_b32 m0, {sr(sDslot)}", f"s_add_u32 {sr(sDoff)}, {sr(sDoff)}, 28672"]
    fix[37] += [f"s_add_u32 m0, {sr(sDslot)}, 4096", f"s_add_u32 {sr(sDoff)}, {sr(sDoff)}, 4096"]
    fix[41] += [f"s_add_u32 {sr(sDslot)}, {sr(sDslot)}, 32768", f"s_cmp_ge_u32 {sr(sDslot)}, {RING}"]
    fix[43] += [f"s_cselect_b32 {sr(sT0)}, {RING}, 0", f"s_sub_u32 {sr(sDslot)}, {sr(sDslot)}, {sr(sT0)}"]
    fix[46] += [f"v_mov_b32 {vr(vAV)}, {vr(vAK)}"]
    fix[53] += [f"s_add_u32 {sr(sKslot)}, {sr(sKslot)}, 32768", f"s_cmp_ge_u32 {sr(sKslot)}, {RING}"]
    fix[55] += [f"s_cselect_b32 {sr(sKslot)}, 0, {sr(sKslot)}"]
    fix[60] += [f"v_add_u32 {vr(vAK)}, {sr(sKslot)}, {vr(vL16)}"]
    fix[61] += [f"s_add_u32 {sr(sK)}, {sr(sK)}, 1"]
    for g in range(64):
        for m in mem[g]: room[g] -= 16 if m.startswith("buffer") else 4
        room[g] -= 4 * len(fix[g])
    room[16] = 0
    for g in (15, 31, 47): room[g] -= 4
    room[31] -= 8
    room[63] -= 12
    od = softmax_ops(1); ev = softmax_ops(0)
    god = spread(od, room, 16 + START, 48 + START); gev = spread(ev, room, 48 + START, 80 + START)
    return mem, fix, od, god, ev, gev
PLAN = steady_plan()
def ev_first(): return [t for (t, c), g in zip(PLAN[4], PLAN[5]) if g < 64]
def ev_rest(): return [(t, c) for (t, c), g in zip(PLAN[4], PLAN[5]) if g >= 64]

def steady(K):
    mem, fix, od, god, ev, gev = PLAN
    fill = {g: [] for g in range(64)}
    for (t, c), g in zip(ev, gev):
        if g >= 64: fill[g - 64].append(t)
    for (t, c), g in zip(od, god): fill[g].append(t)
    for (t, c), g in zip(ev, gev):
        if g < 64: fill[g].append(t)
    ms = X(1) + Y(0) + X(0) + Y(1)
    K.label("b_loop")
    for g in range(64):
        K(ms[g]); K.extend(mem[g]); K.extend(fill[g]); K.extend(fix[g])
        if g == 31:
            K(f"s_cmp_lg_u32 {sr(sK)}, {sr(sMaskK)}\ns_cbranch_scc1 b_nm")
            K.extend(tri(0)); K("s_nop 0"); K.label("b_nm")
        if g % 16 == 15: K("s_waitcnt lgkmcnt(0)")
    K(f"s_cmp_lt_u32 {sr(sK)}, {sr(sKf)}\ns_cbranch_scc1 b_loop")

def tail(K, w):
    last = 7 - w
    tiles = lambda i: (0, 1) if i <= w else (1,)
    K.label(f"b_tail{w}")
    for q in range(2):
        src = sKslot if q == 0 else sPair
        K(f"s_add_u32 {sr(sPair+q)}, {sr(src)}, 32768\ns_cmp_ge_u32 {sr(sPair+q)}, {RING}\ns_cselect_b32 {sr(sPair+q)}, 0, {sr(sPair+q)}")
    phases = []
    for i in range(1, last + 1): phases += [('X', i), ('Y', i - 1)]
    phases.append(('Y', last))
    queue = [(0, t, c) for t, c in ev_rest()]
    slot = 0
    for pi, (ty, i) in enumerate(phases):
        p = i & 1; tl = tiles(i)
        pre = []; reads = []
        if ty == 'X':
            if i == w: pre += tri(0)
            if i == last: pre += tri(1)
            ms = X(p, tl)
            u = i - 1
            if u % 2 == 0 and u > 0: pre.append(f"v_mov_b32 {vr(vAV)}, {vr(vAK)}")
            reads = [vread(u & 1, VORD[r]) for r in range(8)]
        else:
            ms = Y(p, tl)
            if i == last: ms = Y(p, tl, aK)
            if i + 2 <= last:
                u = i + 2
                if u % 2 == 0 and u > 2: pre.append(f"v_add_u32 {vr(vAK)}, {sr(sPair + u//2 - 2)}, {vr(vL16)}")
                reads = [kread(u & 1, r) for r in range(8)]
            elif i + 1 == last:
                u = last
                if u % 2 == 0: pre.append(f"v_mov_b32 {vr(vAV)}, {vr(vAK)}")
                reads = [vread(u & 1, VORD[r]).replace(ar(aV + VORD[r]*4, 4), ar(aK + VORD[r]*4, 4)) for r in range(8)]
        K.extend(pre)
        if pre: K("s_nop 0")
        K("s_waitcnt lgkmcnt(0)")
        n = len(ms)
        rg = RD if n == 16 else [0, 0, 1, 1, 2, 2, 3, 3]
        for g in range(n):
            if ty == 'Y':
                need = Ins(ms[g]).srcAB
                idx = max([q for q, (e, t, c) in enumerate(queue) if Ins(t).w & need], default=-1)
                if idx >= 0:
                    for e, t, c in queue[:idx + 1]: K(t)
                    queue = queue[idx + 1:]; K("s_nop 1")
            K(ms[g]); room = 24
            if ty == 'Y' and i == 0 and g == 0: K("s_waitcnt vmcnt(0)\ns_barrier"); room = 0
            first = True
            for r in range(8):
                if reads and rg[r] == g: K(reads[r]); room -= 4 if first else 6; first = False
            if g == n - 1: room -= 4
            while queue and queue[0][0] <= slot and queue[0][2] <= room:
                K(queue[0][1]); room -= queue[0][2]; queue = queue[1:]
            slot += 1
        if ty == 'X': queue += [(slot + START, t, c) for t, c in softmax_ops(p, tl)]
    for e, t, c in queue: K(t)
    K("s_branch b_done")

def rowmax(K, regs, dst, init=None):
    r = list(regs)
    if init is None: K(f"v_max_f32 {vr(dst)}, {vr(r[0])}, {vr(r[1])}"); r = r[2:]
    while r: K(f"v_max3_f32 {vr(dst)}, {vr(dst)}, {vr(r[0])}, {vr(r[1])}"); r = r[2:]
def xhalf(K, reg, op):
    K(f"v_mov_b32 {vr(vT)}, {vr(reg)}\ns_nop 1\nv_permlane32_swap_b32 {vr(reg)}, {vr(vT)}\n{op} {vr(reg)}, {vr(reg)}, {vr(vT)}")

def check_l(K, regs, okl):
    K(f"s_mov_b64 vcc, exec")
    for r in regs:
        K(f"v_cmp_le_f32 {sr(sT0,2)}, {sr(sLo)}, {vr(r)}\nv_cmp_ge_f32 {sr(sT2,2)}, {sr(sHi)}, {vr(r)}")
        K(f"s_and_b64 vcc, vcc, {sr(sT0,2)}\ns_and_b64 vcc, vcc, {sr(sT2,2)}")
    K(f"s_cmp_eq_u64 vcc, exec\ns_cbranch_scc1 {okl}")

def attnB(K):
    K(f"""s_lshl_b32 {sr(sKf)}, {sr(sJ)}, 2
s_lshl_b32 {sr(sQt0)}, {sr(sJ)}, 3
s_add_u32 {sr(sQt1)}, {sr(sQt0)}, 7
s_add_u32 {sr(sQt0)}, {sr(sQt0)}, {sr(sWave)}
s_sub_u32 {sr(sQt1)}, {sr(sQt1)}, {sr(sWave)}
s_sub_u32 {sr(sMaskK)}, {sr(sKf)}, 1
s_cmp_eq_u32 {sr(sWave)}, 0
s_cselect_b32 {sr(sMaskK)}, {sr(sMaskK)}, 0x7fffffff
s_lshl_b32 {sr(sKVbase)}, {sr(sH)}, 20
s_add_u32 {sr(sKVbase)}, {sr(sKVbase)}, {WS_KVB}
s_lshl_b32 {sr(sDslot)}, {sr(sWave)}, 13
s_add_u32 {sr(sDoff)}, {sr(sKVbase)}, {sr(sDslot)}
s_sub_u32 {sr(sDoff)}, {sr(sDoff)}, 28672
s_mov_b32 {sr(sK)}, 0
s_mov_b32 {sr(sKslot)}, 32768""")
    def pair(): return [(f"s_mov_b32 {sr(sM0)}, {sr(sDslot)}\ns_add_u32 {sr(sDslot)}, {sr(sDslot)}, 32768\n" if i == 0 else "") + dma(i) for i in range(8)]
    K.extend(pair())
    for s in range(2):
        K(f"""s_lshl_b32 {sr(sT1)}, {sr(sH)}, 6
s_add_u32 {sr(sT1)}, {sr(sT1)}, {sr(sQt1 if s else sQt0)}
s_lshl_b32 {sr(sT1)}, {sr(sT1)}, 13
s_add_u32 {sr(sT1)}, {sr(sT1)}, {WS_QB}""")
        for i in range(8):
            K(f"buffer_load_dwordx4 {Qa(s, i)}, {vr(vL16)}, {sr(S_WS,4)}, {sr(sT1)} offen offset:{(i%4)*1024}")
            if i == 3: K(f"s_add_u32 {sr(sT1)}, {sr(sT1)}, 4096")
    K.extend(pair())
    for i in range(128): K(f"v_accvgpr_write_b32 {ar(aO+i)}, 0")
    K(f"""v_mov_b32 {vr(vAK)}, {vr(vL16)}
v_mov_b32 {vr(vAV)}, {vr(vL16)}
v_mov_b32 {vr(vL)}, 0
v_mov_b32 {vr(vL+1)}, 0
s_waitcnt vmcnt(8)
s_barrier""")
    for ds in range(8): K(kread(0, ds))
    K("s_waitcnt lgkmcnt(0)")
    d23 = pair() + pair()
    for m, d in zip(X(0, raw=True), d23): K(m); K(d)
    for ds in range(8): K(kread(1, ds))
    K(f"v_add_u32 {vr(vAK)}, 32768, {vr(vAK)}\ns_nop 1")
    for s in range(2):
        rowmax(K, range(Sv(0, s), Sv(0, s) + 16), vM + s); xhalf(K, vM + s, "v_max_f32")
    for s in range(2):
        for r in range(16): K(f"v_sub_f32 {vr(vNegM+s*16+r)}, 0, {vr(vM+s)}")
    K(f"s_cmp_lg_u32 {sr(sQt0)}, 0\ns_cbranch_scc1 b_nm0")
    K.extend(tri(0)); K.label("b_nm0")
    for s in range(2):
        for r in range(16): K(f"v_add_f32 {vr(Sv(0,s)+r)}, {vr(vNegM+s*16+r)}, {vr(Sv(0,s)+r)}")
    K.extend(ev_first())
    stamp(K, 2, S_WS, 1 << 17)
    K(f"s_waitcnt lgkmcnt(0)\ns_cmp_eq_u32 {sr(sKf)}, 0\ns_cbranch_scc1 b_tails")
    steady(K)
    K.label("b_tails")
    for w in (1, 2, 3): K(f"s_cmp_eq_u32 {sr(sWave)}, {w}\ns_cbranch_scc1 b_tail{w}")
    for w in range(4): tail(K, w)
    K.label("b_done")
    stamp(K, 3, S_WS, 1 << 17)
    for s in range(2): xhalf(K, vL + s, "v_add_f32")
    check_l(K, [vL, vL + 1], "b_ok")
    fallbackB(K)
    K.label("b_ok")
    K(f"""v_rcp_f32 {vr(vM)}, {vr(vL)}
v_rcp_f32 {vr(vL)}, {vr(vL+1)}
s_lshl_b32 {sr(sT1)}, {sr(sH)}, 13
s_add_u32 {sr(sT1)}, {sr(sT1)}, {WS_CTX}
s_nop 7""")
    for s in range(2):
        K(f"s_lshl_b32 {sr(sT0)}, {sr(sQt1 if s else sQt0)}, 18\ns_add_u32 {sr(sT0)}, {sr(sT0)}, {sr(sT1)}")
        rc = vL if s else vM
        for d in range(4):
            b = vS + ((s * 4 + d) % 4) * 16; pk = vP + ((s * 4 + d) % 4) * 8
            for r in range(16): K(f"v_accvgpr_read_b32 {vr(b+r)}, {ar(aO+(s*4+d)*16+r)}")
            for r in range(8): K(f"v_pk_mul_f32 {vr(b+2*r,2)}, {vr(b+2*r,2)}, {vr(rc,2)} op_sel_hi:[1,0]")
            for r in range(8): K(f"v_cvt_pk_bf16_f32 {vr(pk+r)}, {vr(b+2*r)}, {vr(b+2*r+1)}")
            for t in range(2):
                K(f"buffer_store_dwordx4 {vr(pk+4*t,4)}, {vr(vL16)}, {sr(S_WS,4)}, {sr(sT0)} offen offset:{(d%2)*2048+t*1024} {STF2}")
            if d == 1: K(f"s_add_u32 {sr(sT0)}, {sr(sT0)}, 4096")

def fallbackB(K):
    def loadK():
        for ds in range(8):
            K(f"buffer_load_dwordx4 {ar(aK+4*ds,4)}, {vr(vL16)}, {sr(S_WS,4)}, {sr(sAoff)} offen offset:{(ds%4)*1024}")
            if ds % 4 == 3: K(f"s_add_u32 {sr(sAoff)}, {sr(sAoff)}, 4096")
    def masks(nm):
        K(f"s_cmp_lg_u32 {sr(sU)}, {sr(sQt0)}\ns_cbranch_scc1 {nm}_a")
        K.extend(tri(0)); K.label(nm + "_a")
        K(f"s_cmp_le_u32 {sr(sU)}, {sr(sQt0)}\ns_cbranch_scc1 {nm}_b")
        for r in range(16): K(f"v_mov_b32 {vr(vNegM+r)}, {vr(vNinf)}")
        K.label(nm + "_b")
        K(f"s_cmp_lg_u32 {sr(sU)}, {sr(sQt1)}\ns_cbranch_scc1 {nm}_c")
        K.extend(tri(1)); K.label(nm + "_c"); K("s_nop 1")
    for r in range(32): K(f"v_mov_b32 {vr(vNegM+r)}, 0")
    K(f"v_mov_b32 {vr(vM)}, {vr(vNinf)}\nv_mov_b32 {vr(vM+1)}, {vr(vNinf)}\ns_mov_b32 {sr(sU)}, 0\ns_mov_b32 {sr(sAoff)}, {sr(sKVbase)}")
    K.label("fb1")
    loadK(); K(f"s_add_u32 {sr(sAoff)}, {sr(sAoff)}, 8192")
    masks("fb1m"); K("s_waitcnt vmcnt(0)")
    K.extend(X(0)); K("s_nop 15")
    for s in range(2): rowmax(K, range(Sv(0, s), Sv(0, s) + 16), vM + s, init=True)
    K(f"s_add_u32 {sr(sU)}, {sr(sU)}, 1\ns_cmp_le_u32 {sr(sU)}, {sr(sQt1)}\ns_cbranch_scc1 fb1")
    for s in range(2):
        xhalf(K, vM + s, "v_max_f32")
        for r in range(16): K(f"v_sub_f32 {vr(vNegM+s*16+r)}, 0, {vr(vM+s)}")
    for i in range(128): K(f"v_accvgpr_write_b32 {ar(aO+i)}, 0")
    K(f"v_mov_b32 {vr(vL)}, 0\nv_mov_b32 {vr(vL+1)}, 0\ns_mov_b32 {sr(sU)}, 0\ns_mov_b32 {sr(sAoff)}, {sr(sKVbase)}")
    K.label("fb2")
    loadK()
    for i in range(8):
        K(f"buffer_load_dwordx4 {ar(aV+4*i,4)}, {vr(vL16)}, {sr(S_WS,4)}, {sr(sAoff)} offen offset:{(i%4)*1024}")
        if i % 4 == 3: K(f"s_add_u32 {sr(sAoff)}, {sr(sAoff)}, 4096")
    masks("fb2m"); K("s_waitcnt vmcnt(0)")
    K.extend(X(0)); K("s_nop 15")
    for t, c in softmax_ops(0): K(t)
    K("s_nop 1"); K.extend(Y(0))
    K(f"s_add_u32 {sr(sU)}, {sr(sU)}, 1\ns_cmp_le_u32 {sr(sU)}, {sr(sQt1)}\ns_cbranch_scc1 fb2")
    for s in range(2): xhalf(K, vL + s, "v_add_f32")

xS = 16; xP = 48; xQ = 64; xO = 120
vKL = 7
sSplit = 57; sR = 58; sAbase = 59; sTrip = 60
def attnA(K, n, D=4):
    nm = f"att{n}"
    KB = lambda b: b * 16
    def loadl(b):
        return [f"buffer_load_dwordx4 {ar(KB(b),4)}, {vr(vL16)}, {sr(S_WS,4)}, {sr(sAoff)} offen",
                f"buffer_load_dword {ar(KB(b)+4)}, {vr(vKL)}, {sr(S_WS,4)}, {sr(sAoff)} offen offset:3072",
                f"buffer_load_dwordx4 {ar(KB(b)+8,4)}, {vr(vL16)}, {sr(S_WS,4)}, {sr(sAoff)} offen offset:1024",
                f"buffer_load_dwordx4 {ar(KB(b)+12,4)}, {vr(vL16)}, {sr(S_WS,4)}, {sr(sAoff)} offen offset:2048\ns_add_u32 {sr(sAoff)}, {sr(sAoff)}, 4096"]
    def loads(b): K.extend(loadl(b))
    def QK(b, s, p):
        d = vr(xS + p * 16, 16)
        return [f"v_mfma_f32_32x32x16_bf16 {d}, {ar(KB(b),4)}, {vr(xQ+s*8,4)}, 0",
                f"v_mfma_f32_32x32x16_bf16 {d}, {ar(KB(b)+4,4)}, {vr(xQ+s*8+4,4)}, {d}"]
    def PV(b, s, p):
        o = vr(xO + s * 16, 16)
        return [f"v_mfma_f32_32x32x16_bf16 {o}, {ar(KB(b)+8+4*t,4)}, {vr(xP+p*8+4*t,4)}, {o}" for t in range(2)]
    def SM(p):
        g = []
        for q in range(4):
            t = [f"v_exp_f32 {vr(xS+p*16+4*q+r)}, {vr(xS+p*16+4*q+r)}" for r in range(4)]
            t += [f"v_cvt_pk_bf16_f32 {vr(xP+p*8+2*q+r)}, {vr(xS+p*16+4*q+2*r)}, {vr(xS+p*16+4*q+2*r+1)}" for r in range(2)]
            g.append(t)
        return g
    def setm(s, src):
        K(f"v_sub_f32 {vr(vM)}, 0, {vr(src)}\nv_cvt_pk_bf16_f32 {vr(vM)}, {vr(vM)}, 0")
        K(f"v_cndmask_b32 {vr(xQ+s*8+5)}, {vr(vM)}, 0, {sr(sTri+32,2)}")
    K.label(nm)
    K(f"""s_lshr_b32 {sr(sT0)}, {sr(sWave)}, {sr(sSplit)}
s_mul_i32 {sr(sT0)}, {sr(sT0)}, {n}
s_add_u32 {sr(sQt0)}, {sr(sQt0)}, {sr(sT0)}
s_lshl_b32 {sr(sT0)}, {sr(sH)}, 6
s_add_u32 {sr(sT0)}, {sr(sT0)}, {sr(sQt0)}
s_lshl_b32 {sr(sT0)}, {sr(sT0)}, 11
s_add_u32 {sr(sT0)}, {sr(sT0)}, {WS_QA}
s_mov_b32 {sr(sAoff)}, {sr(sKVbase)}""")
    K(loadl(D - 1)[0]); K(loadl(D - 1)[1])
    for s in range(n):
        K(f"buffer_load_dwordx4 {vr(xQ+s*8,4)}, {vr(vL16)}, {sr(S_WS,4)}, {sr(sT0)} offen")
        K(f"buffer_load_dword {vr(xQ+s*8+4)}, {vr(vKL)}, {sr(S_WS,4)}, {sr(sT0)} offen offset:1024")
        K(f"s_add_u32 {sr(sT0)}, {sr(sT0)}, 2048")
    K(f"s_mov_b32 {sr(sAoff)}, {sr(sAbase)}")
    for b in range(D - 1): loads(b)
    for b in range(D):
        K(f"v_accvgpr_write_b32 {ar(KB(b)+5)}, {vr(vT+1)}\nv_accvgpr_write_b32 {ar(KB(b)+6)}, 0\nv_accvgpr_write_b32 {ar(KB(b)+7)}, 0")
    for s in range(n):
        for r in range(5, 8): K(f"v_mov_b32 {vr(xQ+s*8+r)}, 0")
    for r in range(16 * n): K(f"v_mov_b32 {vr(xO+r)}, 0")
    for r in range(16): K(f"v_mov_b32 {vr(xP+r)}, 0")
    for r in range(8): K(f"v_accvgpr_write_b32 {ar(KB(D-1)+8+r)}, 0")
    K(f"s_waitcnt vmcnt({4*(D-1)})")
    for s in range(n): K(f"v_cndmask_b32 {vr(xQ+s*8+4)}, {vr(xQ+s*8+4)}, 0, {sr(sTri+32,2)}")
    K("s_nop 0"); K.extend(QK(D - 1, 0, 0))
    for s in range(n):
        if s + 1 < n: K.extend(QK(D - 1, s + 1, (s + 1) & 1))
        K("s_nop 11")
        rowmax(K, range(xS + (s & 1) * 16, xS + (s & 1) * 16 + 16), vM); xhalf(K, vM, "v_max_f32"); setm(s, vM)
    stamp(K, 5, S_WS, 1 << 17)
    K(f"s_mov_b32 {sr(sU)}, {sr(sTrip)}")
    K(f"s_waitcnt vmcnt({4*(D-2)})")
    K.extend(QK(0, 0, 0))
    K("s_nop 11")
    K.label(nm + "_loop")
    T = D * n
    assert T % 2 == 0
    for t in range(T):
        u, s = divmod(t, n); p = t & 1
        un, sn = divmod(t + 1, n); up, sp = divmod(t - 1 + T, n)
        sm = SM(p)
        if sn == 0: K(f"s_waitcnt vmcnt({4*(D-2) - (1 if n == 2 else 0)})")
        ms = QK(un % D, sn, p ^ 1) + PV(up % D, sp, p ^ 1)
        ld = loadl((u - 1) % D)
        at = {(0, 0): ld[0], (0, 1): ld[1], (0, 3): ld[2], (1, 0): ld[3]}
        for q in range(4):
            K(ms[q])
            if (s, q) in at: K(at[(s, q)])
            K.extend(sm[q])
    K(f"s_sub_u32 {sr(sU)}, {sr(sU)}, 1\ns_cmp_lg_u32 {sr(sU)}, 0\ns_cbranch_scc1 {nm}_loop")
    K("s_nop 1")
    K.extend(PV((D - 1), n - 1, (T - 1) & 1))
    stamp(K, 6, S_WS, 1 << 17)
    K(f"""s_mul_i32 {sr(sT0)}, {sr(sQt0)}, {36*1024}
s_add_u32 {sr(sT0)}, {sr(sT0)}, {WS_OAF}
s_lshl_b32 {sr(sT1)}, {sr(sH)}, 10
s_add_u32 {sr(sN)}, {sr(sT1)}, {sr(sT0)}
s_lshr_b32 {sr(sT2)}, {sr(sH)}, 3
s_lshl_b32 {sr(sT2)}, {sr(sT2)}, 10
s_add_u32 {sr(sT0)}, {sr(sT0)}, {sr(sT2)}
s_bfe_u32 {sr(sT2)}, {sr(sH)}, 0x10002
s_lshl_b32 {sr(sT2)}, {sr(sT2)}, 9
s_add_u32 {sr(sT0)}, {sr(sT0)}, {sr(sT2)}
s_and_b32 {sr(sT2)}, {sr(sH)}, 3
s_lshl_b32 {sr(sT2)}, {sr(sT2)}, 2
s_add_u32 {sr(sT0)}, {sr(sT0)}, {sr(sT2)}
s_add_u32 {sr(sFB)}, {sr(sT0)}, {32*1024}
v_mov_b32 {vr(vT+2)}, 0x80000000
v_cndmask_b32 {vr(vT+2)}, {vr(vL16)}, {vr(vT+2)}, {sr(sTri+32,2)}
s_waitcnt vmcnt(0)
s_cmp_eq_u32 {sr(sSplit)}, 0
s_cbranch_scc1 {nm}_fin""")
    K(f"s_mul_i32 {sr(sT0)}, {sr(sWave)}, 24576\nv_add_u32 {vr(vT)}, {sr(sT0)}, {vr(vL16)}")
    for s in range(n):
        for q in range(3): K(f"ds_write_b128 {vr(vT)}, {vr(xO+s*16+4*q,4)} offset:{(s*3+q)*1024}")
    K(f"s_waitcnt lgkmcnt(0)\ns_barrier\ns_mov_b32 {sr(sU)}, 1")
    K.label(nm + "_cmb")
    K(f"""s_xor_b32 {sr(sT0)}, {sr(sWave)}, {sr(sU)}
s_mul_i32 {sr(sT0)}, {sr(sT0)}, 24576
v_add_u32 {vr(vT)}, {sr(sT0)}, {vr(vL16)}""")
    for s0 in range(0, n, 4):
        ss = range(s0, min(n, s0 + 4))
        for s in ss:
            for q in range(3): K(f"ds_read_b128 {vr(xS+(s-s0)*12+4*q,4)}, {vr(vT)} offset:{(s*3+q)*1024}")
        K("s_waitcnt lgkmcnt(0)")
        for s in ss:
            for r in range(11): K(f"v_add_f32 {vr(xO+s*16+r)}, {vr(xO+s*16+r)}, {vr(xS+(s-s0)*12+r)}")
    K(f"""s_add_u32 {sr(sU)}, {sr(sU)}, 1
s_lshr_b32 {sr(sT0)}, {sr(sU)}, {sr(sSplit)}
s_cmp_eq_u32 {sr(sT0)}, 0
s_cbranch_scc1 {nm}_cmb
s_barrier""")
    K.label(nm + "_fin")
    K("s_nop 7")
    for s in range(n):
        o = xO + s * 16
        K(f"s_lshl_b32 {sr(sT0)}, 1, {sr(sSplit)}\ns_sub_u32 {sr(sT0)}, {sr(sT0)}, 1\ns_and_b32 {sr(sT0)}, {sr(sT0)}, {s}")
        K(f"s_cmp_lg_u32 {sr(sT0)}, {sr(sR)}\ns_cbranch_scc1 {nm}_skip{s}")
        check_l(K, [o + 10], f"{nm}_ok{s}")
        K(f"v_mov_b32 {vr(xQ+s*8+5)}, 0\nv_mov_b32 {vr(vL)}, {vr(vNinf)}\ns_mov_b32 {sr(sAoff)}, {sr(sKVbase)}\ns_mov_b32 {sr(sU)}, 64")
        K.label(f"{nm}_f1_{s}")
        loads(0); K("s_waitcnt vmcnt(0)"); K.extend(QK(0, s, 0)); K("s_nop 11"); rowmax(K, range(xS, xS + 16), vL, init=True)
        K(f"s_sub_u32 {sr(sU)}, {sr(sU)}, 1\ns_cmp_lg_u32 {sr(sU)}, 0\ns_cbranch_scc1 {nm}_f1_{s}")
        xhalf(K, vL, "v_max_f32"); setm(s, vL)
        for r in range(16): K(f"v_mov_b32 {vr(o+r)}, 0")
        K(f"s_mov_b32 {sr(sAoff)}, {sr(sKVbase)}\ns_mov_b32 {sr(sU)}, 64")
        K.label(f"{nm}_f2_{s}")
        loads(0); K("s_waitcnt vmcnt(0)"); K.extend(QK(0, s, 0)); K("s_nop 11")
        for g in SM(0): K.extend(g)
        K("s_nop 1"); K.extend(PV(0, s, 0))
        K(f"s_sub_u32 {sr(sU)}, {sr(sU)}, 1\ns_cmp_lg_u32 {sr(sU)}, 0\ns_cbranch_scc1 {nm}_f2_{s}")
        K("s_nop 11")
        K.label(f"{nm}_ok{s}")
        K(f"v_rcp_f32 {vr(o+10)}, {vr(o+10)}\ns_nop 0")
        for r in range(10): K(f"v_mul_f32 {vr(o+r)}, {vr(o+10)}, {vr(o+r)}")
        for r in range(5): K(f"v_cvt_pk_bf16_f32 {vr(o+12+r if r < 4 else o+11)}, {vr(o+2*r)}, {vr(o+2*r+1)}")
        K(f"buffer_store_dwordx4 {vr(o+12,4)}, {vr(vL16)}, {sr(S_WS,4)}, {sr(sN)} offen {STF2}")
        K(f"buffer_store_dword {vr(o+11)}, {vr(vT+2)}, {sr(S_WS,4)}, {sr(sFB)} offen")
        K.label(f"{nm}_skip{s}")
        K(f"s_add_u32 {sr(sN)}, {sr(sN)}, {36*1024}\ns_add_u32 {sr(sFB)}, {sr(sFB)}, {36*1024}")
    K("s_branch k2_B")

ATAB = eval(os.environ.get('ATAB', '[(4,0),(7,1),(3,0),(5,1),(3,1),(4,2),(2,2),None]'))
def dispatchA(K):
    qt = 0
    K(f"""s_lshl_b32 {sr(sKVbase)}, {sr(sH)}, 18
s_add_u32 {sr(sKVbase)}, {sr(sKVbase)}, {WS_KVA}
v_mov_b32 {vr(vT+1)}, 0x3f80""")
    for j, e in enumerate(ATAB):
        if e is None: continue
        n, ls = e
        K(f"""s_cmp_lg_u32 {sr(sJ)}, {j}
s_cbranch_scc1 a_not{j}
s_mov_b32 {sr(sQt0)}, {qt}
s_mov_b32 {sr(sSplit)}, {ls}
s_mov_b32 {sr(sTrip)}, {16 >> ls}
s_and_b32 {sr(sR)}, {sr(sWave)}, {(1 << ls) - 1}
s_mul_i32 {sr(sAbase)}, {sr(sR)}, {(64 >> ls) * 4096}
s_add_u32 {sr(sAbase)}, {sr(sAbase)}, {sr(sKVbase)}
s_branch att{n}
a_not{j}:""")
        qt += n * (4 >> ls)
    assert qt == 64, qt
    K("s_branch k2_B")
    for n in sorted({e[0] for e in ATAB if e}): attnA(K, n)

def wo_job(K):
    vW = 16; vWl = 17; vTr = 18; R0 = 32
    K(f"s_lshl_b32 {sr(sJunk)}, {sr(sWave)}, 13\ns_add_u32 {sr(sJunk)}, {sr(sJunk)}, {JUNK}")
    WOJ = eval(os.environ.get('WOJ', '(0,1,4)'))
    K(f"s_mov_b32 {sr(sT0)}, 3")
    for i, j in enumerate(WOJ): K(f"s_cmp_eq_u32 {sr(sJ)}, {j}\ns_cselect_b32 {sr(sT0)}, {i}, {sr(sT0)}")
    K(f"""s_cmp_eq_u32 {sr(sT0)}, 3
s_cbranch_scc1 k2_B2
s_lshl_b32 {sr(sGw)}, {sr(sT0)}, 5
s_add_u32 {sr(sGw)}, {sr(sGw)}, {sr(sH)}
s_lshl_b32 {sr(sGw)}, {sr(sGw)}, 2
s_add_u32 {sr(sGw)}, {sr(sGw)}, {sr(sWave)}
v_lshrrev_b32 v20, 2, {vr(vLane)}
v_mul_u32_u24 v21, 1152, v20
v_and_b32 v22, 3, {vr(vLane)}
v_lshlrev_b32 v22, 4, v22
v_add_u32 {vr(vW)}, v21, v22
v_bfe_u32 v23, v20, 2, 1
v_lshlrev_b32 v23, 2, v23
v_lshrrev_b32 v24, 3, v20
v_lshlrev_b32 v24, 1, v24
v_add_u32 v23, v23, v24
v_bfe_u32 v24, v20, 1, 1
v_add_u32 v23, v23, v24
v_mul_u32_u24 v23, 18, v23
v_and_b32 v24, 1, v20
v_add_u32 v23, v23, v24
v_add_u32 v23, 16, v23
v_mul_u32_u24 v23, 1152, v23
v_add_u32 {vr(vWl)}, v23, v22
v_lshrrev_b32 v20, 5, {vr(vLane)}
v_lshlrev_b32 {vr(vTr)}, 8, v20
v_bfe_u32 v21, {vr(vLane)}, 2, 2
v_lshlrev_b32 v21, 6, v21
v_add_u32 {vr(vTr)}, {vr(vTr)}, v21
v_bfe_u32 v21, {vr(vLane)}, 4, 1
v_lshlrev_b32 v21, 5, v21
v_add_u32 {vr(vTr)}, {vr(vTr)}, v21
v_and_b32 v21, 3, {vr(vLane)}
v_lshlrev_b32 v21, 3, v21
v_add_u32 {vr(vTr)}, {vr(vTr)}, v21
v_add_u32 {vr(vTr)}, {sr(sJunk)}, {vr(vTr)}""")
    M18 = (1 << 32) // 18 + 1
    dsts = list(range(57, 64)) + [sU, sN, sAoff, sFB, sK, sKf, sMaskK, sDoff]
    jobs = [('B', i) for i in range(12)] + [('M', 0), ('M', 1), ('L', 0)]
    lo = lambda i: i * 1024 if i < 8 else 32768 + (i - 8) * 1024
    for batch in (jobs,):
        for i, (ty, q) in enumerate(batch):
            mul = {'B': 12, 'M': 2, 'L': 1}[ty]
            K(f"s_mul_i32 {sr(sT0)}, {sr(sGw)}, {mul}\ns_add_u32 {sr(sT0)}, {sr(sT0)}, {q}")
            K(f"s_mul_hi_u32 {sr(sT1)}, {sr(sT0)}, {M18}\ns_mul_i32 {sr(sT2)}, {sr(sT1)}, 18\ns_sub_u32 {sr(sT2)}, {sr(sT0)}, {sr(sT2)}")
            rm = {'B': 16, 'M': 18, 'L': 144}[ty]
            d = dsts[i]
            K(f"s_mul_i32 {sr(d)}, {sr(sT2)}, {256*1024 if ty == 'B' else 36*1024}")
            K(f"s_lshl_b32 {sr(sT3)}, {sr(sT1)}, 10\ns_add_u32 {sr(d)}, {sr(d)}, {sr(sT3)}")
            K(f"s_add_u32 {sr(d)}, {sr(d)}, {WS_WOF if ty == 'B' else WS_WOFA + (32*1024 if ty == 'L' else 0)}")
            K(f"s_mul_i32 {sr(sT0)}, {sr(sT1)}, {rm*1152}\ns_lshl_b32 {sr(sT3)}, {sr(sT2)}, 6\ns_add_u32 m0, {sr(sJunk)}, {lo(i)}\ns_add_u32 {sr(sT0)}, {sr(sT0)}, {sr(sT3)}")
            K(f"buffer_load_dwordx4 {vr(vWl if ty == 'L' else vW)}, {sr(S_W2 if ty == 'B' else S_W1,4)}, {sr(sT0)} offen lds")
        K("s_waitcnt vmcnt(0)")
        for i in range(len(batch)):
            K(f"ds_read_b64_tr_b16 {vr(R0+4*i,2)}, {vr(vTr)} offset:{lo(i)}")
            K(f"ds_read_b64_tr_b16 {vr(R0+4*i+2,2)}, {vr(vTr)} offset:{lo(i)+512}")
            if i % 4 == 3: K("s_waitcnt lgkmcnt(4)")
        K("s_waitcnt lgkmcnt(0)")
        for i, job in enumerate(batch):
            if job == ('M', 0): K(f"s_cmp_ge_u32 {sr(sGw)}, 288\ns_cbranch_scc1 k2_B2")
            if job == ('L', 0): K(f"s_cmp_ge_u32 {sr(sGw)}, 72\ns_cbranch_scc1 k2_B2")
            K(f"buffer_store_dwordx4 {vr(R0+4*i,4)}, {vr(vL16)}, {sr(S_WS,4)}, {sr(dsts[i])} offen {STF2}")
        R0 += 32

def srd(K, d, p, size):
    K(f"s_mov_b32 {sr(d)}, {sr(p)}\ns_mov_b32 {sr(d+1)}, {sr(p+1)}\ns_mov_b32 {sr(d+2)}, {size}\ns_mov_b32 {sr(d+3)}, 0x20000")

def build():
    K = Kernel("attn_kernel"); K.force_vgpr = 512
    K(f"""s_cmp_ge_u32 s2, 256
s_cbranch_scc1 k2_exit
s_load_dwordx2 {sr(sPtr,2)}, s[0:1], {KA_AWO}
s_load_dwordx2 {sr(sPtr+2,2)}, s[0:1], {KA_WO}
s_load_dwordx2 {sr(sPtr+4,2)}, s[0:1], {KA_WS}
v_and_b32 {vr(vLane)}, 63, v0
v_lshrrev_b32 {vr(vT)}, 6, v0
v_lshlrev_b32 {vr(vL16)}, 4, {vr(vLane)}
s_and_b32 {sr(sT0)}, s2, 7
s_lshr_b32 {sr(sT1)}, s2, 3
v_readfirstlane_b32 {sr(sWave)}, {vr(vT)}
s_lshr_b32 {sr(sJ)}, {sr(sT1)}, 2
s_sub_u32 {sr(sJ)}, 7, {sr(sJ)}
s_and_b32 {sr(sT1)}, {sr(sT1)}, 3
s_lshl_b32 {sr(sH)}, {sr(sT0)}, 2
s_add_u32 {sr(sH)}, {sr(sH)}, {sr(sT1)}
v_mov_b32 {vr(vNinf)}, 0xff800000
s_mov_b32 {sr(sLo)}, {f32bits(2.0**-64)}
s_mov_b32 {sr(sHi)}, {f32bits(2.0**64)}
v_and_b32 {vr(vD)}, 31, {vr(vLane)}
v_lshlrev_b32 {vr(vKL)}, 2, {vr(vD)}
v_lshrrev_b32 {vr(vT)}, 5, {vr(vLane)}
v_lshlrev_b32 {vr(vT)}, 2, {vr(vT)}
v_sub_u32 {vr(vD)}, {vr(vD)}, {vr(vT)}""")
    for r in range(16): K(f"v_cmp_gt_i32 {sr(sTri+2*r,2)}, {8*(r>>2)+(r&3)}, {vr(vD)}")
    K(f"v_cmp_lt_u32 {sr(sTri+32,2)}, 31, {vr(vLane)}")
    K("s_waitcnt lgkmcnt(0)")
    srd(K, S_WS, sPtr + 4, WS_SIZE); srd(K, S_KV, sPtr + 4, WS_SIZE)
    srd(K, S_W1, sPtr, SZ_AWO); srd(K, S_W2, sPtr + 2, SZ_WO)
    stamp(K, 0, S_WS, 1 << 17)
    if STAMP: K("s_waitcnt vmcnt(0)")
    dispatchA(K)
    K.label("k2_B")
    stamp(K, 7, S_WS, 1 << 17)
    wo_job(K)
    K.label("k2_B2")
    stamp(K, 1, S_WS, 1 << 17)
    attnB(K)
    stamp(K, 4, S_WS, 1 << 17)
    K.label("k2_exit")
    K("s_endpgm")
    return K
```

```python
from dsl import *
from layout import *

S_WS = 8; S_OUT = 12
sWave = 16; sQb = 17; sMc = 18; sT0 = 19; sT1 = 20; sT2 = 21; sC = 22; sW = 24; sN = 28; sOut = 29; sCnt = 30; sPtr = 32
vLane = 1; vL16 = 2; vWr = 3; vRd = 4; vOut = 5; vAcc = 16; vR = 112; vPk = 144
import os
D = 8
VAR = os.environ.get('K3VAR', '')
def frag(b, i): return ar((b * 5 + i) * 4, 4)
def loads(K, b, off):
    for s in range(2): K(f"buffer_load_dwordx4 {frag(b, s)}, {vr(vL16)}, {sr(S_WS,4)}, {sr(sC+s)} offen offset:{off}")
    for m in range(3): K(f"buffer_load_dwordx4 {frag(b, 2+m)}, {vr(vL16)}, {sr(S_WS,4)}, {sr(sW+m)} offen offset:{off}")
def adv(K):
    for r in (sC, sC + 1, sW, sW + 1, sW + 2): K(f"s_add_u32 {sr(r)}, {sr(r)}, 4096")
def mf(b, first):
    out = []
    for s in range(2):
        for m in range(3):
            a = vr(vAcc + (s * 3 + m) * 16, 16)
            out.append(f"v_mfma_f32_32x32x16_bf16 {a}, {frag(b, 2+m)}, {frag(b, s)}, {'0' if first else a}")
    return out
def reduce_store(K):
    K("s_nop 15")
    for blk in range(6):
        for a in range(4):
            K(f"ds_write_b128 {vr(vWr)}, {vr(vAcc+blk*16+a*4,4)} offset:{(blk*4+a)*1024}")
    K("s_waitcnt lgkmcnt(0)\ns_barrier")
    for i in range(3):
        for a in range(2):
            for w in range(4):
                if w < 2: K(f"ds_read_b128 {vr(vAcc+i*32+(a*4+w)*4,4)}, {vr(vRd)} offset:{w*24576 + i*2048 + a*1024}")
                else: K(f"ds_read_b128 {vr(vAcc+i*32+(a*4+w)*4,4)}, {vr(vRd+2)} offset:{(w-2)*24576 + i*2048 + a*1024}")
        if i: K("s_waitcnt lgkmcnt(8)")
    for i in range(3):
        K(f"s_waitcnt lgkmcnt({8 if i == 0 else 0})")
        for a in range(2):
            b = vAcc + i * 32 + a * 16
            for r in range(4):
                K(f"v_add_f32 {vr(b+r)}, {vr(b+r)}, {vr(b+4+r)}\nv_add_f32 {vr(b+8+r)}, {vr(b+8+r)}, {vr(b+12+r)}")
            for r in range(4): K(f"v_add_f32 {vr(b+r)}, {vr(b+r)}, {vr(b+8+r)}")
            for r in range(2): K(f"v_cvt_pk_bf16_f32 {vr(vPk+i*4+a*2+r)}, {vr(b+2*r)}, {vr(b+2*r+1)}")
        K(f"s_nop 1\nv_permlane32_swap_b32 {vr(vPk+i*4)}, {vr(vPk+i*4+2)}\nv_permlane32_swap_b32 {vr(vPk+i*4+1)}, {vr(vPk+i*4+3)}")
        K(f"""s_mul_i32 {sr(sT0)}, {sr(sWave)}, 3
s_add_u32 {sr(sT0)}, {sr(sT0)}, {i}
s_cmp_ge_u32 {sr(sT0)}, 6
s_cselect_b32 {sr(sT1)}, {32*2304 - 6*32}, 0
s_lshl_b32 {sr(sT0)}, {sr(sT0)}, 5
s_add_u32 {sr(sT0)}, {sr(sT0)}, {sr(sT1)}
s_add_u32 {sr(sT0)}, {sr(sT0)}, {sr(sOut)}
buffer_store_dwordx4 {vr(vPk+i*4,4)}, {vr(vOut)}, {sr(S_OUT,4)}, {sr(sT0)} offen""")

def srd(K, d, p, size):
    K(f"s_mov_b32 {sr(d)}, {sr(p)}\ns_mov_b32 {sr(d+1)}, {sr(p+1)}\ns_mov_b32 {sr(d+2)}, {size}\ns_mov_b32 {sr(d+3)}, 0x20000")

def build():
    K = Kernel("oproj_kernel"); K.force_vgpr = 512
    K(f"""s_cmp_ge_u32 s2, 256
s_cbranch_scc1 k3_exit
s_load_dwordx2 {sr(sPtr,2)}, s[0:1], {KA_OUT}
s_load_dwordx2 {sr(sPtr+2,2)}, s[0:1], {KA_WS}
v_and_b32 {vr(vLane)}, 63, v0
v_lshrrev_b32 v6, 6, v0
v_lshlrev_b32 {vr(vL16)}, 4, {vr(vLane)}
s_and_b32 {sr(sT0)}, s2, 7
s_lshr_b32 {sr(sT1)}, s2, 3
v_readfirstlane_b32 {sr(sWave)}, v6
s_and_b32 {sr(sQb)}, {sr(sT1)}, 3
s_lshl_b32 {sr(sT0)}, {sr(sT0)}, 2
s_add_u32 {sr(sQb)}, {sr(sQb)}, {sr(sT0)}
s_lshr_b32 {sr(sMc)}, {sr(sT1)}, 2
v_mul_u32_u24 v7, 24576, v6
v_add_u32 {vr(vWr)}, v7, {vr(vL16)}
v_mul_u32_u24 v7, 6144, v6
v_add_u32 {vr(vRd)}, v7, {vr(vL16)}
v_add_u32 {vr(vRd+2)}, 49152, {vr(vRd)}
v_and_b32 v7, 31, {vr(vLane)}
v_mul_u32_u24 v7, 2304, v7
v_lshrrev_b32 v8, 5, {vr(vLane)}
v_lshlrev_b32 v8, 4, v8
v_add_u32 {vr(vOut)}, v7, v8
s_mul_i32 {sr(sOut)}, {sr(sQb)}, {64*2304}
s_waitcnt lgkmcnt(0)""")
    srd(K, S_WS, sPtr + 2, WS_SIZE); srd(K, S_OUT, sPtr, SZ_OUT)
    stamp(K, 0, S_WS, 2 << 17)
    if STAMP: K("s_waitcnt vmcnt(0)")
    K(f"""s_cmp_ge_u32 {sr(sMc)}, 6
s_cbranch_scc1 k3_A
s_lshl_b32 {sr(sT0)}, {sr(sWave)}, 16
s_lshl_b32 {sr(sC)}, {sr(sQb)}, 19
s_add_u32 {sr(sC)}, {sr(sC)}, {sr(sT0)}
s_add_u32 {sr(sC)}, {sr(sC)}, {WS_CTX}
s_add_u32 {sr(sC+1)}, {sr(sC)}, 262144
s_mul_i32 {sr(sW)}, {sr(sMc)}, {3*262144}
s_add_u32 {sr(sW)}, {sr(sW)}, {sr(sT0)}
s_add_u32 {sr(sW)}, {sr(sW)}, {WS_WOF}
s_add_u32 {sr(sW+1)}, {sr(sW)}, 262144
s_add_u32 {sr(sW+2)}, {sr(sW)}, 524288
s_mul_i32 {sr(sT0)}, {sr(sMc)}, 192
s_add_u32 {sr(sOut)}, {sr(sOut)}, {sr(sT0)}
s_add_u32 {sr(sOut)}, {sr(sOut)}, 1152
s_mov_b32 {sr(sN)}, {64 // D - 1}""")
    if VAR == 'same':
        K(f"s_lshl_b32 {sr(sT0)}, {sr(sWave)}, 16")
        for i, r in enumerate((sC, sC + 1, sW, sW + 1, sW + 2)): K(f"s_add_u32 {sr(r)}, {sr(sT0)}, {WS_CTX + i*262144}")
    if VAR == 'samew':
        K(f"s_lshl_b32 {sr(sT0)}, {sr(sWave)}, 16")
        for i, r in enumerate((sW, sW + 1, sW + 2)): K(f"s_add_u32 {sr(r)}, {sr(sT0)}, {WS_WOF + i*262144}")
    if VAR == 'samec':
        K(f"s_lshl_b32 {sr(sT0)}, {sr(sWave)}, 16")
        for i, r in enumerate((sC, sC + 1)): K(f"s_add_u32 {sr(r)}, {sr(sT0)}, {WS_CTX + i*262144}")
    for b in range(D - 1):
        loads(K, b, (b % 4) * 1024)
        if b % 4 == 3: adv(K)
    for r in range(96): K(f"v_mov_b32 {vr(vAcc+r)}, 0")
    K.label("k3_loop")
    for b in range(D):
        bb = (b + D - 1) % D
        loads(K, bb, (bb % 4) * 1024)
        if bb % 4 == 3: adv(K)
        K(f"s_waitcnt vmcnt({5*(D-1)})")
        K.extend(mf(b, False))
    K(f"s_sub_u32 {sr(sN)}, {sr(sN)}, 1\ns_cmp_lg_u32 {sr(sN)}, 0\ns_cbranch_scc1 k3_loop")
    loads(K, D - 1, 3 * 1024)
    for b in range(D):
        K(f"s_waitcnt vmcnt({5*(D-1-b)})")
        K.extend(mf(b, False))
    stamp(K, 1, S_WS, 2 << 17)
    reduce_store(K)
    K("s_branch k3_end")
    K.label("k3_A")
    K(f"""s_sub_u32 {sr(sMc)}, {sr(sMc)}, 6
s_mul_i32 {sr(sMc)}, {sr(sMc)}, 3
s_mul_i32 {sr(sT0)}, {sr(sMc)}, 192
s_add_u32 {sr(sOut)}, {sr(sOut)}, {sr(sT0)}
s_mov_b32 {sr(sCnt)}, 3""")
    K.label("k3_Aloop")
    K(f"""s_mul_i32 {sr(sT0)}, {sr(sWave)}, {9*1024}
s_mul_i32 {sr(sC)}, {sr(sQb)}, {2*36*1024}
s_add_u32 {sr(sC)}, {sr(sC)}, {sr(sT0)}
s_add_u32 {sr(sC)}, {sr(sC)}, {WS_OAF}
s_add_u32 {sr(sC+1)}, {sr(sC)}, {36*1024}
s_mul_i32 {sr(sW)}, {sr(sMc)}, {3*36*1024}
s_add_u32 {sr(sW)}, {sr(sW)}, {sr(sT0)}
s_add_u32 {sr(sW)}, {sr(sW)}, {WS_WOFA}
s_add_u32 {sr(sW+1)}, {sr(sW)}, {36*1024}
s_add_u32 {sr(sW+2)}, {sr(sW)}, {72*1024}""")
    for b in range(9):
        loads(K, b, (b % 4) * 1024)
        if b % 4 == 3: adv(K)
    for b in range(9):
        K(f"s_waitcnt vmcnt({5*(8-b)})")
        K.extend(mf(b, b == 0))
    stamp(K, 1, S_WS, 2 << 17)
    reduce_store(K)
    K(f"""s_barrier
s_add_u32 {sr(sMc)}, {sr(sMc)}, 1
s_add_u32 {sr(sOut)}, {sr(sOut)}, 192
s_sub_u32 {sr(sCnt)}, {sr(sCnt)}, 1
s_cmp_lg_u32 {sr(sCnt)}, 0
s_cbranch_scc1 k3_Aloop""")
    K.label("k3_end")
    stamp(K, 2, S_WS, 2 << 17)
    K.label("k3_exit")
    K("s_endpgm")
    return K
```

```python
import re, sys, os
sys.setrecursionlimit(100000)

def parse_regs(tok):
    tok = tok.strip()
    neg = tok.lstrip('-')
    m = re.fullmatch(r'abs\((.*)\)', neg)
    if m: neg = m.group(1)
    m = re.fullmatch(r'\|(.*)\|', neg)
    if m: neg = m.group(1)
    m = re.fullmatch(r'([vas])(\d+)', neg)
    if m: return {(m.group(1), int(m.group(2)))}
    m = re.fullmatch(r'([vas])\[(\d+):(\d+)\]', neg)
    if m: return {(m.group(1), i) for i in range(int(m.group(2)), int(m.group(3)) + 1)}
    if neg in ('vcc', 'vcc_lo', 'vcc_hi'): return {('vcc', 0)}
    if neg in ('exec', 'exec_lo', 'exec_hi'): return {('exec', 0)}
    if neg == 'm0': return {('m0', 0)}
    return set()

TRANS = ('v_exp_f32', 'v_log_f32', 'v_rcp_f32', 'v_rsq_f32', 'v_sqrt_f32', 'v_sin_f32', 'v_cos_f32')

class Ins:
    def __init__(self, text):
        self.text = text
        t = text.split(';')[0].strip()
        self.label = None
        if t.endswith(':'):
            self.label = t[:-1]; self.mn = None; return
        parts = t.split(None, 1)
        self.mn = mn = parts[0]
        rest = parts[1] if len(parts) > 1 else ''
        ops = [x.strip() for x in rest.split(',')] if rest else []
        mods = []
        if ops:
            last = ops[-1].split()
            if last:
                ops[-1] = last[0]; mods = last[1:]
        self.ops, self.mods = ops, mods
        R = lambda i: parse_regs(ops[i]) if i < len(ops) else set()
        self.w = set(); self.r = set()
        self.kind = 'other'
        self.srcC = set(); self.srcAB = set(); self.addr = set(); self.data = set()
        self.target = None
        base = re.sub(r'_e(32|64)$', '', mn)
        self.base = base
        if mn.startswith('v_mfma'):
            self.kind = 'mfma'; self.w = R(0); self.srcAB = R(1) | R(2); self.srcC = R(3)
            self.r = self.srcAB | self.srcC
            self.passes = 8 if '32x32x16' in mn else 4
        elif mn.startswith('v_'):
            self.kind = 'valu'
            if base.startswith('v_cmp'):
                self.w = R(0); self.r = set().union(*[R(i) for i in range(1, len(ops))])
                if base.startswith('v_cmpx'): self.w |= {('exec', 0)}
            elif base.startswith('v_permlane32_swap') or base.startswith('v_permlane16_swap') or base == 'v_swap_b32':
                self.w = R(0) | R(1); self.r = R(0) | R(1)
            elif '_co_' in base:
                self.w = R(0) | R(1); self.r = set().union(*[R(i) for i in range(2, len(ops))])
            else:
                self.w = R(0); self.r = set().union(*[R(i) for i in range(1, len(ops))]) if len(ops) > 1 else set()
                if base in ('v_fmac_f32', 'v_writelane_b32') or 'UNUSED_PRESERVE' in t: self.r |= R(0)
                if base == 'v_cndmask_b32' and len(ops) == 3: self.r |= {('vcc', 0)}
            self.trans = base in TRANS
        elif mn.startswith('ds_'):
            self.kind = 'ds'
            if 'read' in mn or 'bpermute' in mn or 'swizzle' in mn:
                self.w = R(0); self.r = set().union(*[R(i) for i in range(1, len(ops))]); self.addr = self.r
            else:
                self.r = set().union(*[R(i) for i in range(len(ops))]); self.addr = R(0); self.data = self.r - self.addr
        elif mn.startswith('buffer_') or mn.startswith('global_'):
            self.kind = 'vmem'
            if mn in ('buffer_wbl2', 'buffer_inv'):
                pass
            elif 'load' in mn:
                if 'lds' in mods or 'load_lds' in mn:
                    self.r = set().union(*[R(i) for i in range(len(ops))]) | {('m0', 0)}; self.dma = True
                else:
                    self.w = R(0); self.r = set().union(*[R(i) for i in range(1, len(ops))])
                    if '; junk' in text: self.junk = self.w; self.w = set()
            elif 'atomic' in mn:
                self.r = set().union(*[R(i) for i in range(len(ops))])
                if 'sc0' in mods: self.w = R(0)
            else:
                self.r = set().union(*[R(i) for i in range(len(ops))])
                self.data = R(0) if mn.startswith('buffer_') else R(1)
        elif mn.startswith('s_'):
            self.kind = 'salu'
            if mn.startswith('s_load') or mn.startswith('s_buffer_load') or mn in ('s_memtime', 's_memrealtime'):
                self.kind = 'smem'; self.w = R(0); self.r = set().union(*[R(i) for i in range(1, len(ops))]) if len(ops) > 1 else set()
            elif mn.startswith('s_cmp') or mn.startswith('s_bitcmp'):
                self.r = R(0) | R(1); self.w = {('scc', 0)}
            elif mn.startswith('s_cbranch') or mn == 's_branch':
                self.kind = 'branch'; self.target = ops[0]
            elif mn in ('s_waitcnt', 's_barrier', 's_nop', 's_endpgm', 's_setprio', 's_sleep'):
                self.kind = mn
            else:
                self.w = R(0); self.r = set().union(*[R(i) for i in range(1, len(ops))]) if len(ops) > 1 else set()
                if 'saveexec' in mn: self.w |= {('exec', 0)}; self.r |= {('exec', 0)}
        self.ws = 1
        if mn == 's_nop': self.ws = int(ops[0], 0) + 1
        if mn == 's_waitcnt':
            self.vm = self.lg = None
            m = re.search(r'vmcnt\((\d+)\)', t); self.vm = int(m.group(1)) if m else None
            m = re.search(r'lgkmcnt\((\d+)\)', t); self.lg = int(m.group(1)) if m else None

def vregs(s): return {x for x in s if x[0] in 'va'}
def sregs(s): return {x for x in s if x[0] in ('s', 'vcc')}

def need(p, c):
    n = 0
    if p.kind == 'valu':
        if c.kind == 'mfma' and vregs(p.w) & c.r: n = max(n, 2)
        if c.kind == 'mfma' and ('exec', 0) in p.w: n = max(n, 4)
        if c.kind == 'valu':
            if p.trans and not c.trans and (p.w & c.r): n = max(n, 1)
            if c.base.startswith('v_permlane') and (vregs(p.w) & c.r): n = max(n, 2)
            if c.base in ('v_readfirstlane_b32', 'v_readlane_b32') and (vregs(p.w) & c.r): n = max(n, 1)
            if sregs(p.w) & c.r: n = max(n, 2)
            if 'dpp' in c.text and (vregs(p.w) & c.r): n = max(n, 2)
            if 'sdwa' in p.text and (p.w & (c.r | c.w)): n = max(n, 1)
        if c.kind == 'vmem' and (sregs(p.w) & c.r): n = max(n, 5)
    if p.kind == 'mfma':
        P = p.passes
        big = {4: 8, 8: 12}[P]
        if c.kind == 'mfma':
            if p.w & c.srcAB: n = max(n, big)
            if p.w & c.srcC:
                if not (p.w == c.srcC and c.passes == P): n = max(n, {4: 6, 8: 10}[P])
            if (p.w & c.w) and not (p.w == c.w): n = max(n, big)
        elif c.kind in ('valu', 'ds', 'vmem'):
            if p.w & (c.r | c.w): n = max(n, big)
            if c.kind == 'valu' and (p.srcC & c.w): n = max(n, {4: 3, 8: 7}[P])
            if c.kind in ('ds', 'vmem') and (p.srcC & c.w): n = max(n, {4: 3, 8: 7}[P])
    if p.kind == 'salu' and ('m0', 0) in p.w and c.kind == 'vmem' and ('m0', 0) in c.r: n = max(n, 1)
    if p.kind in ('vmem', 'ds') and p.data and len(p.data) >= 3 and c.kind in ('valu', 'mfma') and (p.data & c.w): n = max(n, 2)
    return n

class Kernel:
    def __init__(self, name):
        self.name = name; self.ins = []
    def __call__(self, text):
        for line in text.split('\n'):
            line = line.strip()
            if not line or line.startswith(';'): continue
            self.ins.append(Ins(line))
    def label(self, name): self.ins.append(Ins(name + ':'))
    def extend(self, lst):
        for x in lst: self(x)
    def cfg(self):
        ins = self.ins; lab = {x.label: i for i, x in enumerate(ins) if x.label}
        succ = []
        for i, x in enumerate(ins):
            s = []
            if x.label is None and x.mn == 's_endpgm': pass
            elif x.label is None and x.kind == 'branch':
                s.append(lab[x.target])
                if x.mn != 's_branch': s.append(i + 1)
            else: s.append(i + 1)
            succ.append([t for t in s if t < len(ins)])
        return succ
    def check_hazards(self):
        ins = self.ins; succ = self.cfg(); pred = [[] for _ in ins]
        for i, s in enumerate(succ):
            for t in s: pred[t].append(i)
        errs = []; self.deficit = {}
        for i, c in enumerate(ins):
            if c.label or c.kind not in ('valu', 'mfma', 'ds', 'vmem'): continue
            seen = {}
            stack = [(p, 0) for p in pred[i]]
            while stack:
                j, d = stack.pop()
                if seen.get(j, 99) <= d: continue
                seen[j] = d
                p = ins[j]
                if p.label is None:
                    n = need(p, c)
                    if n > d:
                        errs.append(f"HAZARD need {n} have {d}: [{j}] {p.text}  ->  [{i}] {c.text}")
                        self.deficit[i] = max(self.deficit.get(i, 0), n - d)
                    d2 = d + p.ws
                else: d2 = d
                if d2 < 13:
                    for q in pred[j]: stack.append((q, d2))
        return errs
    def auto_nop(self):
        tot = 0
        while self.check_hazards():
            i = min(self.deficit);
            done = -100
            for i in sorted(self.deficit):
                pass
            shift = 0; lastpad = -100
            for i in sorted(self.deficit):
                if i - lastpad < 14: continue
                self.ins.insert(i + shift, Ins(f"s_nop {self.deficit[i] - 1}")); shift += 1; lastpad = i; tot += 1
        return tot
    def check_waits(self, limit=400000):
        ins = self.ins; succ = self.cfg(); errs = set(); seen = set()
        stack = [(0, (), ())]; steps = 0
        while stack:
            i, vm, lg = stack.pop()
            while True:
                key = (i, vm, lg)
                x = ins[i]
                if x.label is not None or (i > 0 and ins[i-1].label is None and ins[i-1].kind == 'branch'):
                    if key in seen: break
                    seen.add(key)
                steps += 1
                if steps > limit * 50: return list(errs) + ["wait check step limit"]
                if x.label is None:
                    touched = x.r | x.w
                    for nm, q in (('vm', vm), ('lgkm', lg)):
                        for ent in q:
                            if ent and (touched & ent):
                                errs.add(f"WAIT({nm}) pending load regs used at [{i}] {x.text}")
                    if x.kind == 'vmem': vm = (vm + (frozenset(x.w),))[-64:]
                    elif x.kind == 'ds': lg = (lg + (frozenset(x.w),))[-16:]
                    elif x.kind == 'smem': lg = lg + (frozenset(x.w), frozenset())
                    elif x.kind == 's_waitcnt':
                        if x.vm is not None: vm = vm[len(vm) - x.vm:] if x.vm and len(vm) > x.vm else (vm if x.vm else ())
                        if x.lg is not None: lg = lg[len(lg) - x.lg:] if x.lg and len(lg) > x.lg else (lg if x.lg else ())
                s = succ[i]
                if not s: break
                for t in s[1:]: stack.append((t, vm, lg))
                i = s[0]
        return sorted(errs)
    def text(self):
        out = []
        for x in self.ins:
            out.append(x.text if x.label else x.text.replace(' ; junk', '').replace(', ', ',').rstrip())
        return '\n'.join(out) + '\n'
    def maxregs(self):
        mv = ma = ms = -1
        for x in self.ins:
            if x.label: continue
            for k, n in (x.r | x.w | getattr(x, 'junk', set())):
                if k == 'v': mv = max(mv, n)
                elif k == 'a': ma = max(ma, n)
                elif k == 's': ms = max(ms, n)
        return mv, ma, ms

def vr(b, n=1, f='v'):
    return f"{f}{b}" if n == 1 else f"{f}[{b}:{b+n-1}]"
def ar(b, n=1): return vr(b, n, 'a')
def sr(b, n=1): return vr(b, n, 's')

def interleave(mfmas, fillers, budget=24, costs=None):
    out = []; fi = 0; n = len(mfmas)
    rem_cost = sum(f[2] for f in fillers)
    for i, m in enumerate(mfmas):
        out.append(m)
        used = 0
        while fi < len(fillers):
            e, t, c = fillers[fi]
            if e > i: break
            if used + c > budget and used > 0 and i < n - 1: break
            out.append(t); used += c; fi += 1
    assert fi == len(fillers), "unplaced fillers"
    return out

import subprocess, tempfile
PROMO = ('v_exp_f32', 'v_add_f32', 'v_mov_b32', 'v_mul_f32', 'v_sub_f32', 'v_max_f32', 'v_add_u32', 'v_rcp_f32')
def sizes(k):
    with tempfile.TemporaryDirectory() as d:
        open(d + '/a.s', 'w').write('.amdgcn_target "amdgcn-amd-amdhsa--gfx950"\n.text\n' + k.ext + f"{k.name}:\n" + k.text())
        subprocess.run(["clang", "-x", "assembler", "-target", "amdgcn-amd-amdhsa", "-mcpu=gfx950", "-c", d + '/a.s', "-o", d + '/a.o'], check=True)
        out = subprocess.run(["llvm-objdump", "-d", "--mcpu=gfx950", d + '/a.o'], capture_output=True, text=True).stdout
    sz = [4 * len(l.split('//')[1].split(':')[1].split()) for l in out.split('\n') if '//' in l and ':' in l.split('//')[1]]
    real = [x for x in k.ins if not x.label]
    assert len(sz) == len(real), (len(sz), len(real))
    it = iter(sz)
    return [0 if x.label else next(it) for x in k.ins]
def align8(k):
    sz = sizes(k); off = 0; cand = None; fixed = left = 0; i = 0
    while i < len(k.ins):
        x = k.ins[i]
        if x.label:
            if x.label in getattr(k, 'hot', ()) and off % 8:
                k.ins.insert(i, Ins("s_nop 0")); sz.insert(i, 4); off += 4; i += 1
            cand = None if x.label in getattr(k, 'hot', ()) else cand
        elif sz[i] == 8:
            if off % 8:
                if cand is not None:
                    c = k.ins[cand]; k.ins[cand] = Ins(c.text.replace(c.mn, c.mn + '_e64', 1)); sz[cand] = 8; off += 4; fixed += 1
                else: left += 1
            cand = None; off += 8
        else:
            if x.mn in PROMO: cand = i
            off += sz[i]
        i += 1
    return fixed, left

def finish(kernels, header, fname):
    s = header
    s += '.amdgcn_target "amdgcn-amd-amdhsa--gfx950"\n.text\n'
    ok = True
    for k in kernels:
        n = k.auto_nop()
        if n: print(k.name, "padded", n, "hazards")
        k.ext = ''.join(f"{n}:\n" for n in ("code_begin", "code_end") + tuple(o.name for o in kernels if o is not k))
        if os.environ.get("ALIGN", "1") == "1": print(k.name, "aligned / left:", align8(k))
        e = k.check_hazards() + k.check_waits()
        for x in e[:12]: print(k.name, x)
        if e: ok = False; print(k.name, len(e), "problems")
        s += f".globl {k.name}\n.p2align 8\n.type {k.name},@function\n{k.name}:\n" + k.text()
    s += 'code_end:\n.section .rodata,"a"\n'
    for k in kernels:
        mv, ma, ms = k.maxregs()
        acc = ((mv + 1 + 3) // 4) * 4
        if ma >= 0: acc = 256 if getattr(k, 'full', True) else acc
        nfv = acc + ma + 1 if ma >= 0 else mv + 1
        if getattr(k, 'force_vgpr', None): nfv = k.force_vgpr; acc = 256
        s += f""".p2align 6
.amdhsa_kernel {k.name}
  .amdhsa_next_free_vgpr {nfv}
  .amdhsa_next_free_sgpr {max(ms + 1, 16)}
  .amdhsa_accum_offset {acc}
  .amdhsa_group_segment_fixed_size 0
  .amdhsa_kernarg_size 96
  .amdhsa_user_sgpr_count 2
  .amdhsa_user_sgpr_kernarg_segment_ptr 1
  .amdhsa_system_sgpr_workgroup_id_x 1
.end_amdhsa_kernel
"""
        print(f"{k.name}: {sum(1 for x in k.ins if not x.label)} instrs, v{mv} a{ma} s{ms} nfv={nfv} acc={acc}")
    open(fname, 'w').write(s)
    print(fname, len(s), "bytes", "OK" if ok else "WITH PROBLEMS")
    return ok

import os
STAMP = os.environ.get("STAMP", "0") == "1"
WS_STAMP = 120 << 20
def stamp(K, idx, srd, base=0):
    if not STAMP: return
    K(f"""s_memtime s[98:99]
s_memrealtime s[100:101]
s_waitcnt lgkmcnt(0)
v_mov_b32 v14, s98
v_mov_b32 v15, s100
v_lshrrev_b32 v13, 6, v0
v_lshl_add_u32 v13, s2, 2, v13
v_lshlrev_b32 v13, 7, v13
v_add_u32 v13, {WS_STAMP + base + idx*8}, v13
buffer_store_dwordx2 v[14:15], v13, s[{srd}:{srd+3}], 0 offen""")

def dstamp(K, sidx, srd, base):
    if not STAMP or os.environ.get("DST", "0") != "1": return
    K(f"""s_memtime s[98:99]
s_and_b32 s100, s{sidx}, 31
s_lshl_b32 s100, s100, 2
s_waitcnt lgkmcnt(0)
v_mov_b32 v14, s98
v_lshrrev_b32 v13, 6, v0
v_lshl_add_u32 v13, s2, 2, v13
v_lshlrev_b32 v13, 7, v13
v_add_u32 v13, {WS_STAMP + base}, v13
buffer_store_dword v14, v13, s[{srd}:{srd+3}], s100 offen""")

def code_prefetch(K, sT, vA, vJ, upto, lanes16, wavereg):
    nm = K.name
    K(f"""s_getpc_b64 s[{sT}:{sT+1}]
{nm}_pc:
s_lshr_b32 s{sT+2}, s2, 3
s_lshl_b32 s{sT+2}, s{sT+2}, 2
s_add_u32 s{sT+2}, s{sT+2}, s{wavereg}
s_lshl_b32 s{sT+2}, s{sT+2}, 10
v_add_u32 v{vA}, s{sT+2}, v{lanes16}
v_min_u32 v{vA}, {upto}-{nm}_pc-16, v{vA}
v_and_b32 v{vA}, -4, v{vA}
global_load_dwordx4 v[{vJ}:{vJ+3}], v{vA}, s[{sT}:{sT+1}] ; junk""")
```

```python
from dsl import *
from layout import *

SLOT = 36864
XST = 65536
import os
PFMODE = os.environ.get('PF', '1')
ROTM = int(os.environ.get('ROTM', '3')); ROTS = int(os.environ.get('ROTS', '2'))
DIAG = os.environ.get('DIAG', '')
STF = os.environ.get('STF', 'sc1')
S_ACT = 8; S_W = 12; S_WS = 16; S_WSX = 20
sWave = 24; sTb = 25; sChunk = 26; sCb = 27; sCbEnd = 28; sWstride16 = 29
sWbase = 30
sWcolStep = 31; sOutBase = 32; sHS = 33; sDS = 34; sScale = 35
sT0 = 36; sT1 = 37; sT2 = 38; sT3 = 39
sSlotR = 40
sSlotW = 41
sWoff = 42
sOut = 43; sWsize = 44; sActStride = 45; sActBase = 46; sPf = 47; sAc = 48; sPart = 76; sUS = 77; sRot = 78; sCb0 = 79; sMask = 80; sRow = 81; sPfN = 82; S_PF = 84; S_ZERO = 88; sPfCol = 83; sColMask = 92; sPfRun = 93; sRow4 = 94; sKt0 = 49; sGw = 50
sPfOff = 51; sPtr = 52
vPF = 30; vXW = 11; vJunk = 160; vLane = 1; vW = 16; vT = 17; vLaneT = 19; vO = 20; vXD = 24; vXR = 26; vWF = 32; vAcc = 48; vP = 112; vXV = 128

def srd(K, d, p, size):
    K(f"s_mov_b32 {sr(d)}, {sr(p)}\ns_mov_b32 {sr(d+1)}, {sr(p+1)}\ns_mov_b32 {sr(d+2)}, {size}\ns_mov_b32 {sr(d+3)}, 0x20000")

def xfrag(s, k):
    return ar((s * 32 + k) * 4, 4) if k < 32 else vr(vXV + (s * 4 + k - 32) * 4, 4)

def dma_slab(KD, NS):
    g = []
    for n in range(NS // 4):
        t = f"s_add_u32 m0, {sr(sSlotW)}, {n*1024}\n"
        if n: t += f"s_add_u32 {sr(sWoff)}, {sr(sWoff)}, {sr(sWstride16)}\n"
        else: t += "s_nop 0\n"
        t += f"buffer_load_dwordx4 {vr(vW)}, {sr(S_W,4)}, {sr(sWoff)} offen lds"
        g.append(t)
    return g

def slab_setup():
    return f"""s_add_u32 {sr(sWoff)}, {sr(sPf)}, {sr(sRot)}
s_and_b32 {sr(sWoff)}, {sr(sWoff)}, {sr(sMask)}
s_or_b32 {sr(sWoff)}, {sr(sWoff)}, {sr(sCb0)}
s_mul_i32 {sr(sWoff)}, {sr(sWoff)}, {sr(sWcolStep)}
s_add_u32 {sr(sWoff)}, {sr(sWoff)}, {sr(sWbase)}
s_cmp_lt_u32 {sr(sPf)}, {sr(sCbEnd)}
s_cselect_b32 {sr(S_W+2)}, {sr(sWsize) if 'nodma' not in DIAG else 0}, 0
s_add_u32 {sr(sPf)}, {sr(sPf)}, 1"""

def slab_done(SLOT):
    return f"""s_add_u32 {sr(sSlotW)}, {sr(sSlotW)}, {SLOT}
s_sub_u32 {sr(sT0)}, {sr(sSlotW)}, {4*SLOT}
s_cmp_ge_u32 {sr(sSlotW)}, {4*SLOT}
s_cselect_b32 {sr(sSlotW)}, {sr(sT0)}, {sr(sSlotW)}"""

def av_offsets(k):
    return [
     f"s_lshl_b32 {sr(sT1)}, {sr(sT1)}, 5",
     f"v_and_b32 v2, 31, {vr(vLane)}",
     f"v_add_u32 v2, {sr(sT1)}, v2",
     f"v_mul_u32_u24 v3, 3641, v2",
     f"v_lshrrev_b32 v3, 16, v3",
     f"v_mul_u32_u24 v4, 18, v3",
     f"v_sub_u32 v2, v2, v4",
     f"v_lshlrev_b32 v3, 18, v3",
     f"v_lshlrev_b32 v2, 4, v2",
     f"v_add_u32 v2, v2, v3",
     f"v_lshrrev_b32 v3, 5, {vr(vLane)}",
     f"v_lshlrev_b32 v3, 9, v3",
     f"v_add_u32 {vr(vO)}, v2, v3",
     f"v_add_u32 {vr(vO+1)}, 1024, {vr(vO)}",
     f"v_add_u32 {vr(vO+2)}, 4096, {vr(vO)}",
     f"v_add_u32 {vr(vO+3)}, 5120, {vr(vO)}",
    ]

def epilogue(par, scale, av):
    e = []
    e.append((f"s_sub_u32 {sr(sT1)}, {sr(sCb)}, 1", 4))
    e += [(x, 4) for x in [f"s_add_u32 {sr(sT1)}, {sr(sT1)}, {sr(sRot)}", f"s_and_b32 {sr(sT1)}, {sr(sT1)}, {sr(sMask)}", f"s_or_b32 {sr(sT1)}, {sr(sT1)}, {sr(sCb0)}"]]
    if av:
        e.append((f"s_mov_b32 {sr(sOut)}, {sr(sOutBase)}", 4))
        e += [(x, 4) for x in av_offsets(0)]
    else:
        e += [(x, 4) for x in [
            f"s_lshr_b32 {sr(sT2)}, {sr(sT1)}, 2", f"s_mul_i32 {sr(sT2)}, {sr(sT2)}, {sr(sHS)}",
            f"s_and_b32 {sr(sT1)}, {sr(sT1)}, 3", f"s_mul_i32 {sr(sT1)}, {sr(sT1)}, {sr(sDS)}",
            f"s_add_u32 {sr(sOut)}, {sr(sT1)}, {sr(sT2)}", f"s_add_u32 {sr(sOut)}, {sr(sOut)}, {sr(sOutBase)}"]]
    nscal = len(e)
    for s in range(2):
        a = vAcc + par * 32 + s * 16
        for t in range(2):
            if scale:
                for r in range(8): e.append((f"v_mul_f32 {vr(a+8*t+r)}, {sr(sScale)}, {vr(a+8*t+r)}", 4))
            for r in range(4):
                e.append((f"v_cvt_pk_bf16_f32 {vr(vP+(s*2+t)*4+r)}, {vr(a+8*t+2*r)}, {vr(a+8*t+2*r+1)}", 4))
            e.append((f"buffer_store_dwordx4 {vr(vP+(s*2+t)*4,4)}, {vr(vO+s*2+t)}, {sr(S_WSX,4)}, {sr(sOut)} offen {STF}", 16))
    return e, nscal

def wreads(k, par):
    r = vWF + (k & 3) * 4
    return [f"ds_read_b64_tr_b16 {vr(r,2)}, {vr(vT+par)} offset:{k*1024}",
            f"ds_read_b64_tr_b16 {vr(r+2,2)}, {vr(vT+par)} offset:{k*1024+256}"]

def mfma(k, s, par, order):
    a = vr(vAcc + par * 32 + s * 16, 16); w = vr(vWF + (k & 3) * 4, 4); x = xfrag(s, k)
    c = a if k else "0"
    return f"v_mfma_f32_32x32x16_bf16 {a}, {w}, {x}, {c}" if order == 'T' else f"v_mfma_f32_32x32x16_bf16 {a}, {x}, {w}, {c}"

def body(K, NS, order, par, scale, av):
    epi, nscal = epilogue(par ^ 1, scale, av)
    SLOT = geom(NS)[0]
    ND = NS // 4
    su = slab_setup().split('\n'); sd = slab_done(SLOT).split('\n')
    mem = {}; pre = {}
    pre[0] = su[:4]; pre[1] = su[4:]
    NP = 2 if NS == 32 else 3
    dsteps = list(range(1, 2 * ND, 2)); psteps = list(range(2 * ND + 1, 2 * ND + 1 + 2 * NP, 2)); ssteps = [k for k in range(2 * ND, NS - 3) if k not in psteps]
    for n, k in enumerate(dsteps):
        g = dma_slab(None, NS)[n].split('\n')
        pre.setdefault(2 * k, []).extend(x for x in g[:2] if x != "s_nop 0"); mem[2 * k + 1] = g[2]
    pre.setdefault(2 * dsteps[-1] + 2, []).extend(sd)
    p0 = 2 * psteps[0]
    if par == 1:
        pre.setdefault(p0 - 3, []).extend([f"s_add_u32 {sr(sPfCol)}, {sr(sPfCol)}, 256", f"s_and_b32 {sr(sPfCol)}, {sr(sPfCol)}, {sr(sColMask)}",
                                           f"s_sub_u32 {sr(sPfN)}, {sr(sPfN)}, 1"])
        pre.setdefault(p0 - 1, []).extend([f"s_cmp_ge_i32 {sr(sPfN)}, 0", f"s_cselect_b32 {sr(S_PF+2)}, {sr(sWsize)}, 0"])
        pre.setdefault(p0, []).append(f"s_add_u32 {sr(sPfRun)}, {sr(sPfOff)}, {sr(sPfCol)}")
    for n, k in enumerate(psteps):
        mem[2 * k + 1] = f"buffer_load_dwordx4 {vr(vJunk+4*n,4)}, {vr(vPF)}, {sr(S_PF,4)}, {sr(sPfRun)} offen ; junk"
        step = sRow4 if not (NS == 36 and n == NP - 1) else sRow
        pre.setdefault(2 * k + 2, []).append(f"s_add_u32 {sr(sPfRun)}, {sr(sPfRun)}, {sr(step)}")
    q = [e for e in epi if not e[0].startswith("buffer_store")]; st = [e for e in epi if e[0].startswith("buffer_store")]; log = []
    for k in range(NS):
        K("s_waitcnt lgkmcnt(4)")
        for s in range(2):
            g = 2 * k + s
            K(mfma(k, s, par, order))
            room = 24
            if s == 0:
                if k == NS - 3:
                    assert not q and not st
                    last = max(i for i, x in enumerate(log) if x == 'D')
                    K(f"s_waitcnt vmcnt({len(log) - 1 - last + len(log)})\ns_barrier")
                kk = k + 3
                for r in (wreads(kk, par) if kk < NS else wreads(kk - NS, par ^ 1)): K(r)
                room -= 10
            else:
                room -= 4
                if g in mem: K(mem[g]); room -= 16; log.append('D' if 'lds' in mem[g] else 'P')
                elif st and not q and k in ssteps: K(st.pop(0)[0]); room -= 16; log.append('S')
            for x in pre.get(g, []): K(x); room -= 4
            if k == NS - 4 and s == 1:
                K(f"s_add_u32 {sr(sSlotR)}, {sr(sSlotR)}, {SLOT}\ns_cmp_ge_u32 {sr(sSlotR)}, {4*SLOT}\ns_cselect_b32 {sr(sSlotR)}, 0, {sr(sSlotR)}")
                K(f"v_add_u32 {vr(vT+(par^1))}, {sr(sSlotR)}, {vr(vLaneT)}")
            while q and g >= 3 and not q[0][0].startswith("buffer_store") and q[0][1] <= room:
                t, c = q.pop(0); K(t); room -= c
    K(f"s_add_u32 {sr(sCb)}, {sr(sCb)}, 1")
    dstamp(K, sCb, S_WS, 3 << 17)
    last = max(i for i, x in enumerate(log) if x == 'D')
    return len(log) - 1 - last

def tail(K, par, scale, av):
    stamp(K, 2, S_WS)
    K("s_nop 15")
    epi, _ = epilogue(par, scale, av)
    for t, c in epi: K(t)

XPF = int(os.environ.get('XPF', '2'))
LC = int(os.environ.get('LC', '3'))
PFAT = int(os.environ.get('PFAT', '2'))
def geom(NS):
    return (32768, 65536, 3) if NS == 32 else (36864, 73728, 2)

def xprologue(K, NS, order_, scale, av):
    NC = NS // 4
    SL, XB, NX = geom(NS)
    order = []
    def issue(c):
        K(f"s_add_u32 {sr(sT0)}, {sr(sActBase)}, {c*128}")
        for n in range(8):
            K(f"s_add_u32 m0, {sr(sT3)}, {(c%NX)*8192 + n*1024}")
            if n: K(f"s_add_u32 {sr(sT0)}, {sr(sT0)}, {sr(sActStride)}")
            else: K("s_nop 0")
            K(f"buffer_load_dwordx4 {vr(vXD+(n&1))}, {sr(S_ACT,4)}, {sr(sT0)} offen lds")
            order.append(('x', c))
    def slab(i):
        K(slab_setup())
        for g in dma_slab(None, NS): K(g); order.append(('w', i))
        K(slab_done(SL))
    def upto(tag): return len(order) - 1 - max(i for i, o in enumerate(order) if o == tag)
    K(f"s_mul_i32 {sr(sT3)}, {sr(sWave)}, {NX*8192}")
    K(f"s_add_u32 {sr(sT3)}, {sr(sT3)}, {XB}")
    def xpf():
        K(f"""s_lshr_b32 {sr(sT1)}, s2, 3
s_and_b32 {sr(sT1)}, {sr(sT1)}, {(1 << LC) - 1}
s_lshl_b32 {sr(sT1)}, {sr(sT1)}, 2
s_add_u32 {sr(sT1)}, {sr(sT1)}, {sr(sWave)}
s_lshl_b32 {sr(sT2)}, {sr(sTb)}, {LC + 2}
s_add_u32 {sr(sT1)}, {sr(sT1)}, {sr(sT2)}
s_mul_i32 {sr(sT1)}, {sr(sT1)}, {(64 >> LC) * NS * 32}
v_lshlrev_b32 v2, 4, {vr(vLane)}""")
        for n in range(((64 >> LC) * NS * 32 + 1023) // 1024):
            K(f"buffer_load_dwordx4 {vr(vJunk+4*n,4)}, v2, {sr(S_ACT,4)}, {sr(sT1)} offen offset:{(n%4)*1024} ; junk"); order.append(('q', n))
            if n % 4 == 3: K(f"s_add_u32 {sr(sT1)}, {sr(sT1)}, 4096")
    if XPF == 1: xpf()
    if XPF == 2: slab(0); xpf(); issue(0)
    else: issue(0); slab(0)
    for c in range(1, NX): issue(c)
    for i in range(4): K(f"v_add_u32 {vr(vXR+i)}, {sr(sT3)}, {vr(vXR+i)}")
    K(f"""s_lshr_b32 {sr(sRow)}, {sr(sWstride16)}, 4
s_lshr_b32 {sr(sRow4)}, {sr(sWstride16)}, 2
s_lshr_b32 {sr(sPfOff)}, {sr(sKt0)}, 1
s_mul_i32 {sr(sPfOff)}, {sr(sPfOff)}, {NS//2}
s_mul_i32 {sr(sPfOff)}, {sr(sPfOff)}, {sr(sRow)}
s_mul_i32 {sr(sT1)}, {sr(sCb)}, {sr(sWcolStep)}
s_add_u32 {sr(sPfOff)}, {sr(sPfOff)}, {sr(sT1)}
s_add_u32 {sr(sPfOff)}, {sr(sPfOff)}, {sr(sPart)}
s_mov_b32 {sr(S_PF)}, {sr(S_W)}
s_mov_b32 {sr(S_PF+1)}, {sr(S_W+1)}
s_mov_b32 {sr(S_PF+2)}, {sr(sWsize) if PFMODE == '1' else 0}
s_mov_b32 {sr(S_PF+3)}, 0x20000
s_sub_u32 {sr(sPfN)}, {sr(sCbEnd)}, {sr(sCb)}
s_mul_i32 {sr(sPfN)}, {sr(sPfN)}, {sr(sWcolStep)}
s_add_u32 {sr(sPfN)}, {sr(sPfN)}, {255 + 127 - 512}
s_lshr_b32 {sr(sPfN)}, {sr(sPfN)}, 8
s_min_u32 {sr(sPfN)}, {sr(sPfN)}, {2 if PFMODE == '1' else 0}
s_lshl_b32 {sr(sT1)}, {sr(sRot)}, 6
s_lshl_b32 {sr(sColMask)}, {sr(sMask)}, 6
s_or_b32 {sr(sColMask)}, {sr(sColMask)}, 63
s_add_u32 {sr(sPfCol)}, {sr(sT1)}, 256
v_and_b32 v2, 31, {vr(vLane)}
v_lshlrev_b32 v2, 4, v2
v_add_u32 v2, {sr(sT1)}, v2
v_and_b32 v2, {sr(sColMask)}, v2
v_lshrrev_b32 v3, 5, {vr(vLane)}
v_mul_lo_u32 v3, v3, {sr(sRow)}
v_add_u32 v31, v2, v3
v_and_b32 v2, 15, {vr(vLane)}
v_lshlrev_b32 v2, 4, v2
v_lshrrev_b32 v3, 4, {vr(vLane)}
v_mul_lo_u32 v3, v3, {sr(sRow)}
v_add_u32 {vr(vPF)}, v2, v3
v_mov_b32 {vr(vT)}, {vr(vLaneT)}
v_add_u32 {vr(vT+1)}, {SL}, {vr(vLaneT)}
s_mov_b32 {sr(sSlotR)}, {SL}""")
    def pf0():
        K(f"s_mov_b32 {sr(sPfRun)}, {sr(sPfOff)}\ns_lshl_b32 {sr(sT1)}, {sr(sRow)}, 1")
        for n in range(NS // 4):
            K(f"buffer_load_dwordx4 {vr(vJunk+4*n,4)}, v31, {sr(S_PF,4)}, {sr(sPfRun)} offen ; junk\ns_add_u32 {sr(sPfRun)}, {sr(sPfRun)}, {sr(sT1)}"); order.append(('p', n))
    for c in range(NC):
        if c == 0: K(f"s_waitcnt vmcnt({min(upto(('w', 0)), upto(('x', 0)))})\ns_barrier")
        else: K(f"s_waitcnt vmcnt({upto(('x', c))})")
        if os.environ.get("PST"): K(f"s_memtime s[{sPtr+2*c}:{sPtr+2*c+1}]")
        for s in range(2):
            for i in range(4):
                K(f"ds_read_b128 {xfrag(s, 4*c+i)}, {vr(vXR+i)} offset:{(c%NX)*8192 + s*4096}")
        K("s_waitcnt lgkmcnt(6)")
        for i in range(4):
            for r in wreads(4 * c + i, 0): K(r)
        K("s_waitcnt lgkmcnt(8)" if not os.environ.get("PST") else "s_waitcnt lgkmcnt(0)")
        if c + NX < NC: issue(c + NX)
        if c == NC - NX - 2: slab(1)
        if c == NC - 1 - PFAT: pf0()
        K("s_waitcnt lgkmcnt(0)")
        for i in range(4):
            for s in range(2): K(mfma(4 * c + i, s, 0, order_))
    if os.environ.get("PST"):
        K("s_waitcnt lgkmcnt(0)")
        for c in range(NC): K(f"v_mov_b32 v14, s{sPtr+2*c}\nv_lshrrev_b32 v13, 6, v0\nv_lshl_add_u32 v13, s2, 2, v13\nv_lshlrev_b32 v13, 7, v13\nv_add_u32 v13, {WS_STAMP + (4 << 17) + c*4}, v13\nbuffer_store_dword v14, v13, {sr(S_WS,4)}, 0 offen")
    stamp(K, 1, S_WS)
    K("s_barrier")
    for k in range(3):
        for r in wreads(k, 1): K(r)
    slab(2)
    dstamp(K, sPf, S_WS, (3 << 17) + 64)
    nd = body(Kernel("x"), NS, order_, 0, scale, av) - upto(('w', 2))
    assert nd >= 6
    P = lambda ka: sPtr + ka // 4
    K(f"""s_lshl_b32 {sr(sT1)}, s2, 2
s_add_u32 {sr(sT1)}, {sr(sT1)}, {sr(sWave)}
s_mul_i32 {sr(sT2)}, {sr(sT1)}, 5120
s_lshl_b32 {sr(sT1)}, {sr(sT1)}, 10
v_lshlrev_b32 v2, 4, {vr(vLane)}""")
    srd(K, S_ZERO, P(KA_WO), SZ_WO)
    for n in range(5):
        if n == 4: K(f"s_add_u32 {sr(sT2)}, {sr(sT2)}, 4096")
        K(f"buffer_load_dwordx4 {vr(vJunk+4*n,4)}, v2, {sr(S_ZERO,4)}, {sr(sT2)} offen offset:{(n%4)*1024} ; junk")
    srd(K, S_ZERO, P(KA_AWO), SZ_AWO)
    for n in range(5, nd): K(f"buffer_load_dwordx4 {vr(vJunk+4*n,4)}, v2, {sr(S_ZERO,4)}, {sr(sT1)} offen ; junk")
    K(f"s_add_u32 {sr(sCb)}, {sr(sCb)}, 1")

def mainloop(K, name, NS, order, scale, av, done):
    K.label(name)
    xprologue(K, NS, order, scale, av)
    K.label(name + "_l1")
    body(K, NS, order, 1, scale, av)
    K(f"s_cmp_ge_u32 {sr(sCb)}, {sr(sCbEnd)}")
    K(f"s_cbranch_scc1 {name}_t1")
    body(K, NS, order, 0, scale, av)
    K(f"s_cmp_lt_u32 {sr(sCb)}, {sr(sCbEnd)}")
    K(f"s_cbranch_scc1 {name}_l1")
    K("s_waitcnt lgkmcnt(0)")
    tail(K, 0, scale, av)
    K(f"s_branch {done}")
    K.label(name + "_t1")
    K("s_waitcnt lgkmcnt(0)")
    tail(K, 1, scale, av)
    K(f"s_branch {done}")

def build():
    K = Kernel("proj_kernel"); K.force_vgpr = 512
    K.hot = [f"k1_{n}_l1" for n in ("K", "V", "T576", "N576")]
    P = lambda ka: sPtr + ka // 4
    K(f"""s_cmp_ge_u32 s2, 256
s_cbranch_scc1 k1_exit
s_load_dwordx16 {sr(sPtr,16)}, s[0:1], 0
s_load_dwordx8 {sr(sPtr+16,8)}, s[0:1], 64
v_and_b32 {vr(vLane)}, 63, v0
v_lshrrev_b32 v2, 6, v0
s_and_b32 {sr(sT0)}, s2, 7
s_lshr_b32 {sr(sT1)}, s2, 3
v_readfirstlane_b32 {sr(sWave)}, v2
s_lshr_b32 {sr(sTb)}, {sr(sT1)}, {LC}
s_and_b32 {sr(sT1)}, {sr(sT1)}, {(1 << LC) - 1}
s_lshr_b32 {sr(sChunk)}, {sr(sT0)}, {LC - 2}
s_lshl_b32 {sr(sChunk)}, {sr(sChunk)}, {LC}
s_add_u32 {sr(sChunk)}, {sr(sChunk)}, {sr(sT1)}
s_and_b32 {sr(sT0)}, {sr(sT0)}, {(1 << (LC - 2)) - 1}
s_lshl_b32 {sr(sT0)}, {sr(sT0)}, {5 - LC}
s_add_u32 {sr(sTb)}, {sr(sTb)}, {sr(sT0)}
s_lshl_b32 {sr(sKt0)}, {sr(sTb)}, 3
s_lshl_b32 {sr(sT0)}, {sr(sWave)}, 1
s_add_u32 {sr(sKt0)}, {sr(sKt0)}, {sr(sT0)}
v_lshrrev_b32 v2, 5, {vr(vLane)}
v_lshlrev_b32 {vr(vLaneT)}, 9, v2
v_bfe_u32 v3, {vr(vLane)}, 2, 2
v_lshlrev_b32 v3, 6, v3
v_add_u32 {vr(vLaneT)}, {vr(vLaneT)}, v3
v_bfe_u32 v3, {vr(vLane)}, 4, 1
v_lshlrev_b32 v3, 5, v3
v_add_u32 {vr(vLaneT)}, {vr(vLaneT)}, v3
v_and_b32 v3, 3, {vr(vLane)}
v_lshlrev_b32 v3, 3, v3
v_add_u32 {vr(vLaneT)}, {vr(vLaneT)}, v3
v_and_b32 v3, 31, {vr(vLane)}
v_bfe_u32 v4, {vr(vLane)}, 1, 3
v_lshlrev_b32 v3, 7, v3""")
    for i in range(4):
        K(f"v_add_u32 v5, {2*i}, v2\nv_xor_b32 v5, v5, v4\nv_lshlrev_b32 v5, 4, v5\nv_add_u32 {vr(vXR+i)}, v3, v5")
    if int(os.environ.get('CPF', '1')):
        K(f"v_lshlrev_b32 v5, 4, {vr(vLane)}")
        code_prefetch(K, sT0, 5, 252, "code_end", 5, sWave)
    K("s_waitcnt lgkmcnt(0)")
    srd(K, S_WS, P(KA_WS), WS_SIZE)
    stamp(K, 0, S_WS)
    srd(K, S_WSX, P(KA_WS), 0 if 'nost' in DIAG else WS_SIZE)
    K(f"""s_mov_b32 {sr(sScale)}, 1.0
s_mov_b32 {sr(sWcolStep)}, 64
s_mov_b32 {sr(sPart)}, 0
s_mov_b32 {sr(sRot)}, 0
s_mov_b32 {sr(sCb0)}, 0
s_mov_b32 {sr(sMask)}, -1
s_mov_b32 {sr(sDS)}, 2048
v_lshlrev_b32 {vr(vO)}, 4, {vr(vLane)}
v_and_b32 v6, 3, {vr(vLane)}
v_lshlrev_b32 v6, 4, v6
v_lshrrev_b32 v7, 2, {vr(vLane)}
s_cmp_ge_u32 {sr(sChunk)}, 26
s_cbranch_scc1 k1_typeA
s_cmp_ge_u32 {sr(sChunk)}, 16
s_cbranch_scc1 k1_typeQ""")
    def common(K, actp, actsz, actstride, wstride, rows_per_wave):
        srd(K, S_ACT, actp, actsz)
        K(f"""s_mov_b32 {sr(sActStride)}, {8*actstride}
s_mul_i32 {sr(sActBase)}, {sr(sKt0)}, {32*actstride}
s_mov_b32 {sr(sWstride16)}, {16*wstride}
s_mul_i32 {sr(sWbase)}, {sr(sWave)}, {rows_per_wave*wstride}
s_mul_i32 {sr(sSlotW)}, {sr(sWave)}, {rows_per_wave*64}
v_mul_u32_u24 {vr(vW)}, {wstride}, v7
v_add_u32 {vr(vW)}, {vr(vW)}, v6
v_lshrrev_b32 v8, 3, {vr(vLane)}
v_mul_u32_u24 v8, {actstride}, v8
v_and_b32 v9, 7, {vr(vLane)}
v_lshrrev_b32 v10, 4, {vr(vLane)}
v_xor_b32 v9, v9, v10
v_lshlrev_b32 v10, 4, v9
v_add_u32 {vr(vXD)}, v8, v10
v_xor_b32 v9, 4, v9
v_lshlrev_b32 v10, 4, v9
v_add_u32 {vr(vXD+1)}, v8, v10""")
    def ovec(K, dt, ds):
        K(f"""v_add_u32 {vr(vO+1)}, {dt}, {vr(vO)}
v_add_u32 {vr(vO+2)}, {ds}, {vr(vO)}
v_add_u32 {vr(vO+3)}, {ds+dt}, {vr(vO)}""")
    common(K, P(KA_CKV), SZ_CKV, 1024, 8192, 128)
    ovec(K, 1024, 16384)
    K(f"""s_and_b32 {sr(sCb)}, {sr(sChunk)}, 7
s_lshl_b32 {sr(sCb)}, {sr(sCb)}, 4
s_add_u32 {sr(sCbEnd)}, {sr(sCb)}, 16
s_mov_b32 {sr(sPf)}, {sr(sCb)}
s_mov_b32 {sr(sCb0)}, {sr(sCb)}
s_mov_b32 {sr(sMask)}, 15
s_and_b32 {sr(sRot)}, {sr(sChunk)}, {ROTM}
s_lshl_b32 {sr(sRot)}, {sr(sRot)}, {ROTS}
s_mov_b32 {sr(sWsize)}, {SZ_WUK}
s_mov_b32 {sr(sHS)}, {64*16384}
s_lshl_b32 {sr(sOutBase)}, {sr(sKt0)}, 14
s_add_u32 {sr(sOutBase)}, {sr(sOutBase)}, {WS_KVB}
s_cmp_ge_u32 {sr(sChunk)}, 8
s_cbranch_scc1 k1_typeV""")
    srd(K, S_W, P(KA_WUK), SZ_WUK)
    mainloop(K, "k1_K", 32, 'T', False, False, "k1_end")
    K.label("k1_typeV")
    srd(K, S_W, P(KA_WUV), SZ_WUK)
    K(f"s_add_u32 {sr(sOutBase)}, {sr(sOutBase)}, 8192")
    mainloop(K, "k1_V", 32, 'N', False, False, "k1_end")
    K.label("k1_typeQ")
    common(K, P(KA_BX), SZ_BX, 1152, 8192, 144)
    ovec(K, 1024, 8192)
    srd(K, S_W, P(KA_WQ), SZ_WQ)
    K(f"""s_sub_u32 {sr(sT0)}, {sr(sChunk)}, 16
s_mul_i32 {sr(sCb)}, {sr(sT0)}, 13
s_add_u32 {sr(sCbEnd)}, {sr(sCb)}, 13
s_cmp_eq_u32 {sr(sT0)}, 8
s_cselect_b32 {sr(sCbEnd)}, 116, {sr(sCbEnd)}
s_cmp_eq_u32 {sr(sT0)}, 9
s_cselect_b32 {sr(sCb)}, 116, {sr(sCb)}
s_cselect_b32 {sr(sCbEnd)}, 128, {sr(sCbEnd)}
s_mov_b32 {sr(sPf)}, {sr(sCb)}
s_mov_b32 {sr(sWsize)}, {SZ_WQ}
s_mov_b32 {sr(sHS)}, {64*8192}
s_mov_b32 {sr(sScale)}, {f32bits(C_B)}
s_lshl_b32 {sr(sOutBase)}, {sr(sKt0)}, 13
s_add_u32 {sr(sOutBase)}, {sr(sOutBase)}, {WS_QB}
s_branch k1_T576""")
    K.label("k1_typeA")
    common(K, P(KA_AX), SZ_AX, 1152, 3456, 144)
    srd(K, S_W, P(KA_AWQKV), SZ_AWQKV)
    K(f"""s_sub_u32 {sr(sAc)}, {sr(sChunk)}, 26
s_mov_b32 {sr(sWsize)}, {SZ_AWQKV}
s_and_b32 {sr(sT0)}, {sr(sAc)}, 1
s_mul_i32 {sr(sCb)}, {sr(sT0)}, 9
s_mov_b32 {sr(sPf)}, {sr(sCb)}
s_lshr_b32 {sr(sT1)}, {sr(sAc)}, 1
s_mul_i32 {sr(sT2)}, {sr(sT1)}, 1152
s_add_u32 {sr(sWbase)}, {sr(sWbase)}, {sr(sT2)}
s_mov_b32 {sr(sPart)}, {sr(sT2)}
s_cmp_eq_u32 {sr(sT1)}, 2
s_cbranch_scc1 k1_typeAV
s_lshl_b32 {sr(sCb)}, {sr(sT0)}, 3
s_mov_b32 {sr(sPf)}, {sr(sCb)}
s_add_u32 {sr(sCbEnd)}, {sr(sCb)}, 8
s_mov_b32 {sr(sWcolStep)}, 72
s_lshl_b32 {sr(sUS)}, 2048, {sr(sT1)}
s_lshl_b32 {sr(sDS)}, {sr(sUS)}, 7
s_lshl_b32 {sr(sHS)}, {sr(sUS)}, 9
s_mul_i32 {sr(sOutBase)}, {sr(sKt0)}, {sr(sUS)}
s_mul_i32 {sr(sT2)}, {sr(sT1)}, {WS_KVA-WS_QA}
s_add_u32 {sr(sOutBase)}, {sr(sOutBase)}, {sr(sT2)}
s_add_u32 {sr(sOutBase)}, {sr(sOutBase)}, {WS_QA}
s_lshl_b32 {sr(sT2)}, {sr(sUS)}, 6
v_add_u32 {vr(vO+1)}, {sr(sT2)}, {vr(vO)}
v_add_u32 {vr(vO+2)}, {sr(sUS)}, {vr(vO)}
v_add_u32 {vr(vO+3)}, {sr(sUS)}, {vr(vO+1)}
s_cmp_eq_u32 {sr(sT1)}, 0
s_cselect_b32 {sr(sScale)}, {f32bits(C_A)}, 1.0
v_mul_u32_u24 {vr(vW)}, 3456, v7
v_bfe_u32 v8, {vr(vLane)}, 1, 1
v_mul_u32_u24 v8, 36, v8
v_add_u32 {vr(vW)}, {vr(vW)}, v8
v_and_b32 v8, 1, {vr(vLane)}
v_lshlrev_b32 v8, 4, v8
v_add_u32 {vr(vW)}, {vr(vW)}, v8""")
    mainloop(K, "k1_T576", 36, 'T', True, False, "k1_after576T")
    K.label("k1_typeAV")
    K(f"""s_add_u32 {sr(sCbEnd)}, {sr(sCb)}, 9
s_lshl_b32 {sr(sOutBase)}, {sr(sKt0)}, 12
s_add_u32 {sr(sOutBase)}, {sr(sOutBase)}, {WS_KVA+1024}""")
    mainloop(K, "k1_N576", 36, 'N', False, True, "k1_Aextra")
    K.label("k1_after576T")
    K(f"""s_cmp_lt_u32 {sr(sChunk)}, 26
s_cbranch_scc1 k1_end
s_mov_b32 {sr(S_W+2)}, {SZ_AWQKV}
v_lshrrev_b32 v2, 4, {vr(vLane)}
v_mul_u32_u24 v2, 3456, v2
v_and_b32 v3, 15, {vr(vLane)}
v_mul_u32_u24 v3, 36, v3
v_add_u32 {vr(vW)}, v2, v3
v_add_u32 {vr(vW)}, 32, {vr(vW)}
v_mov_b32 {vr(vT)}, {vr(vLaneT)}
v_and_b32 v2, 31, {vr(vLane)}
v_lshlrev_b32 v2, 2, v2
v_lshrrev_b32 v3, 5, {vr(vLane)}
v_mul_lo_u32 v3, v3, {sr(sDS)}
v_add_u32 {vr(vO)}, v2, v3
v_add_u32 {vr(vO+1)}, {sr(sUS)}, {vr(vO)}
s_sub_u32 {sr(sT1)}, {sr(sUS)}, 1024
s_add_u32 {sr(sOutBase)}, {sr(sOutBase)}, {sr(sT1)}
s_lshr_b32 {sr(sDS)}, {sr(sDS)}, 1
s_mul_i32 {sr(sSlotW)}, {sr(sWave)}, {144*64}
s_and_b32 {sr(sCb)}, {sr(sAc)}, 1""")
    K.label("k1_left")
    K(f"""s_barrier
s_mul_i32 {sr(sWoff)}, {sr(sCb)}, {16*36}
s_add_u32 {sr(sWoff)}, {sr(sWoff)}, {sr(sWbase)}
s_mov_b32 m0, {sr(sSlotW)}
s_mov_b32 {sr(sT0)}, 36""")
    K.label("k1_left_dma")
    K(f"""buffer_load_dword {vr(vW)}, {sr(S_W,4)}, {sr(sWoff)} offen lds
s_add_u32 m0, m0, 256
s_add_u32 {sr(sWoff)}, {sr(sWoff)}, {4*3456}
s_sub_u32 {sr(sT0)}, {sr(sT0)}, 1
s_cmp_lg_u32 {sr(sT0)}, 0
s_cbranch_scc1 k1_left_dma
s_waitcnt vmcnt(0)
s_barrier""")
    for k in range(3):
        for r in wreads(k, 0): K(r)
    for k in range(36):
        K(f"s_waitcnt lgkmcnt({min(4, 2*(35-k))})")
        K(mfma(k, 0, 0, 'T'))
        if k + 3 < 36:
            for r in wreads(k + 3, 0): K(r)
        K(mfma(k, 1, 0, 'T'))
    K("s_nop 15")
    K(f"s_lshl_b32 {sr(sOut)}, {sr(sCb)}, 4\ns_mul_i32 {sr(sOut)}, {sr(sOut)}, {sr(sDS)}\ns_add_u32 {sr(sOut)}, {sr(sOut)}, {sr(sOutBase)}")
    for s in range(2):
        a = vAcc + s * 16
        for r in range(16): K(f"v_mul_f32 {vr(a+r)}, {sr(sScale)}, {vr(a+r)}")
        for p in range(8): K(f"v_cvt_pk_bf16_f32 {vr(vP+s*8+p)}, {vr(a+2*p)}, {vr(a+2*p+1)}")
    for p in range(8):
        K(f"s_mul_i32 {sr(sT0)}, {sr(sDS)}, {4*(p>>1) + (p&1)}\ns_add_u32 {sr(sT0)}, {sr(sT0)}, {sr(sOut)}")
        for s in range(2):
            K(f"buffer_store_dword {vr(vP+s*8+p)}, {vr(vO+s)}, {sr(S_WS,4)}, {sr(sT0)} offen")
    K("s_branch k1_end")
    K.label("k1_Aextra")
    K(f"""s_cmp_lg_u32 {sr(sAc)}, 4
s_cbranch_scc1 k1_end
v_lshrrev_b32 v2, 4, {vr(vLane)}
v_lshlrev_b32 v2, 18, v2
v_bfe_u32 v3, {vr(vLane)}, 1, 2
v_lshlrev_b32 v3, 9, v3
v_add_u32 v2, v2, v3
v_bfe_u32 v3, {vr(vLane)}, 3, 1
v_lshlrev_b32 v3, 12, v3
v_add_u32 v2, v2, v3
v_and_b32 v3, 1, {vr(vLane)}
v_lshlrev_b32 v3, 6, v3
v_add_u32 v2, v2, v3
v_add_u32 v2, {18*16}, v2
v_mov_b32 v4, 0x3f803f80
v_mov_b32 v5, 0x3f803f80
v_mov_b32 v6, 0x3f803f80
v_mov_b32 v7, 0x3f803f80
s_lshl_b32 {sr(sT0)}, {sr(sKt0)}, 12
s_add_u32 {sr(sT0)}, {sr(sT0)}, {WS_KVA+1024}""")
    for n in range(8):
        K(f"buffer_store_dwordx4 v[4:7], v2, {sr(S_WS,4)}, {sr(sT0)} offen")
        K(f"s_add_u32 {sr(sT0)}, {sr(sT0)}, {4*262144}")
    K.label("k1_end")
    K(f"""s_lshl_b32 {sr(sT1)}, s2, 2
s_add_u32 {sr(sT1)}, {sr(sT1)}, {sr(sWave)}
s_mul_i32 {sr(sT1)}, {sr(sT1)}, 4608
s_add_u32 {sr(sT1)}, {sr(sT1)}, {WS_XCH}
s_add_u32 {sr(sT2)}, {sr(sT1)}, 3584
v_lshlrev_b32 v2, 4, {vr(vLane)}
v_mov_b32 v4, -1
v_mov_b32 v5, -1
v_mov_b32 v6, -1
v_mov_b32 v7, -1""")
    for n in range(4): K(f"buffer_store_dwordx4 v[4:7], v2, {sr(S_WS,4)}, {sr(sT1)} offen offset:{n*1024} {STF}")
    K(f"buffer_store_dwordx4 v[4:7], v2, {sr(S_WS,4)}, {sr(sT2)} offen {STF}")
    stamp(K, 3, S_WS)
    if STAMP:
        K("s_waitcnt vmcnt(0)")
        stamp(K, 4, S_WS)
    K.label("k1_exit")
    K("s_endpgm")
    return K
```

```python
from dsl import *
from layout import *
import os
CPF = int(os.environ.get('CPF', '1'))
STF2 = os.environ.get('STF2', 'sc1')

S_WS = 8; S_KV = 12; S_W1 = 28; S_W2 = 32
sH = 16; sJ = 17; sWave = 18; sK = 19; sKf = 20; sMaskK = 21; sDoff = 22; sDslot = 23
sT0 = 24; sT1 = 25; sT2 = 26; sT3 = 27
sKVbase = 36; sQt0 = 37; sFB = 38; sU = 39; sN = 40; sAoff = 41; sJunk = 42; sM0 = 43; sLo = 44; sHi = 45; sGw = 46; sKslot = 47; sPair = 54; sQt1 = 56; sBQ0 = 61; sBKV = 62; sQoff = 4; sWoS = 6; sWoD = 48
sPtr = 48
sTri = 64
JUNK = 98304
aO = 0; aQ = 128; aK = 192; aV = 224
vLane = 1; vL16 = 2; vAK = 3; vAV = 4; vD = 5; vNinf = 6; vL = 8
vM = 10
vT = 12
vNegM = 16; vS = 48; vP = 112; vE = 144
def Oa(s, d): return ar(aO + (s * 4 + d) * 16, 16)
def Qa(s, ds): return ar(aQ + (s * 8 + ds) * 4, 4)
def Sv(p, s): return vS + (p * 2 + s) * 16
def Pv(p, s, ks): return vP + ((p * 2 + s) * 2 + ks) * 4

def X(p, subs=(0, 1), raw=False):
    out = []
    for ds in range(8):
        for s in subs:
            d = vr(Sv(p, s), 16)
            c = d if ds else ("0" if raw else vr(vNegM + s * 16, 16))
            out.append(f"v_mfma_f32_32x32x16_bf16 {d}, {ar(aK + ds*4, 4)}, {Qa(s, ds)}, {c}")
    return out
def Y(p, subs=(0, 1), vb=aV):
    out = []
    for ks in range(2):
        for d in range(4):
            for s in subs:
                out.append(f"v_mfma_f32_32x32x16_bf16 {Oa(s, d)}, {ar(vb + (d*2+ks)*4, 4)}, {vr(Pv(p, s, ks), 4)}, {Oa(s, d)}")
    return out
def softmax_ops(p, subs=(0, 1)):
    seq = []
    for ks in range(2):
        for s in subs:
            for r in range(8 * ks, 8 * ks + 8): seq.append((s, ks, r))
    ops = []
    n = len(seq)
    for i in range(n + 2):
        if i < n:
            s, ks, r = seq[i]; ops.append((f"v_exp_f32 {vr(Sv(p,s)+r)}, {vr(Sv(p,s)+r)}", 8))
        if 0 <= i - 1 < n:
            s, ks, r = seq[i - 1]; ops.append((f"v_add_f32 {vr(vL+s)}, {vr(Sv(p,s)+r)}, {vr(vL+s)}", 4))
        if 0 <= i - 2 < n and (i - 2) % 2 == 1:
            s, ks, r = seq[i - 2]
            ops.append((f"v_cvt_pk_bf16_f32 {vr(Pv(p,s,ks)+(r%8)//2)}, {vr(Sv(p,s)+r-1)}, {vr(Sv(p,s)+r)}", 4))
    return ops
def kread(u2, ds): return f"ds_read_b128 {ar(aK + ds*4, 4)}, {vr(vAK)} offset:{u2*16384 + ds*1024}"
def vread(u2, i): return f"ds_read_b128 {ar(aV + i*4, 4)}, {vr(vAV)} offset:{u2*16384 + 8192 + i*1024}"
VORD = [0, 2, 4, 6, 1, 3, 5, 7]
def dma(i):
    t = ""
    if i % 4 == 0:
        t += f"s_add_u32 m0, {sr(sM0)}, {(i//4)*4096}\n"
        t += f"s_add_u32 {sr(sDoff)}, {sr(sDoff)}, {4096 if i else 28672}\n"
    return t + f"buffer_load_dwordx4 {vr(vL16)}, {sr(S_KV,4)}, {sr(sDoff)} offen offset:{(i%4)*1024} lds"
def tri(s): return [f"v_cndmask_b32 {vr(vNegM+s*16+r)}, {vr(vNegM+s*16+r)}, {vr(vNinf)}, {sr(sTri+2*r,2)}" for r in range(16)]

START = 3
NSLOT = 5; RING = NSLOT * 32768
COST = {'R': 4, 'R2': 6, 'D': 16, 'S': 4}
def spread(ops, room, g0, g1):
    n = len(room); tot = sum(c for _, c in ops); cap = sum(room[g % n] for g in range(g0, g1))
    res = []; g = g0; acc = 0.0; tgt = room[g0 % n] * tot / cap; used = 0
    for t, c in ops:
        while (acc + c / 2 > tgt or used + c > room[g % n]) and g < g1 - 1:
            g += 1; tgt += room[g % n] * tot / cap; used = 0
        assert used + c <= room[g % n], ("no room", g, t)
        res.append(g); acc += c; used += c
    return res

RD = [0, 1, 2, 4, 6, 8, 10, 11]
DG = [21, 25, 29, 35, 39, 45, 51, 57]
def steady_plan():
    mem = {g: [] for g in range(64)}; fix = {g: [] for g in range(64)}; room = [24] * 64
    for i, g in enumerate(RD):
        mem[g].append(vread(0, VORD[i])); mem[16 + g].append(kread(0, i))
        mem[32 + g].append(vread(1, VORD[i])); mem[48 + g].append(kread(1, i))
    mem[16] = ["s_waitcnt vmcnt(16)", "s_barrier"] + mem[16]
    for i, g in enumerate(DG):
        mem[g].append(f"buffer_load_dwordx4 {vr(vL16)}, {sr(S_KV,4)}, {sr(sDoff)} offen offset:{(i%4)*1024} lds")
    fix[19] += [f"s_mov_b32 m0, {sr(sDslot)}", f"s_add_u32 {sr(sDoff)}, {sr(sDoff)}, 28672"]
    fix[37] += [f"s_add_u32 m0, {sr(sDslot)}, 4096", f"s_add_u32 {sr(sDoff)}, {sr(sDoff)}, 4096"]
    fix[41] += [f"s_add_u32 {sr(sDslot)}, {sr(sDslot)}, 32768", f"s_cmp_ge_u32 {sr(sDslot)}, {RING}"]
    fix[43] += [f"s_cselect_b32 {sr(sT0)}, {RING}, 0", f"s_sub_u32 {sr(sDslot)}, {sr(sDslot)}, {sr(sT0)}"]
    fix[46] += [f"v_mov_b32 {vr(vAV)}, {vr(vAK)}"]
    fix[53] += [f"s_add_u32 {sr(sKslot)}, {sr(sKslot)}, 32768", f"s_cmp_ge_u32 {sr(sKslot)}, {RING}"]
    fix[55] += [f"s_cselect_b32 {sr(sKslot)}, 0, {sr(sKslot)}"]
    fix[60] += [f"v_add_u32 {vr(vAK)}, {sr(sKslot)}, {vr(vL16)}"]
    fix[61] += [f"s_add_u32 {sr(sK)}, {sr(sK)}, 1"]
    for g in range(64):
        for m in mem[g]: room[g] -= 16 if m.startswith("buffer") else 4
        room[g] -= 4 * len(fix[g])
    room[16] = 0
    for g in (15, 31, 47): room[g] -= 4
    room[31] -= 8
    room[63] -= 12
    od = softmax_ops(1); ev = softmax_ops(0)
    god = spread(od, room, 16 + START, 48 + START); gev = spread(ev, room, 48 + START, 80 + START)
    return mem, fix, od, god, ev, gev
PLAN = steady_plan()
def ev_first(): return [t for (t, c), g in zip(PLAN[4], PLAN[5]) if g < 64]
def ev_rest(): return [(t, c) for (t, c), g in zip(PLAN[4], PLAN[5]) if g >= 64]

def steady(K):
    mem, fix, od, god, ev, gev = PLAN
    fill = {g: [] for g in range(64)}
    for (t, c), g in zip(ev, gev):
        if g >= 64: fill[g - 64].append(t)
    for (t, c), g in zip(od, god): fill[g].append(t)
    for (t, c), g in zip(ev, gev):
        if g < 64: fill[g].append(t)
    ms = X(1) + Y(0) + X(0) + Y(1)
    K.label("b_loop")
    for g in range(64):
        K(ms[g]); K.extend(mem[g]); K.extend(fill[g]); K.extend(fix[g])
        if g == 31:
            K(f"s_cmp_eq_u32 {sr(sK)}, {sr(sMaskK)}\ns_cbranch_scc1 b_m1")
            K.label("b_m1r")
            COLD.append(lambda K: (K.label("b_m1"), K.extend(tri(0)), K("s_branch b_m1r")))
        if g % 16 == 15: K("s_waitcnt lgkmcnt(0)")
    K(f"s_cmp_lt_u32 {sr(sK)}, {sr(sKf)}\ns_cbranch_scc1 b_loop")

def tail(K, w):
    last = 7 - w
    tiles = lambda i: (0, 1) if i <= w else (1,)
    K.label(f"b_tail{w}")
    for q in range(2):
        src = sKslot if q == 0 else sPair
        K(f"s_add_u32 {sr(sPair+q)}, {sr(src)}, 32768\ns_cmp_ge_u32 {sr(sPair+q)}, {RING}\ns_cselect_b32 {sr(sPair+q)}, 0, {sr(sPair+q)}")
    phases = []
    for i in range(1, last + 1): phases += [('X', i), ('Y', i - 1)]
    phases.append(('Y', last))
    queue = [(0, t, c) for t, c in ev_rest()]
    slot = 0
    for pi, (ty, i) in enumerate(phases):
        p = i & 1; tl = tiles(i)
        pre = []; reads = []
        if ty == 'X':
            if i == w: pre += tri(0)
            if i == last: pre += tri(1)
            ms = X(p, tl)
            u = i - 1
            if u % 2 == 0 and u > 0: pre.append(f"v_mov_b32 {vr(vAV)}, {vr(vAK)}")
            reads = [vread(u & 1, VORD[r]) for r in range(8)]
        else:
            ms = Y(p, tl)
            if i == last: ms = Y(p, tl, aK)
            if i + 2 <= last:
                u = i + 2
                if u % 2 == 0 and u > 2: pre.append(f"v_add_u32 {vr(vAK)}, {sr(sPair + u//2 - 2)}, {vr(vL16)}")
                reads = [kread(u & 1, r) for r in range(8)]
            elif i + 1 == last:
                u = last
                if u % 2 == 0: pre.append(f"v_mov_b32 {vr(vAV)}, {vr(vAK)}")
                reads = [vread(u & 1, VORD[r]).replace(ar(aV + VORD[r]*4, 4), ar(aK + VORD[r]*4, 4)) for r in range(8)]
        K.extend(pre)
        if pre: K("s_nop 0")
        K("s_waitcnt lgkmcnt(0)")
        n = len(ms)
        rg = RD if n == 16 else [0, 0, 1, 1, 2, 2, 3, 3]
        for g in range(n):
            if ty == 'Y':
                need = Ins(ms[g]).srcAB
                idx = max([q for q, (e, t, c) in enumerate(queue) if Ins(t).w & need], default=-1)
                if idx >= 0:
                    for e, t, c in queue[:idx + 1]: K(t)
                    queue = queue[idx + 1:]; K("s_nop 1")
            K(ms[g]); room = 24
            if ty == 'Y' and i == 0 and g == 0: K("s_waitcnt vmcnt(0)\ns_barrier"); room = 0
            first = True
            for r in range(8):
                if reads and rg[r] == g: K(reads[r]); room -= 4 if first else 6; first = False
            if g == n - 1: room -= 4
            while queue and queue[0][0] <= slot and queue[0][2] <= room:
                K(queue[0][1]); room -= queue[0][2]; queue = queue[1:]
            slot += 1
        if ty == 'X': queue += [(slot + START, t, c) for t, c in softmax_ops(p, tl)]
    for e, t, c in queue: K(t)
    K("s_branch b_done")

def rowmax(K, regs, dst, init=None):
    r = list(regs)
    if init is None: K(f"v_max_f32 {vr(dst)}, {vr(r[0])}, {vr(r[1])}"); r = r[2:]
    while r: K(f"v_max3_f32 {vr(dst)}, {vr(dst)}, {vr(r[0])}, {vr(r[1])}"); r = r[2:]
def xhalf(K, reg, op):
    K(f"v_mov_b32 {vr(vT)}, {vr(reg)}\ns_nop 1\nv_permlane32_swap_b32 {vr(reg)}, {vr(vT)}\n{op} {vr(reg)}, {vr(reg)}, {vr(vT)}")

def check_l(K, regs, okl):
    K(f"s_mov_b64 vcc, exec")
    for r in regs:
        K(f"v_cmp_le_f32 {sr(sT0,2)}, {sr(sLo)}, {vr(r)}\nv_cmp_ge_f32 {sr(sT2,2)}, {sr(sHi)}, {vr(r)}")
        K(f"s_and_b64 vcc, vcc, {sr(sT0,2)}\ns_and_b64 vcc, vcc, {sr(sT2,2)}")
    K(f"s_cmp_eq_u64 vcc, exec\ns_cbranch_scc0 {okl}")

COLD = []
def pair(): return [(f"s_mov_b32 {sr(sM0)}, {sr(sDslot)}\ns_add_u32 {sr(sDslot)}, {sr(sDslot)}, 32768\n" if i == 0 else "") + dma(i) for i in range(8)]
def setupB(K):
    K(f"""s_lshl_b32 {sr(sKf)}, {sr(sJ)}, 2
s_lshl_b32 {sr(sBQ0)}, {sr(sJ)}, 3
s_add_u32 {sr(sQt1)}, {sr(sBQ0)}, 7
s_add_u32 {sr(sBQ0)}, {sr(sBQ0)}, {sr(sWave)}
s_sub_u32 {sr(sQt1)}, {sr(sQt1)}, {sr(sWave)}
s_sub_u32 {sr(sMaskK)}, {sr(sKf)}, 1
s_cmp_eq_u32 {sr(sWave)}, 0
s_cselect_b32 {sr(sMaskK)}, {sr(sMaskK)}, 0x7fffffff
s_lshl_b32 {sr(sBKV)}, {sr(sH)}, 20
s_add_u32 {sr(sBKV)}, {sr(sBKV)}, {WS_KVB}
s_lshl_b32 {sr(sDslot)}, {sr(sWave)}, 13
s_add_u32 {sr(sDoff)}, {sr(sBKV)}, {sr(sDslot)}
s_sub_u32 {sr(sDoff)}, {sr(sDoff)}, 28672
s_mov_b32 {sr(sK)}, 0
s_mov_b32 {sr(sKslot)}, 32768""")
    for s in range(2):
        K(f"""s_lshl_b32 {sr(sQoff+s)}, {sr(sH)}, 6
s_add_u32 {sr(sQoff+s)}, {sr(sQoff+s)}, {sr(sQt1 if s else sBQ0)}
s_lshl_b32 {sr(sQoff+s)}, {sr(sQoff+s)}, 13
s_add_u32 {sr(sQoff+s)}, {sr(sQoff+s)}, {WS_QB}""")
def preB():
    q = []
    for s in range(2):
        for i in range(8):
            q.append(f"buffer_load_dwordx4 {Qa(s, i)}, {vr(vL16)}, {sr(S_WS,4)}, {sr(sQoff+s)} offen offset:{(i%4)*1024}"
                     + (f"\ns_add_u32 {sr(sQoff+s)}, {sr(sQoff+s)}, 4096" if i == 3 else ""))
    return pair() + q + pair()

def attnB(K):
    K(f"""v_mov_b32 {vr(vAK)}, {vr(vL16)}
v_mov_b32 {vr(vAV)}, {vr(vL16)}
v_mov_b32 {vr(vL)}, 0
v_mov_b32 {vr(vL+1)}, 0
s_barrier""")
    for r in range(4): K(f"v_mov_b32 {vr(vE+r)}, 0")
    for ds in range(8): K(kread(0, ds))
    K("s_waitcnt lgkmcnt(0)")
    d23 = pair() + pair()
    for m, d in zip(X(0, raw=True), d23): K(m); K(d)
    for ds in range(8): K(kread(1, ds))
    K(f"v_add_u32 {vr(vAK)}, 32768, {vr(vAK)}\ns_nop 1")
    zero = [f"v_mfma_f32_32x32x16_bf16 {ar(aO+16*i,16)}, {vr(vE,4)}, {vr(vE,4)}, 0" for i in range(8)]
    for s in range(2):
        K(zero.pop()); rowmax(K, range(Sv(0, s), Sv(0, s) + 16), vM + s); xhalf(K, vM + s, "v_max_f32")
    for s in range(2):
        for r in range(16):
            if r % 8 == 0: K(zero.pop())
            K(f"v_sub_f32 {vr(vNegM+s*16+r)}, 0, {vr(vM+s)}")
    K(f"s_cmp_eq_u32 {sr(sBQ0)}, 0\ns_cbranch_scc1 b_m0")
    K.label("b_m0r")
    COLD.append(lambda K: (K.label("b_m0"), K.extend(tri(0)), K("s_branch b_m0r")))
    for s in range(2):
        K(zero.pop())
        for r in range(16): K(f"v_add_f32 {vr(Sv(0,s)+r)}, {vr(vNegM+s*16+r)}, {vr(Sv(0,s)+r)}")
    K.extend(ev_first())
    stamp(K, 2, S_WS, 1 << 17)
    K(f"s_waitcnt lgkmcnt(0)\ns_cmp_eq_u32 {sr(sKf)}, 0\ns_cbranch_scc1 b_tails")
    steady(K)
    K.label("b_tails")
    for w in (1, 2, 3): K(f"s_cmp_eq_u32 {sr(sWave)}, {w}\ns_cbranch_scc1 b_tail{w}")
    for w in range(4): tail(K, w)
    K.label("b_done")
    stamp(K, 3, S_WS, 1 << 17)
    for s in range(2): xhalf(K, vL + s, "v_add_f32")
    check_l(K, [vL, vL + 1], "b_fb")
    COLD.append(lambda K: (K.label("b_fb"), fallbackB(K), K("s_branch b_ok")))
    K.label("b_ok")
    K(f"""v_rcp_f32 {vr(vM)}, {vr(vL)}
v_rcp_f32 {vr(vL)}, {vr(vL+1)}
s_lshl_b32 {sr(sT1)}, {sr(sH)}, 13
s_add_u32 {sr(sT1)}, {sr(sT1)}, {WS_CTX}
s_nop 7""")
    for s in range(2):
        K(f"s_lshl_b32 {sr(sT0)}, {sr(sQt1 if s else sBQ0)}, 18\ns_add_u32 {sr(sT0)}, {sr(sT0)}, {sr(sT1)}")
        rc = vL if s else vM
        for d in range(4):
            b = vS + ((s * 4 + d) % 4) * 16; pk = vP + ((s * 4 + d) % 4) * 8
            for r in range(16): K(f"v_accvgpr_read_b32 {vr(b+r)}, {ar(aO+(s*4+d)*16+r)}")
            for r in range(8): K(f"v_pk_mul_f32 {vr(b+2*r,2)}, {vr(b+2*r,2)}, {vr(rc,2)} op_sel_hi:[1,0]")
            for r in range(8): K(f"v_cvt_pk_bf16_f32 {vr(pk+r)}, {vr(b+2*r)}, {vr(b+2*r+1)}")
            for t in range(2):
                K(f"buffer_store_dwordx4 {vr(pk+4*t,4)}, {vr(vL16)}, {sr(S_WS,4)}, {sr(sT0)} offen offset:{(d%2)*2048+t*1024} {STF2}")
            if d == 1: K(f"s_add_u32 {sr(sT0)}, {sr(sT0)}, 4096")

def fallbackB(K):
    def loadK():
        for ds in range(8):
            K(f"buffer_load_dwordx4 {ar(aK+4*ds,4)}, {vr(vL16)}, {sr(S_WS,4)}, {sr(sAoff)} offen offset:{(ds%4)*1024}")
            if ds % 4 == 3: K(f"s_add_u32 {sr(sAoff)}, {sr(sAoff)}, 4096")
    def masks(nm):
        K(f"s_cmp_lg_u32 {sr(sU)}, {sr(sBQ0)}\ns_cbranch_scc1 {nm}_a")
        K.extend(tri(0)); K.label(nm + "_a")
        K(f"s_cmp_le_u32 {sr(sU)}, {sr(sBQ0)}\ns_cbranch_scc1 {nm}_b")
        for r in range(16): K(f"v_mov_b32 {vr(vNegM+r)}, {vr(vNinf)}")
        K.label(nm + "_b")
        K(f"s_cmp_lg_u32 {sr(sU)}, {sr(sQt1)}\ns_cbranch_scc1 {nm}_c")
        K.extend(tri(1)); K.label(nm + "_c"); K("s_nop 1")
    for r in range(32): K(f"v_mov_b32 {vr(vNegM+r)}, 0")
    K(f"v_mov_b32 {vr(vM)}, {vr(vNinf)}\nv_mov_b32 {vr(vM+1)}, {vr(vNinf)}\ns_mov_b32 {sr(sU)}, 0\ns_mov_b32 {sr(sAoff)}, {sr(sBKV)}")
    K.label("fb1")
    loadK(); K(f"s_add_u32 {sr(sAoff)}, {sr(sAoff)}, 8192")
    masks("fb1m"); K("s_waitcnt vmcnt(0)")
    K.extend(X(0)); K("s_nop 15")
    for s in range(2): rowmax(K, range(Sv(0, s), Sv(0, s) + 16), vM + s, init=True)
    K(f"s_add_u32 {sr(sU)}, {sr(sU)}, 1\ns_cmp_le_u32 {sr(sU)}, {sr(sQt1)}\ns_cbranch_scc1 fb1")
    for s in range(2):
        xhalf(K, vM + s, "v_max_f32")
        for r in range(16): K(f"v_sub_f32 {vr(vNegM+s*16+r)}, 0, {vr(vM+s)}")
    for i in range(128): K(f"v_accvgpr_write_b32 {ar(aO+i)}, 0")
    K(f"v_mov_b32 {vr(vL)}, 0\nv_mov_b32 {vr(vL+1)}, 0\ns_mov_b32 {sr(sU)}, 0\ns_mov_b32 {sr(sAoff)}, {sr(sBKV)}")
    K.label("fb2")
    loadK()
    for i in range(8):
        K(f"buffer_load_dwordx4 {ar(aV+4*i,4)}, {vr(vL16)}, {sr(S_WS,4)}, {sr(sAoff)} offen offset:{(i%4)*1024}")
        if i % 4 == 3: K(f"s_add_u32 {sr(sAoff)}, {sr(sAoff)}, 4096")
    masks("fb2m"); K("s_waitcnt vmcnt(0)")
    K.extend(X(0)); K("s_nop 15")
    for t, c in softmax_ops(0): K(t)
    K("s_nop 1"); K.extend(Y(0))
    K(f"s_add_u32 {sr(sU)}, {sr(sU)}, 1\ns_cmp_le_u32 {sr(sU)}, {sr(sQt1)}\ns_cbranch_scc1 fb2")
    for s in range(2): xhalf(K, vL + s, "v_add_f32")

xS = 16; xP = 48; xQ = 64; xO = 120
vKL = 7
sSplit = 57; sR = 58; sAbase = 59; sTrip = 60
def attnA(K, n, D=4):
    nm = f"att{n}"
    KB = lambda b: b * 16
    def loadl(b):
        return [f"buffer_load_dwordx4 {ar(KB(b),4)}, {vr(vL16)}, {sr(S_WS,4)}, {sr(sAoff)} offen",
                f"buffer_load_dword {ar(KB(b)+4)}, {vr(vKL)}, {sr(S_WS,4)}, {sr(sAoff)} offen offset:3072",
                f"buffer_load_dwordx4 {ar(KB(b)+8,4)}, {vr(vL16)}, {sr(S_WS,4)}, {sr(sAoff)} offen offset:1024",
                f"buffer_load_dwordx4 {ar(KB(b)+12,4)}, {vr(vL16)}, {sr(S_WS,4)}, {sr(sAoff)} offen offset:2048\ns_add_u32 {sr(sAoff)}, {sr(sAoff)}, 4096"]
    def loads(b): K.extend(loadl(b))
    def QK(b, s, p):
        d = vr(xS + p * 16, 16)
        return [f"v_mfma_f32_32x32x16_bf16 {d}, {ar(KB(b),4)}, {vr(xQ+s*8,4)}, 0",
                f"v_mfma_f32_32x32x16_bf16 {d}, {ar(KB(b)+4,4)}, {vr(xQ+s*8+4,4)}, {d}"]
    def PV(b, s, p):
        o = vr(xO + s * 16, 16)
        return [f"v_mfma_f32_32x32x16_bf16 {o}, {ar(KB(b)+8+4*t,4)}, {vr(xP+p*8+4*t,4)}, {o}" for t in range(2)]
    def SM(p):
        g = []
        for q in range(4):
            t = [f"v_exp_f32 {vr(xS+p*16+4*q+r)}, {vr(xS+p*16+4*q+r)}" for r in range(4)]
            t += [f"v_cvt_pk_bf16_f32 {vr(xP+p*8+2*q+r)}, {vr(xS+p*16+4*q+2*r)}, {vr(xS+p*16+4*q+2*r+1)}" for r in range(2)]
            g.append(t)
        return g
    def setm(s, src, K=K):
        K(f"v_sub_f32 {vr(vM)}, 0, {vr(src)}\nv_cvt_pk_bf16_f32 {vr(vM)}, {vr(vM)}, 0")
        K(f"v_cndmask_b32 {vr(xQ+s*8+5)}, {vr(vM)}, 0, {sr(sTri+32,2)}")
    K.label(nm)
    K(f"""s_lshr_b32 {sr(sT0)}, {sr(sWave)}, {sr(sSplit)}
s_mul_i32 {sr(sT0)}, {sr(sT0)}, {n}
s_add_u32 {sr(sQt0)}, {sr(sQt0)}, {sr(sT0)}
s_lshl_b32 {sr(sT0)}, {sr(sH)}, 6
s_add_u32 {sr(sT0)}, {sr(sT0)}, {sr(sQt0)}
s_lshl_b32 {sr(sT0)}, {sr(sT0)}, 11
s_add_u32 {sr(sT0)}, {sr(sT0)}, {WS_QA}
s_mov_b32 {sr(sAoff)}, {sr(sKVbase)}""")
    K(loadl(D - 1)[0]); K(loadl(D - 1)[1])
    for s in range(n):
        K(f"buffer_load_dwordx4 {vr(xQ+s*8,4)}, {vr(vL16)}, {sr(S_WS,4)}, {sr(sT0)} offen")
        K(f"buffer_load_dword {vr(xQ+s*8+4)}, {vr(vKL)}, {sr(S_WS,4)}, {sr(sT0)} offen offset:1024")
        K(f"s_add_u32 {sr(sT0)}, {sr(sT0)}, 2048")
    K(f"s_mov_b32 {sr(sAoff)}, {sr(sAbase)}")
    for b in range(D - 1): loads(b)
    for b in range(D):
        K(f"v_accvgpr_write_b32 {ar(KB(b)+5)}, {vr(vT+1)}\nv_accvgpr_write_b32 {ar(KB(b)+6)}, 0\nv_accvgpr_write_b32 {ar(KB(b)+7)}, 0")
    for s in range(n):
        for r in range(5, 8): K(f"v_mov_b32 {vr(xQ+s*8+r)}, 0")
    for r in range(16): K(f"v_mov_b32 {vr(xP+r)}, 0")
    K("s_nop 1")
    for s in range(n): K(f"v_mfma_f32_32x32x16_bf16 {vr(xO+16*s,16)}, {vr(xP,4)}, {vr(xP,4)}, 0")
    for r in range(8): K(f"v_accvgpr_write_b32 {ar(KB(D-1)+8+r)}, 0")
    K(f"s_waitcnt vmcnt({4*(D-1)})")
    for s in range(n): K(f"v_cndmask_b32 {vr(xQ+s*8+4)}, {vr(xQ+s*8+4)}, 0, {sr(sTri+32,2)}")
    K("s_nop 0"); K.extend(QK(D - 1, 0, 0))
    for s in range(n):
        if s + 1 < n: K.extend(QK(D - 1, s + 1, (s + 1) & 1))
        K("s_nop 11")
        rowmax(K, range(xS + (s & 1) * 16, xS + (s & 1) * 16 + 16), vM); xhalf(K, vM, "v_max_f32"); setm(s, vM)
    stamp(K, 5, S_WS, 1 << 17)
    K(f"s_mov_b32 {sr(sU)}, {sr(sTrip)}")
    K(f"s_waitcnt vmcnt({4*(D-2)})")
    K.extend(QK(0, 0, 0))
    K("s_nop 11")
    T = D * n
    assert T % 2 == 0
    def iteration(last):
        extra = preB() if last else []
        step = (4 * T) // len(extra) if last else 0
        issued = 0
        for t in range(T):
            u, s = divmod(t, n); p = t & 1
            un, sn = divmod(t + 1, n); up, sp = divmod(t - 1 + T, n)
            sm = SM(p)
            ld = loadl((u - 1) % D)
            at = {(0, 0): ld[0], (0, 1): ld[1], (0, 3): ld[2], (1, 0): ld[3]}
            if last and u > 0: at = {}
            if not last:
                if sn == 0: K(f"s_waitcnt vmcnt({4*(D-2) - (1 if n == 2 else 0)})")
            elif sn == 0 and un < D:
                K(f"s_waitcnt vmcnt({4*(D-2-un) + issued if un < D - 1 else issued - lastpos})")
            ms = QK(un % D, sn, p ^ 1) + PV(up % D, sp, p ^ 1)
            for q in range(4):
                if not (last and un == D and q < 2): K(ms[q])
                if (s, q) in at:
                    K(at[(s, q)]); issued += 1
                    if (s, q) == (1, 0): lastpos = issued
                elif last and extra and (4 * t + q) >= 5 and ((4 * t + q) % step == step - 1 or len(extra) >= 4 * T - (4 * t + q)):
                    K(extra.pop(0)); issued += 1
                K.extend(sm[q])
        K.extend(extra)
    K(f"s_sub_u32 {sr(sU)}, {sr(sU)}, 1")
    K.label(nm + "_loop")
    iteration(False)
    K(f"s_sub_u32 {sr(sU)}, {sr(sU)}, 1\ns_cmp_lg_u32 {sr(sU)}, 0\ns_cbranch_scc1 {nm}_loop")
    iteration(True)
    K("s_nop 1")
    K.extend(PV((D - 1), n - 1, (T - 1) & 1))
    stamp(K, 6, S_WS, 1 << 17)
    K(f"""s_mul_i32 {sr(sT0)}, {sr(sQt0)}, {36*1024}
s_add_u32 {sr(sT0)}, {sr(sT0)}, {WS_OAF}
s_lshl_b32 {sr(sT1)}, {sr(sH)}, 10
s_add_u32 {sr(sN)}, {sr(sT1)}, {sr(sT0)}
s_lshr_b32 {sr(sT2)}, {sr(sH)}, 3
s_lshl_b32 {sr(sT2)}, {sr(sT2)}, 10
s_add_u32 {sr(sT0)}, {sr(sT0)}, {sr(sT2)}
s_bfe_u32 {sr(sT2)}, {sr(sH)}, 0x10002
s_lshl_b32 {sr(sT2)}, {sr(sT2)}, 9
s_add_u32 {sr(sT0)}, {sr(sT0)}, {sr(sT2)}
s_and_b32 {sr(sT2)}, {sr(sH)}, 3
s_lshl_b32 {sr(sT2)}, {sr(sT2)}, 2
s_add_u32 {sr(sT0)}, {sr(sT0)}, {sr(sT2)}
s_add_u32 {sr(sFB)}, {sr(sT0)}, {32*1024}
v_mov_b32 {vr(vT+2)}, 0x80000000
v_cndmask_b32 {vr(vT+2)}, {vr(vL16)}, {vr(vT+2)}, {sr(sTri+32,2)}
s_cmp_eq_u32 {sr(sSplit)}, 0
s_cbranch_scc1 {nm}_fin""")
    K(f"s_mul_i32 {sr(sT0)}, {sr(sWave)}, 24576\ns_add_u32 {sr(sT0)}, {sr(sT0)}, 65536\nv_add_u32 {vr(vT)}, {sr(sT0)}, {vr(vL16)}")
    for s in range(n):
        for q in range(3): K(f"ds_write_b128 {vr(vT)}, {vr(xO+s*16+4*q,4)} offset:{(s*3+q)*1024}")
    K(f"s_waitcnt lgkmcnt(0)\ns_barrier\ns_mov_b32 {sr(sU)}, 1")
    K.label(nm + "_cmb")
    K(f"""s_xor_b32 {sr(sT0)}, {sr(sWave)}, {sr(sU)}
s_mul_i32 {sr(sT0)}, {sr(sT0)}, 24576
s_add_u32 {sr(sT0)}, {sr(sT0)}, 65536
v_add_u32 {vr(vT)}, {sr(sT0)}, {vr(vL16)}""")
    for s0 in range(0, n, 4):
        ss = range(s0, min(n, s0 + 4))
        for s in ss:
            for q in range(3): K(f"ds_read_b128 {vr(xS+(s-s0)*12+4*q,4)}, {vr(vT)} offset:{(s*3+q)*1024}")
        K("s_waitcnt lgkmcnt(0)")
        for s in ss:
            for r in range(11): K(f"v_add_f32 {vr(xO+s*16+r)}, {vr(xO+s*16+r)}, {vr(xS+(s-s0)*12+r)}")
    K(f"""s_add_u32 {sr(sU)}, {sr(sU)}, 1
s_lshr_b32 {sr(sT0)}, {sr(sU)}, {sr(sSplit)}
s_cmp_eq_u32 {sr(sT0)}, 0
s_cbranch_scc1 {nm}_cmb
s_barrier""")
    K.label(nm + "_fin")
    K("s_nop 7")
    for s in range(n):
        o = xO + s * 16
        K(f"s_lshl_b32 {sr(sT0)}, 1, {sr(sSplit)}\ns_sub_u32 {sr(sT0)}, {sr(sT0)}, 1\ns_and_b32 {sr(sT0)}, {sr(sT0)}, {s}")
        K(f"s_cmp_lg_u32 {sr(sT0)}, {sr(sR)}\ns_cbranch_scc1 {nm}_skip{s}")
        check_l(K, [o + 10], f"{nm}_fb{s}")
        def exact(K, s=s, o=o):
            K.label(f"{nm}_fb{s}"); K("s_waitcnt vmcnt(0)")
            K(f"v_mov_b32 {vr(xQ+s*8+5)}, 0\nv_mov_b32 {vr(vL)}, {vr(vNinf)}\ns_mov_b32 {sr(sAoff)}, {sr(sKVbase)}\ns_mov_b32 {sr(sU)}, 64")
            K.label(f"{nm}_f1_{s}")
            K.extend(loadl(0)); K("s_waitcnt vmcnt(0)"); K.extend(QK(0, s, 0)); K("s_nop 11"); rowmax(K, range(xS, xS + 16), vL, init=True)
            K(f"s_sub_u32 {sr(sU)}, {sr(sU)}, 1\ns_cmp_lg_u32 {sr(sU)}, 0\ns_cbranch_scc1 {nm}_f1_{s}")
            xhalf(K, vL, "v_max_f32"); setm(s, vL, K)
            for r in range(16): K(f"v_mov_b32 {vr(o+r)}, 0")
            K(f"s_mov_b32 {sr(sAoff)}, {sr(sKVbase)}\ns_mov_b32 {sr(sU)}, 64")
            K.label(f"{nm}_f2_{s}")
            K.extend(loadl(0)); K("s_waitcnt vmcnt(0)"); K.extend(QK(0, s, 0)); K("s_nop 11")
            for g in SM(0): K.extend(g)
            K("s_nop 1"); K.extend(PV(0, s, 0))
            K(f"s_sub_u32 {sr(sU)}, {sr(sU)}, 1\ns_cmp_lg_u32 {sr(sU)}, 0\ns_cbranch_scc1 {nm}_f2_{s}")
            K("s_nop 11")
            K(f"s_branch {nm}_ok{s}")
        COLD.append(exact)
        K.label(f"{nm}_ok{s}")
        K(f"v_rcp_f32 {vr(o+10)}, {vr(o+10)}\ns_nop 0")
        for r in range(10): K(f"v_mul_f32 {vr(o+r)}, {vr(o+10)}, {vr(o+r)}")
        for r in range(5): K(f"v_cvt_pk_bf16_f32 {vr(o+12+r if r < 4 else o+11)}, {vr(o+2*r)}, {vr(o+2*r+1)}")
        K(f"buffer_store_dwordx4 {vr(o+12,4)}, {vr(vL16)}, {sr(S_WS,4)}, {sr(sN)} offen")
        K(f"buffer_store_dword {vr(o+11)}, {vr(vT+2)}, {sr(S_WS,4)}, {sr(sFB)} offen")
        K.label(f"{nm}_skip{s}")
        K(f"s_add_u32 {sr(sN)}, {sr(sN)}, {36*1024}\ns_add_u32 {sr(sFB)}, {sr(sFB)}, {36*1024}")
    K("s_branch k2_B")

ATAB = eval(os.environ.get('ATAB', '[(4,0),(7,1),(3,0),(5,1),(3,1),(4,2),(2,2),None]'))
def dispatchA(K):
    qt = 0
    K(f"""s_lshl_b32 {sr(sKVbase)}, {sr(sH)}, 18
s_add_u32 {sr(sKVbase)}, {sr(sKVbase)}, {WS_KVA}
v_mov_b32 {vr(vT+1)}, 0x3f80""")
    for j, e in enumerate(ATAB):
        if e is None: continue
        n, ls = e
        K(f"""s_cmp_lg_u32 {sr(sJ)}, {j}
s_cbranch_scc1 a_not{j}
s_mov_b32 {sr(sQt0)}, {qt}
s_mov_b32 {sr(sSplit)}, {ls}
s_mov_b32 {sr(sTrip)}, {16 >> ls}
s_and_b32 {sr(sR)}, {sr(sWave)}, {(1 << ls) - 1}
s_mul_i32 {sr(sAbase)}, {sr(sR)}, {(64 >> ls) * 4096}
s_add_u32 {sr(sAbase)}, {sr(sAbase)}, {sr(sKVbase)}
s_branch att{n}
a_not{j}:""")
        qt += n * (4 >> ls)
    assert qt == 64, qt
    K.extend(preB())
    K("s_waitcnt vmcnt(8)\ns_branch k2_B3")
    for n in sorted({e[0] for e in ATAB if e}): attnA(K, n)

WOJ = eval(os.environ.get('WOJ', '(0,2,4)'))
WOST = 65536 + 9216
def wo_issue(K):
    vW = 240; vWl = 241
    K(f"s_mov_b32 {sr(sGw)}, 3")
    for i, j in enumerate(WOJ): K(f"s_cmp_eq_u32 {sr(sJ)}, {j}\ns_cselect_b32 {sr(sGw)}, {i}, {sr(sGw)}")
    K(f"""s_cmp_eq_u32 {sr(sGw)}, 3
s_cbranch_scc1 k2_nowo
s_lshl_b32 {sr(sT0)}, {sr(sH)}, 2
s_add_u32 {sr(sT0)}, {sr(sT0)}, {sr(sWave)}
s_mul_i32 {sr(sJunk)}, {sr(sWave)}, 24576
s_add_u32 {sr(sJunk)}, {sr(sJunk)}, {WOST}
v_lshrrev_b32 v20, 2, {vr(vLane)}
v_mul_u32_u24 v21, 1152, v20
v_and_b32 v22, 3, {vr(vLane)}
v_lshlrev_b32 v22, 4, v22
v_add_u32 {vr(vW)}, v21, v22
s_mul_i32 {sr(sT1)}, {sr(sT0)}, {32*1152}
s_mul_i32 {sr(sT2)}, {sr(sGw)}, 384
s_add_u32 {sr(sT1)}, {sr(sT1)}, {sr(sT2)}
s_lshl_b32 {sr(sWoD)}, {sr(sT0)}, 11
s_mul_i32 {sr(sT3)}, {sr(sGw)}, {6*262144}
s_add_u32 {sr(sWoD)}, {sr(sWoD)}, {sr(sT3)}
s_add_u32 {sr(sWoD)}, {sr(sWoD)}, {WS_WOF}""")
    for i in range(12):
        K(f"s_add_u32 m0, {sr(sJunk)}, {i*1024 - (i%6)*64}")
        K(f"s_add_u32 {sr(sT1)}, {sr(sT1)}, {16*1152}" if i == 6 else "s_nop 0")
        K(f"buffer_load_dwordx4 {vr(vW)}, {sr(S_W2,4)}, {sr(sT1)} offen offset:{(i%6)*64} lds")
    K(f"""v_bfe_u32 v23, v20, 2, 1
v_lshlrev_b32 v23, 2, v23
v_lshrrev_b32 v24, 3, v20
v_lshlrev_b32 v24, 1, v24
v_add_u32 v23, v23, v24
v_bfe_u32 v24, v20, 1, 1
v_add_u32 v23, v23, v24
v_mul_u32_u24 v23, 18, v23
v_and_b32 v24, 1, v20
v_add_u32 v23, v23, v24
v_add_u32 v23, 16, v23
v_mul_u32_u24 v23, 1152, v23
v_add_u32 {vr(vWl)}, v23, v22
s_mul_i32 {sr(sT3)}, {sr(sGw)}, 6
s_lshl_b32 {sr(sT1)}, {sr(sWave)}, 1
s_add_u32 {sr(sT1)}, {sr(sT1)}, {sr(sT3)}
s_mov_b32 {sr(sT0)}, {sr(sH)}
s_mul_i32 {sr(sT2)}, {sr(sH)}, {18*1152}
s_cmp_lg_u32 {sr(sWave)}, 3
s_cbranch_scc1 k2_wo1
s_and_b32 {sr(sT0)}, {sr(sH)}, 3
s_mul_i32 {sr(sT2)}, {sr(sT0)}, {144*1152}
s_add_u32 {sr(sT0)}, {sr(sT0)}, 32
s_lshr_b32 {sr(sT1)}, {sr(sH)}, 2
s_min_u32 {sr(sT1)}, {sr(sT1)}, 2
s_lshl_b32 {sr(sT1)}, {sr(sT1)}, 1
s_add_u32 {sr(sT1)}, {sr(sT1)}, {sr(sT3)}
v_mov_b32 {vr(vW)}, {vr(vWl)}
k2_wo1:
s_mul_i32 {sr(sWoD+1)}, {sr(sT1)}, {36*1024}
s_lshl_b32 {sr(sT0)}, {sr(sT0)}, 10
s_add_u32 {sr(sWoD+1)}, {sr(sWoD+1)}, {sr(sT0)}
s_add_u32 {sr(sWoD+1)}, {sr(sWoD+1)}, {WS_WOFA}
s_lshl_b32 {sr(sT1)}, {sr(sT1)}, 6
s_add_u32 {sr(sT2)}, {sr(sT2)}, {sr(sT1)}""")
    for i in range(2):
        K(f"s_add_u32 m0, {sr(sJunk)}, {(12+i)*1024 - i*64}\ns_nop 0")
        K(f"buffer_load_dwordx4 {vr(vW)}, {sr(S_W1,4)}, {sr(sT2)} offen offset:{i*64} lds")
    K.label("k2_nowo")

def wo_finish(K):
    vTr = 18; R0 = 32
    K(f"""s_cmp_eq_u32 {sr(sGw)}, 3
s_cbranch_scc1 k2_B2
v_lshrrev_b32 v20, 5, {vr(vLane)}
v_lshlrev_b32 {vr(vTr)}, 8, v20
v_bfe_u32 v21, {vr(vLane)}, 2, 2
v_lshlrev_b32 v21, 6, v21
v_add_u32 {vr(vTr)}, {vr(vTr)}, v21
v_bfe_u32 v21, {vr(vLane)}, 4, 1
v_lshlrev_b32 v21, 5, v21
v_add_u32 {vr(vTr)}, {vr(vTr)}, v21
v_and_b32 v21, 3, {vr(vLane)}
v_lshlrev_b32 v21, 3, v21
v_add_u32 {vr(vTr)}, {vr(vTr)}, v21
v_add_u32 {vr(vTr)}, {sr(sJunk)}, {vr(vTr)}""")
    for i in range(14):
        K(f"ds_read_b64_tr_b16 {vr(R0+4*i,2)}, {vr(vTr)} offset:{i*1024}")
        K(f"ds_read_b64_tr_b16 {vr(R0+4*i+2,2)}, {vr(vTr)} offset:{i*1024+512}")
        if i % 4 == 3: K("s_waitcnt lgkmcnt(4)")
    K("s_waitcnt vmcnt(0) lgkmcnt(0)")
    for i in range(6):
        for k in range(2):
            K(f"buffer_store_dwordx4 {vr(R0+4*(6*k+i),4)}, {vr(vL16)}, {sr(S_WS,4)}, {sr(sWoD)} offen offset:{k*1024} {STF2}")
        K(f"s_add_u32 {sr(sWoD)}, {sr(sWoD)}, 262144")
    for i in range(2):
        K(f"buffer_store_dwordx4 {vr(R0+4*(12+i),4)}, {vr(vL16)}, {sr(S_WS,4)}, {sr(sWoD+1)} offen {STF2}")
        K(f"s_add_u32 {sr(sWoD+1)}, {sr(sWoD+1)}, {36*1024}")
    K("s_branch k2_B3")

def srd(K, d, p, size):
    K(f"s_mov_b32 {sr(d)}, {sr(p)}\ns_mov_b32 {sr(d+1)}, {sr(p+1)}\ns_mov_b32 {sr(d+2)}, {size}\ns_mov_b32 {sr(d+3)}, 0x20000")

def build():
    K = Kernel("attn_kernel"); K.force_vgpr = 512
    K.hot = ["b_loop"] + [f"att{n}_loop" for n in range(1, 9)] + [f"b_tail{w}" for w in range(4)]
    K(f"""s_cmp_ge_u32 s2, 256
s_cbranch_scc1 k2_exit
s_load_dwordx2 {sr(sPtr,2)}, s[0:1], {KA_AWO}
s_load_dwordx2 {sr(sPtr+2,2)}, s[0:1], {KA_WO}
s_load_dwordx2 {sr(sPtr+4,2)}, s[0:1], {KA_WS}
v_and_b32 {vr(vLane)}, 63, v0
v_lshrrev_b32 {vr(vT)}, 6, v0
v_lshlrev_b32 {vr(vL16)}, 4, {vr(vLane)}
s_and_b32 {sr(sT0)}, s2, 7
s_lshr_b32 {sr(sT1)}, s2, 3
v_readfirstlane_b32 {sr(sWave)}, {vr(vT)}
s_lshr_b32 {sr(sJ)}, {sr(sT1)}, 2
s_sub_u32 {sr(sJ)}, 7, {sr(sJ)}
s_and_b32 {sr(sT1)}, {sr(sT1)}, 3
s_lshl_b32 {sr(sH)}, {sr(sT0)}, 2
s_add_u32 {sr(sH)}, {sr(sH)}, {sr(sT1)}
v_mov_b32 {vr(vNinf)}, 0xff800000
s_mov_b32 {sr(sLo)}, {f32bits(2.0**-64)}
s_mov_b32 {sr(sHi)}, {f32bits(2.0**64)}
v_and_b32 {vr(vD)}, 31, {vr(vLane)}
v_lshlrev_b32 {vr(vKL)}, 2, {vr(vD)}
v_lshrrev_b32 {vr(vT)}, 5, {vr(vLane)}
v_lshlrev_b32 {vr(vT)}, 2, {vr(vT)}
v_sub_u32 {vr(vD)}, {vr(vD)}, {vr(vT)}""")
    for r in range(16): K(f"v_cmp_gt_i32 {sr(sTri+2*r,2)}, {8*(r>>2)+(r&3)}, {vr(vD)}")
    K(f"v_cmp_lt_u32 {sr(sTri+32,2)}, 31, {vr(vLane)}")
    if CPF: code_prefetch(K, sT0, vT, 252, "oproj_kernel", vL16, sWave)
    K("s_waitcnt lgkmcnt(0)")
    srd(K, S_WS, sPtr + 4, WS_SIZE); srd(K, S_KV, sPtr + 4, WS_SIZE)
    srd(K, S_W1, sPtr, SZ_AWO); srd(K, S_W2, sPtr + 2, SZ_WO)
    stamp(K, 0, S_WS, 1 << 17)
    if STAMP: K("s_waitcnt vmcnt(0)")
    setupB(K)
    wo_issue(K)
    dispatchA(K)
    K.label("k2_B")
    stamp(K, 7, S_WS, 1 << 17)
    wo_finish(K)
    K.label("k2_B2")
    K("s_waitcnt vmcnt(0)")
    K.label("k2_B3")
    stamp(K, 1, S_WS, 1 << 17)
    attnB(K)
    stamp(K, 4, S_WS, 1 << 17)
    K.label("k2_exit")
    K("s_endpgm")
    for f in COLD: f(K)
    return K
```

```python
from dsl import *
from layout import *
import os

S_WS = 8; S_OUT = 12; S_C = 16; S_W = 56
sWave = 28; sQt = 29; sMc = 30; sKh = 31; sT0 = 32; sT1 = 33; sT2 = 34; sC = 35; sW = 36; sN = 39; sOut = 40
sSlotW = 41; sSlotR = 42; sTile = 43; sCnt = 44; sPtr = 48
vLane = 1; vL16 = 2; vRd = 3; vOut = 5; vAcc = 16; vWb = 64; vX = 160; vPk = 200
P = int(os.environ.get('K3P', '3'))
R = P + 1
RC = 4
assert P + 1 <= RC
def cfrag(st, k): return ar(((st % RC) * 4 + k) * 4, 4)
def wfrag(st, k, m): return vr(vWb + ((st & 1) * 12 + k * 3 + m) * 4, 4)
def issue(st):
    out = []
    for m in range(3):
        out.append([f"s_add_u32 m0, {sr(sSlotW)}, {m*1024}", f"buffer_load_dwordx4 {vr(vL16)}, {sr(S_W+4*m,4)}, {sr(sW+m)} offen lds", f"s_add_u32 {sr(sW+m)}, {sr(sW+m)}, 4096"])
    for k in range(4):
        out.append(["", f"buffer_load_dwordx4 {cfrag(st, k)}, {vr(vL16)}, {sr(S_C,4)}, {sr(sC)} offen offset:{k*1024}", ""])
    out[-1][2] = f"s_add_u32 {sr(sC)}, {sr(sC)}, 4096"
    return out
def nextW(): return f"s_add_u32 {sr(sSlotW)}, {sr(sSlotW)}, 12288\ns_cmp_ge_u32 {sr(sSlotW)}, {R*12288}\ns_cselect_b32 {sr(sT0)}, {R*12288}, 0\ns_sub_u32 {sr(sSlotW)}, {sr(sSlotW)}, {sr(sT0)}"
def issue_all(K, st):
    for a, b, c in issue(st): K(a); K("s_nop 0" if a else ""); K(b); K(c)
    K(nextW())
def wreads(st): return [f"ds_read_b128 {wfrag(st, k, m)}, {vr(vRd)} offset:{(k*3+m)*1024}" for k in range(4) for m in range(3)]
def nextR(): return f"s_add_u32 {sr(sSlotR)}, {sr(sSlotR)}, 12288\ns_cmp_ge_u32 {sr(sSlotR)}, {R*12288}\ns_cselect_b32 {sr(sSlotR)}, 0, {sr(sSlotR)}\nv_add_u32 {vr(vRd)}, {sr(sSlotR)}, {vr(vL16)}"
def mf(st): return [f"v_mfma_f32_32x32x16_bf16 {vr(vAcc+m*16,16)}, {wfrag(st, k, m)}, {cfrag(st, k)}, {vr(vAcc+m*16,16)}" for k in range(4) for m in range(3)]

def tile(K, nm):
    K(f"s_mul_i32 {sr(sSlotW)}, {sr(sWave)}, 3072\ns_mov_b32 {sr(sSlotR)}, 0\nv_mov_b32 {vr(vRd)}, {vr(vL16)}")
    for st in range(P): issue_all(K, st)
    for r in range(48): K(f"v_mov_b32 {vr(vAcc+r)}, 0")
    K(f"s_waitcnt vmcnt({7*(P-1)})\ns_barrier")
    K.extend(wreads(0)); issue_all(K, P); K(nextR())
    K.label(nm + "_loop")
    for st in range(RC):
        K(f"s_waitcnt vmcnt({7*(P-1)}) lgkmcnt(0)\ns_barrier")
        ms = mf(st); rd = wreads(st + 1); iss = issue(st + 1 + P)
        assert (st + 1 + P) % RC == st % RC or P + 1 < RC
        at = {1: 0, 3: 1, 5: 2, 6: 3, 8: 4, 10: 5, 11: 6}
        for g in range(12):
            K(ms[g])
            if g in at: K(iss[at[g]][1])
            if g < 6: K(rd[2 * g]); K(rd[2 * g + 1])
            if g in at: K(iss[at[g]][2])
            if g + 1 in at: K(iss[at[g + 1]][0])
            if g == 7: K(nextW())
            if g == 9: K(nextR())
    K(f"s_sub_u32 {sr(sN)}, {sr(sN)}, 1\ns_cmp_lg_u32 {sr(sN)}, 0\ns_cbranch_scc1 {nm}_loop")
    K("s_waitcnt lgkmcnt(0)\ns_nop 9")

def out_store(K, src, m, half, pk):
    for r in range(4): K(f"v_cvt_pk_bf16_f32 {vr(pk+r)}, {vr(src+2*r)}, {vr(src+2*r+1)}")
    K(f"s_nop 1\nv_permlane32_swap_b32 {vr(pk)}, {vr(pk+2)}\nv_permlane32_swap_b32 {vr(pk+1)}, {vr(pk+3)}")
    K(f"buffer_store_dwordx4 {vr(pk,4)}, {vr(vOut)}, {sr(S_OUT,4)}, {sr(sOut)} offen offset:{m*64 + half*32}")

def srd(K, d, p, size):
    K(f"s_mov_b32 {sr(d)}, {sr(p)}\ns_mov_b32 {sr(d+1)}, {sr(p+1)}\ns_mov_b32 {sr(d+2)}, {size}\ns_mov_b32 {sr(d+3)}, 0x20000")

def build():
    K = Kernel("oproj_kernel"); K.force_vgpr = 512
    K.hot = ["k3b_loop", "k3a_loop"]
    K(f"""s_cmp_ge_u32 s2, 256
s_cbranch_scc1 k3_exit
s_load_dwordx4 {sr(sPtr,4)}, s[0:1], {KA_OUT}
s_load_dwordx2 {sr(sPtr+4,2)}, s[0:1], {KA_WS}
v_and_b32 {vr(vLane)}, 63, v0
v_lshrrev_b32 v6, 6, v0
v_lshlrev_b32 {vr(vL16)}, 4, {vr(vLane)}
s_and_b32 {sr(sT0)}, s2, 7
s_lshr_b32 {sr(sT1)}, s2, 3
v_readfirstlane_b32 {sr(sWave)}, v6
v_and_b32 v7, 31, {vr(vLane)}
v_mul_u32_u24 v7, 2304, v7
v_lshrrev_b32 v8, 5, {vr(vLane)}
v_lshlrev_b32 v8, 4, v8
v_add_u32 {vr(vOut)}, v7, v8
s_and_b32 {sr(sKh)}, {sr(sT0)}, 1
s_lshr_b32 {sr(sT0)}, {sr(sT0)}, 1
s_lshl_b32 {sr(sT0)}, {sr(sT0)}, 2
s_and_b32 {sr(sT2)}, {sr(sT1)}, 3
s_add_u32 {sr(sT0)}, {sr(sT0)}, {sr(sT2)}
s_lshr_b32 {sr(sMc)}, {sr(sT1)}, 2
s_mul_i32 {sr(sTile)}, {sr(sT0)}, 6
s_add_u32 {sr(sTile)}, {sr(sTile)}, {sr(sMc)}
s_lshl_b32 {sr(sQt)}, {sr(sT0)}, 2
s_add_u32 {sr(sQt)}, {sr(sQt)}, {sr(sWave)}
s_mul_i32 {sr(sOut)}, {sr(sQt)}, {32*2304}
s_waitcnt lgkmcnt(0)""")
    srd(K, S_WS, sPtr + 4, WS_SIZE); srd(K, S_OUT, sPtr, SZ_OUT);
    srd(K, S_C, sPtr + 4, WS_SIZE);
    for m in range(3): srd(K, S_W + 4 * m, sPtr + 4, WS_SIZE)
    stamp(K, 0, S_WS, 2 << 17)
    if STAMP: K("s_waitcnt vmcnt(0)")
    K(f"""s_cmp_ge_u32 {sr(sMc)}, 6
s_cbranch_scc1 k3_A
s_lshl_b32 {sr(sT0)}, {sr(sKh)}, 17
s_lshl_b32 {sr(sC)}, {sr(sQt)}, 18
s_add_u32 {sr(sC)}, {sr(sC)}, {sr(sT0)}
s_add_u32 {sr(sC)}, {sr(sC)}, {WS_CTX}
s_add_u32 {sr(S_C+2)}, {sr(sC)}, 131072
s_mul_i32 {sr(sW)}, {sr(sMc)}, {3*262144}
s_add_u32 {sr(sW)}, {sr(sW)}, {sr(sT0)}
s_lshl_b32 {sr(sT0)}, {sr(sWave)}, 10
s_add_u32 {sr(sW)}, {sr(sW)}, {sr(sT0)}
s_add_u32 {sr(sW)}, {sr(sW)}, {WS_WOF}
s_add_u32 {sr(sW+1)}, {sr(sW)}, 262144
s_add_u32 {sr(sW+2)}, {sr(sW)}, 524288
s_add_u32 {sr(S_W+2)}, {sr(sW)}, {131072 - 3072}
s_add_u32 {sr(S_W+6)}, {sr(sW+1)}, {131072 - 3072}
s_add_u32 {sr(S_W+10)}, {sr(sW+2)}, {131072 - 3072}
s_mul_i32 {sr(sT0)}, {sr(sMc)}, 192
s_add_u32 {sr(sOut)}, {sr(sOut)}, {sr(sT0)}
s_lshl_b32 {sr(sT0)}, {sr(sKh)}, 5
s_add_u32 {sr(sOut)}, {sr(sOut)}, {sr(sT0)}
s_add_u32 {sr(sOut)}, {sr(sOut)}, 1152
s_mov_b32 {sr(sN)}, {32 // RC}""")
    if os.environ.get('K3VAR') == 'same':
        K(f"s_lshl_b32 {sr(sT0)}, {sr(sWave)}, 18\ns_add_u32 {sr(sC)}, {sr(sT0)}, {WS_CTX}\ns_add_u32 {sr(S_C+2)}, {sr(sC)}, 131072\ns_lshl_b32 {sr(sT0)}, {sr(sWave)}, 10")
        for m in range(3): K(f"s_add_u32 {sr(sW+m)}, {sr(sT0)}, {WS_WOF + m*262144}")
    tile(K, "k3b")
    stamp(K, 1, S_WS, 2 << 17)
    K(f"""s_lshl_b32 {sr(sT1)}, {sr(sTile)}, 1
s_add_u32 {sr(sT2)}, {sr(sT1)}, {sr(sKh)}
s_xor_b32 {sr(sT0)}, {sr(sT2)}, 1
s_lshl_b32 {sr(sC)}, {sr(sT0)}, 2
s_add_u32 {sr(sC)}, {sr(sC)}, {sr(sWave)}
s_mul_i32 {sr(sC)}, {sr(sC)}, 6144
s_add_u32 {sr(sC)}, {sr(sC)}, {WS_XCH}
s_lshl_b32 {sr(sW)}, {sr(sT2)}, 2
s_add_u32 {sr(sW)}, {sr(sW)}, {sr(sWave)}
s_mul_i32 {sr(sW)}, {sr(sW)}, 6144
s_add_u32 {sr(sW)}, {sr(sW)}, {WS_XCH}
s_add_u32 {sr(sW+1)}, {sr(sW)}, 2048
s_add_u32 {sr(sW+2)}, {sr(sC)}, 2048
s_cmp_eq_u32 {sr(sKh)}, 0
s_cbranch_scc1 k3_keep""")
    for m in range(3):
        for r in range(8): K(f"v_swap_b32 {vr(vAcc+m*16+r)}, {vr(vAcc+m*16+8+r)}")
    K.label("k3_keep")
    for i in range(6):
        K(f"buffer_store_dwordx4 {vr(vAcc+(i//2)*16+8+(i%2)*4,4)}, {vr(vL16)}, {sr(S_WS,4)}, {sr(sC if i < 2 else sW+2)} offen offset:{(i if i < 2 else i-2)*1024} sc1")
    stamp(K, 3, S_WS, 2 << 17)
    K(f"s_mov_b32 {sr(sN)}, 0x100000")
    K.label("k3_poll")
    if os.environ.get('K3POLL', '1') == '1':
        K(f"""buffer_load_dword v6, {vr(vL16)}, {sr(S_WS,4)}, {sr(sW+1)} offen offset:3072 sc1
s_sub_u32 {sr(sN)}, {sr(sN)}, 1
s_cmp_lt_i32 {sr(sN)}, 0
s_cbranch_scc1 k3_all
s_waitcnt vmcnt(0)
v_cmp_eq_u32 vcc, -1, v6
s_cmp_lg_u64 vcc, 0
s_cbranch_scc1 k3_poll
k3_all:""")
    for i in range(6):
        K(f"buffer_load_dwordx4 {vr(vX+4*i,4)}, {vr(vL16)}, {sr(S_WS,4)}, {sr(sW if i < 2 else sW+1)} offen offset:{(i if i < 2 else i-2)*1024} sc1")
    K(f"s_cmp_lt_i32 {sr(sN)}, 0\ns_cbranch_scc1 k3_got\ns_waitcnt vmcnt(0)")
    K(f"v_max_u32 v6, {vr(vX)}, {vr(vX+1)}\ns_sub_u32 {sr(sN)}, {sr(sN)}, 1")
    for r in range(2, 24, 2): K(f"v_max3_u32 v6, v6, {vr(vX+r)}, {vr(vX+r+1)}")
    K(f"v_cmp_eq_u32 vcc, -1, v6\ns_cmp_lg_u64 vcc, 0\ns_cbranch_scc1 k3_poll")
    K.label("k3_got")
    K("s_waitcnt vmcnt(0)")
    stamp(K, 4, S_WS, 2 << 17)
    for m in range(3):
        for r in range(8): K(f"v_add_f32 {vr(vAcc+m*16+r)}, {vr(vAcc+m*16+r)}, {vr(vX+8*m+r)}")
        out_store(K, vAcc + m * 16, m, 0, vPk + 4 * m)
    stamp(K, 5, S_WS, 2 << 17)
    K("s_branch k3_end")
    K.label("k3_A")
    K(f"""s_sub_u32 {sr(sMc)}, {sr(sMc)}, 6
s_lshl_b32 {sr(sMc)}, {sr(sMc)}, 1
s_add_u32 {sr(sMc)}, {sr(sMc)}, {sr(sKh)}
s_mov_b32 {sr(sCnt)}, {sr(sOut)}""")
    K.label("k3_Aloop")
    K(f"""s_mul_i32 {sr(sC)}, {sr(sQt)}, {36*1024}
s_add_u32 {sr(sC)}, {sr(sC)}, {WS_OAF}
s_add_u32 {sr(S_C+2)}, {sr(sC)}, {36*1024}
s_mul_i32 {sr(sW)}, {sr(sMc)}, {3*36*1024}
s_lshl_b32 {sr(sT0)}, {sr(sWave)}, 10
s_add_u32 {sr(sW)}, {sr(sW)}, {sr(sT0)}
s_add_u32 {sr(sW)}, {sr(sW)}, {WS_WOFA}
s_add_u32 {sr(sW+1)}, {sr(sW)}, {36*1024}
s_add_u32 {sr(sW+2)}, {sr(sW)}, {72*1024}
s_add_u32 {sr(S_W+2)}, {sr(sW)}, {36*1024 - 3072}
s_add_u32 {sr(S_W+6)}, {sr(sW+1)}, {36*1024 - 3072}
s_add_u32 {sr(S_W+10)}, {sr(sW+2)}, {36*1024 - 3072}
s_mul_i32 {sr(sT0)}, {sr(sMc)}, 192
s_add_u32 {sr(sOut)}, {sr(sCnt)}, {sr(sT0)}
s_mov_b32 {sr(sN)}, {12 // RC}""")
    tile(K, "k3a")
    stamp(K, 1, S_WS, 2 << 17)
    for m in range(3):
        for h in range(2): out_store(K, vAcc + m * 16 + 8 * h, m, h, vPk + 4 * (2 * m + h))
    K(f"""s_waitcnt vmcnt(0)
s_barrier
s_add_u32 {sr(sMc)}, {sr(sMc)}, 4
s_cmp_lt_u32 {sr(sMc)}, 6
s_cbranch_scc1 k3_Aloop""")
    K.label("k3_end")
    stamp(K, 2, S_WS, 2 << 17)
    K.label("k3_exit")
    K("s_endpgm")
    return K
```

```python
from dsl import *
from layout import *

SLOT = 36864
XST = 65536
import os
PFMODE = os.environ.get('PF', '1')
ROTM = int(os.environ.get('ROTM', '3')); ROTS = int(os.environ.get('ROTS', '2'))
DIAG = os.environ.get('DIAG', '')
STF = os.environ.get('STF', 'sc1')
S_ACT = 8; S_W = 12; S_WS = 16; S_WSX = 20
sWave = 24; sTb = 25; sChunk = 26; sCb = 27; sCbEnd = 28; sWstride16 = 29
sWbase = 30
sWcolStep = 31; sOutBase = 32; sHS = 33; sDS = 34; sScale = 35
sT0 = 36; sT1 = 37; sT2 = 38; sT3 = 39
sSlotR = 40
sSlotW = 41
sWoff = 42
sOut = 43; sWsize = 44; sActStride = 45; sActBase = 46; sPf = 47; sAc = 48; sPart = 76; sUS = 77; sRot = 78; sCb0 = 79; sMask = 80; sRow = 81; sPfN = 82; S_PF = 84; S_ZERO = 88; sPfCol = 83; sColMask = 92; sPfRun = 93; sRow4 = 94; sScB = 95; sSc0 = 96; sKt0 = 49; sGw = 50
sPfOff = 51; sPtr = 52
vPF = 30; vJunk = 180; vLane = 1; vW = 16; vLaneT = 19; vO = 20; vXD = 24; vXR = 26; vT = 176; vSA = 232; vR16 = 17; vRL = 18; vWF = 32; vAcc = 64; vP = 128; vXV = 144

def srd(K, d, p, size):
    K(f"s_mov_b32 {sr(d)}, {sr(p)}\ns_mov_b32 {sr(d+1)}, {sr(p+1)}\ns_mov_b32 {sr(d+2)}, {size}\ns_mov_b32 {sr(d+3)}, 0x20000")

def xfrag(t, k):
    return ar((k * 4 + t) * 4, 4) if k < 16 else vr(vXV + ((k - 16) * 4 + t) * 4, 4)
def acc(par, t, c): return vAcc + par * 32 + (t * 2 + c) * 4

def dma_slab(KD, NS):
    g = []
    for n in range(NS // 4):
        t = f"s_add_u32 m0, {sr(sSlotW)}, {n*1024}\n"
        if n: t += f"s_add_u32 {sr(sWoff)}, {sr(sWoff)}, {sr(sWstride16)}\n"
        else: t += "s_nop 0\n"
        t += f"buffer_load_dwordx4 {vr(vW)}, {sr(S_W,4)}, {sr(sWoff)} offen lds"
        g.append(t)
    return g

def slab_setup():
    return f"""s_add_u32 {sr(sWoff)}, {sr(sPf)}, {sr(sRot)}
s_and_b32 {sr(sWoff)}, {sr(sWoff)}, {sr(sMask)}
s_or_b32 {sr(sWoff)}, {sr(sWoff)}, {sr(sCb0)}
s_mul_i32 {sr(sWoff)}, {sr(sWoff)}, {sr(sWcolStep)}
s_add_u32 {sr(sWoff)}, {sr(sWoff)}, {sr(sWbase)}
s_cmp_lt_u32 {sr(sPf)}, {sr(sCbEnd)}
s_cselect_b32 {sr(S_W+2)}, {sr(sWsize) if 'nodma' not in DIAG else 0}, 0
s_add_u32 {sr(sPf)}, {sr(sPf)}, 1"""

def slab_done(SLOT):
    return f"""s_add_u32 {sr(sSlotW)}, {sr(sSlotW)}, {SLOT}
s_sub_u32 {sr(sT0)}, {sr(sSlotW)}, {4*SLOT}
s_cmp_ge_u32 {sr(sSlotW)}, {4*SLOT}
s_cselect_b32 {sr(sSlotW)}, {sr(sT0)}, {sr(sSlotW)}"""

def av_offsets():
    o = [f"s_lshl_b32 {sr(sT1)}, {sr(sT1)}, 5", f"v_and_b32 v2, 15, {vr(vLane)}", f"v_add_u32 v2, {sr(sT1)}, v2"]
    for c in range(2):
        if c: o.append("v_add_u32 v2, 16, v2")
        o += ["v_mul_u32_u24 v3, 3641, v2",
              "v_lshrrev_b32 v3, 16, v3", "v_mul_u32_u24 v4, 18, v3", "v_sub_u32 v4, v2, v4",
              "v_lshlrev_b32 v3, 18, v3", "v_lshl_add_u32 v3, v4, 4, v3",
              f"v_add_u32 {vr(vO+c)}, v3, v9", f"v_add_u32 {vr(vO+2+c)}, 4096, {vr(vO+c)}"]
    return o

def scatter_epilogue(par):
    e = [f"s_sub_u32 {sr(sT1)}, {sr(sCb)}, 1", f"s_cmp_lt_u32 {sr(sT1)}, 18\ns_cselect_b32 {sr(sScale)}, {sr(sSc0)}, 1.0",
         f"s_lshl_b32 {sr(sT1)}, {sr(sT1)}, 3", f"v_lshrrev_b32 v2, 4, {vr(vLane)}", f"v_add_u32 v2, {sr(sT1)}, v2"]
    for c in range(2):
        a = vSA + 2 * c
        if c: e.append("v_add_u32 v2, 4, v2")
        e += ["v_mul_u32_u24 v3, 7282, v2", "v_lshrrev_b32 v3, 16, v3", "v_mul_u32_u24 v4, 9, v3", "v_sub_u32 v4, v2, v4",
              "v_cmp_lt_u32 vcc, 4, v4", "v_lshlrev_b32 v3, 19, v3", "v_subrev_u32 v5, 5, v4", "v_cndmask_b32 v8, 0, v9, vcc",
              "v_cndmask_b32 v5, v4, v5, vcc", "v_cmp_eq_u32 vcc, 4, v4", "v_lshrrev_b32 v4, 1, v5", "v_lshl_add_u32 v8, v4, 9, v8",
              "v_and_b32 v5, 1, v5", "v_lshl_add_u32 v8, v5, 3, v8", f"v_add_u32 v8, {vr(vR16)}, v8",
              f"v_cndmask_b32 v8, v8, {vr(vRL)}, vcc", f"v_add_u32 {vr(a)}, v3, v8",
              "v_cndmask_b32 v4, v7, v6, vcc", f"v_add_u32 {vr(a+1)}, {vr(a)}, v4"]
    for r in range(32): e.append(f"v_mul_f32 {vr(vAcc+par*32+r)}, {sr(sScale)}, {vr(vAcc+par*32+r)}")
    for k in range(16): e.append(f"v_cvt_pk_bf16_f32 {vr(vP+k)}, {vr(vAcc+par*32+2*k)}, {vr(vAcc+par*32+2*k+1)}")
    e = [(x, 4 * (x.count('\n') + 1)) for x in e]
    for c in range(2):
        for t in range(4):
            e.append((f"buffer_store_dwordx2 {vr(vP+(t*2+c)*2,2)}, {vr(vSA+2*c+(t&1))}, {sr(S_WSX,4)}, {sr(sOutBase if t < 2 else sOut)} offen", 16))
    return e

def epilogue(par, order, scale, av):
    if av == 'scat': return scatter_epilogue(par)
    e = []
    e.append((f"s_sub_u32 {sr(sT1)}, {sr(sCb)}, 1", 4))
    e += [(x, 4) for x in [f"s_add_u32 {sr(sT1)}, {sr(sT1)}, {sr(sRot)}", f"s_and_b32 {sr(sT1)}, {sr(sT1)}, {sr(sMask)}", f"s_or_b32 {sr(sT1)}, {sr(sT1)}, {sr(sCb0)}"]]
    if av:
        e.append((f"s_mov_b32 {sr(sOut)}, {sr(sOutBase)}", 4))
        e += [(x, 4) for x in av_offsets()]
    else:
        e += [(x, 4) for x in [
            f"s_lshr_b32 {sr(sT2)}, {sr(sT1)}, 2", f"s_mul_i32 {sr(sT2)}, {sr(sT2)}, {sr(sHS)}",
            f"s_and_b32 {sr(sT1)}, {sr(sT1)}, 3", f"s_mul_i32 {sr(sT1)}, {sr(sT1)}, {sr(sDS)}",
            f"s_add_u32 {sr(sOut)}, {sr(sT1)}, {sr(sT2)}", f"s_add_u32 {sr(sOut)}, {sr(sOut)}, {sr(sOutBase)}"]]
    swaps = []
    for i in range(4):
        src = (acc(par, i, 0), acc(par, i, 1)) if order == 'T' else (acc(par, i & 2, i & 1), acc(par, (i & 2) + 1, i & 1))
        for h in range(2):
            if scale:
                for r in range(4): e.append((f"v_mul_f32 {vr(src[h]+r)}, {sr(sScale)}, {vr(src[h]+r)}", 4))
            for r in range(2): e.append((f"v_cvt_pk_bf16_f32 {vr(vP+4*i+2*h+r)}, {vr(src[h]+2*r)}, {vr(src[h]+2*r+1)}", 4))
        e += swaps
        swaps = [(f"v_permlane16_swap_b32 {vr(vP+4*i+r)}, {vr(vP+4*i+2+r)}", 4) for r in range(2)] if order == 'T' else []
    e += [("s_nop 1", 4)] * (1 if swaps else 0) + swaps
    for i in range(4):
        e.append((f"buffer_store_dwordx4 {vr(vP+4*i,4)}, {vr(vO+i)}, {sr(S_WSX,4)}, {sr(sOut)} offen {STF}", 16))
    return e

def wreads(k, par, ring):
    r = vWF + (ring & 3) * 8
    return [f"ds_read_b64_tr_b16 {vr(r+4*c+2*h,2)}, {vr(vT+2*par+c)} offset:{k*2048+h*256}" for c in range(2) for h in range(2)]

def mfmas(k, par, order, ring):
    out = []
    for c in range(2):
        for t in range(4):
            a = vr(acc(par, t, c), 4); w = vr(vWF + (ring & 3) * 8 + 4 * c, 4); x = xfrag(t, k); z = a if k else "0"
            out.append(f"v_mfma_f32_16x16x32_bf16 {a}, {w}, {x}, {z}" if order == 'T' else f"v_mfma_f32_16x16x32_bf16 {a}, {x}, {w}, {z}")
    return out
def setT(par):
    return [f"v_add_u32 {vr(vT+2*par)}, {sr(sSlotR)}, {vr(vLaneT)}", f"v_xor_b32 {vr(vT+2*par+1)}, 32, {vr(vT+2*par)}"]

def body(K, NS, order, par, scale, av):
    epi = epilogue(par ^ 1, order, scale, av)
    SLOT = geom(NS)[0]
    ND = NS // 4; NK = NS // 2; r0 = (par * NK) % 4 if NK % 4 else 0
    su = slab_setup().split('\n'); sd = slab_done(SLOT).split('\n')
    NP = 2 if NS == 32 else 3
    vm = []
    for n in range(ND):
        g = dma_slab(None, NS)[n].split('\n')
        vm.append(((su if n == 0 else []) + [x for x in g[:2] if x != "s_nop 0"], g[2], 'D'))
    for n in range(NP):
        p = sd if n == 0 else []
        if n == 0 and par == 1:
            p = p + [f"s_add_u32 {sr(sPfCol)}, {sr(sPfCol)}, 256", f"s_and_b32 {sr(sPfCol)}, {sr(sPfCol)}, {sr(sColMask)}",
                     f"s_sub_u32 {sr(sPfN)}, {sr(sPfN)}, 1", f"s_cmp_ge_i32 {sr(sPfN)}, 0\ns_cselect_b32 {sr(S_PF+2)}, {sr(sWsize)}, 0",
                     f"s_add_u32 {sr(sPfRun)}, {sr(sPfOff)}, {sr(sPfCol)}"]
        elif n == 0: p = p + [f"s_add_u32 {sr(sPfRun)}, {sr(sPfRun)}, {sr(sRow4 if NS == 32 else sRow)}"]
        else: p = p + [f"s_add_u32 {sr(sPfRun)}, {sr(sPfRun)}, {sr(sRow4)}"]
        vm.append((p, f"buffer_load_dwordx4 {vr(vJunk+4*n,4)}, {vr(vPF)}, {sr(S_PF,4)}, {sr(sPfRun)} offen ; junk", 'P'))
    q = [e for e in epi if not e[0].startswith("buffer_store")]
    vm += [([], e[0], 'S') for e in epi if e[0].startswith("buffer_store")]
    def glue(l):
        o = []
        for x in l:
            if x.startswith("s_cselect") and o: o[-1] += "\n" + x
            else: o.append(x)
        return o
    vm = [(glue(p), m, k) for p, m, k in vm]
    nvm = len(vm); log = []
    slots = [8 * k + g for k in range(NK - 2) for g in (4, 6)]
    late = [f"s_add_u32 {sr(sSlotR)}, {sr(sSlotR)}, {SLOT}", f"s_cmp_ge_u32 {sr(sSlotR)}, {4*SLOT}\ns_cselect_b32 {sr(sSlotR)}, 0, {sr(sSlotR)}"] + setT(par ^ 1)
    sep = 6 if nvm <= NK - 1 else 3; nextvm = 12
    for k in range(NK):
        K("s_waitcnt lgkmcnt(4)")
        ms = mfmas(k, par, order, r0 + k)
        kk = k + 2
        rd = wreads(kk, par, r0 + kk) if kk < NK else wreads(kk - NK, par ^ 1, r0 + kk)
        for g in range(8):
            G = 8 * k + g
            K(ms[g]); room = 12 if av == 'scat' else 8
            if k == NK - 2 and g == 0:
                assert not late and log.count('D') == ND
                K(f"s_waitcnt vmcnt({nvm - ND + len(log)})\ns_barrier")
            if g < 4: K(rd[g]); room -= 4
            if g == 7: room -= 4
            if vm and not vm[0][0] and (g in (4, 5, 6) or (vm[0][2] == 'S' and sep == 3 and g != 7)) and G >= nextvm and not (vm[0][2] == 'S' and q):
                K(vm[0][1]); log.append(vm[0][2]); vm.pop(0); room = 0; nextvm = G + (4 if vm and vm[0][2] == 'D' else sep - 2 + (1 if sep == 3 else 0))
            while room > 0:
                if vm and vm[0][0]: t = vm[0][0].pop(0)
                elif late and G >= 8 * (NK - 5): t = late.pop(0)
                elif q and G >= 8: t = q.pop(0)[0]
                else: break
                K(t); room -= 4 * (t.count('\n') + 1)
    assert not q and not vm
    K(f"s_add_u32 {sr(sCb)}, {sr(sCb)}, 1")
    dstamp(K, sCb, S_WS, 3 << 17)
    last = max(i for i, x in enumerate(log) if x == 'D')
    return len(log) - 1 - last

def tail(K, par, order, scale, av):
    stamp(K, 2, S_WS)
    K("s_nop 7")
    for t, c in epilogue(par, order, scale, av): K(t)

XPF = int(os.environ.get('XPF', '2'))
LC = int(os.environ.get('LC', '3'))
NQ = int(os.environ.get('NQ', '10'))
PFAT = int(os.environ.get('PFAT', '1'))
def geom(NS):
    return (32768, 65536, 3) if NS == 32 else (36864, 73728, 2)

def xprologue(K, NS, order_, scale, av):
    NC = NS // 4
    SL, XB, NX = geom(NS)
    order = []
    def issue(c):
        K(f"s_add_u32 {sr(sT0)}, {sr(sActBase)}, {c*128}")
        for n in range(8):
            K(f"s_add_u32 m0, {sr(sT3)}, {(c%NX)*8192 + n*1024}")
            if n: K(f"s_add_u32 {sr(sT0)}, {sr(sT0)}, {sr(sActStride)}")
            else: K("s_nop 0")
            K(f"buffer_load_dwordx4 {vr(vXD+((n^(n>>1))&1))}, {sr(S_ACT,4)}, {sr(sT0)} offen lds")
            order.append(('x', c))
    def slab(i):
        K(slab_setup())
        for g in dma_slab(None, NS): K(g); order.append(('w', i))
        K(slab_done(SL))
    def upto(tag): return len(order) - 1 - max(i for i, o in enumerate(order) if o == tag)
    K(f"s_mul_i32 {sr(sT3)}, {sr(sWave)}, {NX*8192}")
    K(f"s_add_u32 {sr(sT3)}, {sr(sT3)}, {XB}")
    def xpf():
        K(f"""s_lshr_b32 {sr(sT1)}, s2, 3
s_and_b32 {sr(sT1)}, {sr(sT1)}, {(1 << LC) - 1}
s_lshl_b32 {sr(sT1)}, {sr(sT1)}, 2
s_add_u32 {sr(sT1)}, {sr(sT1)}, {sr(sWave)}
s_lshl_b32 {sr(sT2)}, {sr(sTb)}, {LC + 2}
s_add_u32 {sr(sT1)}, {sr(sT1)}, {sr(sT2)}
s_mul_i32 {sr(sT1)}, {sr(sT1)}, {(64 >> LC) * NS * 32}
v_lshlrev_b32 v2, 4, {vr(vLane)}""")
        both = av and int(os.environ.get('XB', '0'))
        if both: srd(K, S_ZERO, sPtr + KA_BX // 4, SZ_BX)
        for n in range(((64 >> LC) * NS * 32 + 1023) // 1024):
            for d in ([S_ZERO] if both else []) + [S_ACT]:
                K(f"buffer_load_dwordx4 {vr(vJunk+4*n,4)}, v2, {sr(d,4)}, {sr(sT1)} offen offset:{(n%4)*1024} ; junk"); order.append(('q', n))
            if n % 4 == 3: K(f"s_add_u32 {sr(sT1)}, {sr(sT1)}, 4096")
    if XPF == 1: xpf()
    if XPF == 2: slab(0); xpf(); issue(0)
    else: issue(0); slab(0)
    for c in range(1, NX): issue(c)
    if order_ == 'N':
        K(f"v_bfe_u32 v2, {vr(vLane)}, 3, 1\nv_lshlrev_b32 v2, 10, v2\nv_add_u32 {vr(vXR)}, v2, {vr(vXR)}")
    K(f"v_add_u32 {vr(vXR)}, {sr(sT3)}, {vr(vXR)}\nv_xor_b32 {vr(vXR+1)}, 64, {vr(vXR)}")
    K(f"""s_lshr_b32 {sr(sRow)}, {sr(sWstride16)}, 4
s_lshr_b32 {sr(sRow4)}, {sr(sWstride16)}, 2
s_lshr_b32 {sr(sPfOff)}, {sr(sKt0)}, 1
s_mul_i32 {sr(sPfOff)}, {sr(sPfOff)}, {NS//2}
s_mul_i32 {sr(sPfOff)}, {sr(sPfOff)}, {sr(sRow)}
s_mul_i32 {sr(sT1)}, {sr(sCb)}, {sr(sWcolStep)}
s_add_u32 {sr(sPfOff)}, {sr(sPfOff)}, {sr(sT1)}
s_add_u32 {sr(sPfOff)}, {sr(sPfOff)}, {sr(sPart)}
s_mov_b32 {sr(S_PF)}, {sr(S_W)}
s_mov_b32 {sr(S_PF+1)}, {sr(S_W+1)}
s_mov_b32 {sr(S_PF+2)}, {sr(sWsize) if PFMODE == '1' else 0}
s_mov_b32 {sr(S_PF+3)}, 0x20000
s_sub_u32 {sr(sPfN)}, {sr(sCbEnd)}, {sr(sCb)}
s_mul_i32 {sr(sPfN)}, {sr(sPfN)}, {sr(sWcolStep)}
s_add_u32 {sr(sPfN)}, {sr(sPfN)}, {255 + 127 - 512}
s_lshr_b32 {sr(sPfN)}, {sr(sPfN)}, 8
s_min_u32 {sr(sPfN)}, {sr(sPfN)}, {2 if PFMODE == '1' else 0}
s_lshl_b32 {sr(sT1)}, {sr(sRot)}, 6
s_lshl_b32 {sr(sColMask)}, {sr(sMask)}, 6
s_or_b32 {sr(sColMask)}, {sr(sColMask)}, 63
s_add_u32 {sr(sPfCol)}, {sr(sT1)}, 256
v_and_b32 v2, 31, {vr(vLane)}
v_lshlrev_b32 v2, 4, v2
v_add_u32 v2, {sr(sT1)}, v2
v_and_b32 v2, {sr(sColMask)}, v2
v_lshrrev_b32 v3, 5, {vr(vLane)}
v_mul_lo_u32 v3, v3, {sr(sRow)}
v_add_u32 v31, v2, v3
v_and_b32 v2, 15, {vr(vLane)}
v_lshlrev_b32 v2, 4, v2
v_lshrrev_b32 v3, 4, {vr(vLane)}
v_mul_lo_u32 v3, v3, {sr(sRow)}
v_add_u32 {vr(vPF)}, v2, v3
v_mov_b32 {vr(vT)}, {vr(vLaneT)}
v_xor_b32 {vr(vT+1)}, 32, {vr(vLaneT)}
s_mov_b32 {sr(sSlotR)}, {SL}""")
    K.extend(setT(1))
    def pf0():
        K(f"s_mov_b32 {sr(sPfRun)}, {sr(sPfOff)}\ns_lshl_b32 {sr(sT1)}, {sr(sRow)}, 1")
        for n in range(NS // 4):
            K(f"buffer_load_dwordx4 {vr(vJunk+4*n,4)}, v31, {sr(S_PF,4)}, {sr(sPfRun)} offen ; junk\ns_add_u32 {sr(sPfRun)}, {sr(sPfRun)}, {sr(sT1)}"); order.append(('p', n))
    for c in range(NC):
        if c == 0: K(f"s_waitcnt vmcnt({min(upto(('w', 0)), upto(('x', 0)))})\ns_barrier")
        else: K(f"s_waitcnt vmcnt({upto(('x', c))})")
        if os.environ.get("PST"): K(f"s_memtime s[{sPtr+2*c}:{sPtr+2*c+1}]")
        for i in range(2):
            for t in range(4):
                to = 2048 * t if order_ == 'T' else 4096 * (t >> 1) + 1024 * (t & 1)
                K(f"ds_read_b128 {xfrag(t, 2*c+i)}, {vr(vXR+((i^t)&1))} offset:{(c%NX)*8192 + to}")
        K("s_waitcnt lgkmcnt(6)")
        for i in range(2): K.extend(wreads(2 * c + i, 0, i))
        K("s_waitcnt lgkmcnt(8)" if not os.environ.get("PST") else "s_waitcnt lgkmcnt(0)")
        if c + NX < NC: issue(c + NX)
        if c == NC - NX - 2: slab(1)
        if c == NC - 1 - PFAT: pf0()
        K("s_waitcnt lgkmcnt(0)")
        for i in range(2): K.extend(mfmas(2 * c + i, 0, order_, i))
    if os.environ.get("PST"):
        K("s_waitcnt lgkmcnt(0)")
        for c in range(NC): K(f"v_mov_b32 v14, s{sPtr+2*c}\nv_lshrrev_b32 v13, 6, v0\nv_lshl_add_u32 v13, s2, 2, v13\nv_lshlrev_b32 v13, 7, v13\nv_add_u32 v13, {WS_STAMP + (4 << 17) + c*4}, v13\nbuffer_store_dword v14, v13, {sr(S_WS,4)}, 0 offen")
    stamp(K, 1, S_WS)
    K("s_barrier")
    for k in range(2): K.extend(wreads(k, 1, (NS // 2) % 4 + k))
    slab(2)
    dstamp(K, sPf, S_WS, (3 << 17) + 64)
    K(f"""s_lshl_b32 {sr(sT1)}, s2, 2
s_add_u32 {sr(sT1)}, {sr(sT1)}, {sr(sWave)}
s_mul_i32 {sr(sT1)}, {sr(sT1)}, 4608
s_add_u32 {sr(sT1)}, {sr(sT1)}, {WS_XCH}
s_add_u32 {sr(sT2)}, {sr(sT1)}, 3584
v_lshlrev_b32 v2, 4, {vr(vLane)}
v_mov_b32 v4, -1
v_mov_b32 v5, -1
v_mov_b32 v6, -1
v_mov_b32 v7, -1""")
    for n in range(4): K(f"buffer_store_dwordx4 v[4:7], v2, {sr(S_WS,4)}, {sr(sT1)} offen offset:{n*1024}")
    K(f"buffer_store_dwordx4 v[4:7], v2, {sr(S_WS,4)}, {sr(sT2)} offen")
    nd = body(Kernel("x"), NS, order_, 0, scale, av) - upto(('w', 2))
    P = lambda ka: sPtr + ka // 4
    K(f"""s_lshl_b32 {sr(sT1)}, s2, 2
s_add_u32 {sr(sT1)}, {sr(sT1)}, {sr(sWave)}
s_mul_i32 {sr(sT2)}, {sr(sT1)}, 5120
s_lshl_b32 {sr(sT1)}, {sr(sT1)}, 10
v_lshlrev_b32 v2, 4, {vr(vLane)}""")
    srd(K, S_ZERO, P(KA_WO), SZ_WO)
    for n in range(5):
        if n == 4: K(f"s_add_u32 {sr(sT2)}, {sr(sT2)}, 4096")
        K(f"buffer_load_dwordx4 {vr(vJunk+4*n,4)}, v2, {sr(S_ZERO,4)}, {sr(sT2)} offen offset:{(n%4)*1024} ; junk")
    srd(K, S_ZERO, P(KA_AWO), SZ_AWO)
    K(f"buffer_load_dwordx4 {vr(vJunk+20,4)}, v2, {sr(S_ZERO,4)}, {sr(sT1)} offen ; junk")
    K(f"s_mov_b32 {sr(S_ZERO+2)}, 0")
    for n in range(11, nd): K(f"buffer_load_dword {vr(vJunk+24)}, v2, {sr(S_ZERO,4)}, 0 offen ; junk")
    if av == 'scat': K("v_mov_b32 v6, 128\nv_mov_b32 v7, 256\nv_mov_b32 v9, 0x40000")
    K(f"s_add_u32 {sr(sCb)}, {sr(sCb)}, 1")

def mainloop(K, name, NS, order, scale, av, done):
    K.label(name)
    xprologue(K, NS, order, scale, av)
    K.label(name + "_l1")
    body(K, NS, order, 1, scale, av)
    K(f"s_cmp_ge_u32 {sr(sCb)}, {sr(sCbEnd)}")
    K(f"s_cbranch_scc1 {name}_t1")
    body(K, NS, order, 0, scale, av)
    K(f"s_cmp_lt_u32 {sr(sCb)}, {sr(sCbEnd)}")
    K(f"s_cbranch_scc1 {name}_l1")
    K("s_waitcnt lgkmcnt(0)")
    tail(K, 0, order, scale, av)
    K(f"s_branch {done}")
    K.label(name + "_t1")
    K("s_waitcnt lgkmcnt(0)")
    tail(K, 1, order, scale, av)
    K(f"s_branch {done}")

def build():
    K = Kernel("proj_kernel"); K.force_vgpr = 512
    K.hot = [f"k1_{n}_l1" for n in ("K", "V", "T576", "S576", "N576")]
    P = lambda ka: sPtr + ka // 4
    K(f"""s_cmp_ge_u32 s2, 256
s_cbranch_scc1 k1_exit
s_load_dwordx16 {sr(sPtr,16)}, s[0:1], 0
s_load_dwordx8 {sr(sPtr+16,8)}, s[0:1], 64
v_and_b32 {vr(vLane)}, 63, v0
v_lshrrev_b32 v2, 6, v0
s_and_b32 {sr(sT0)}, s2, 7
s_lshr_b32 {sr(sT1)}, s2, 3
v_readfirstlane_b32 {sr(sWave)}, v2
s_lshr_b32 {sr(sTb)}, {sr(sT1)}, {LC}
s_and_b32 {sr(sT1)}, {sr(sT1)}, {(1 << LC) - 1}
s_lshr_b32 {sr(sChunk)}, {sr(sT0)}, {LC - 2}
s_lshl_b32 {sr(sChunk)}, {sr(sChunk)}, {LC}
s_add_u32 {sr(sChunk)}, {sr(sChunk)}, {sr(sT1)}
s_and_b32 {sr(sT0)}, {sr(sT0)}, {(1 << (LC - 2)) - 1}
s_lshl_b32 {sr(sT0)}, {sr(sT0)}, {5 - LC}
s_add_u32 {sr(sTb)}, {sr(sTb)}, {sr(sT0)}
s_lshl_b32 {sr(sKt0)}, {sr(sTb)}, 3
s_lshl_b32 {sr(sT0)}, {sr(sWave)}, 1
s_add_u32 {sr(sKt0)}, {sr(sKt0)}, {sr(sT0)}
v_lshrrev_b32 v2, 4, {vr(vLane)}
v_lshlrev_b32 {vr(vLaneT)}, 9, v2
v_bfe_u32 v3, {vr(vLane)}, 2, 2
v_lshl_add_u32 {vr(vLaneT)}, v3, 6, {vr(vLaneT)}
v_and_b32 v3, 1, v2
v_lshl_add_u32 {vr(vLaneT)}, v3, 5, {vr(vLaneT)}
v_and_b32 v3, 3, {vr(vLane)}
v_lshl_add_u32 {vr(vLaneT)}, v3, 3, {vr(vLaneT)}
v_bfe_u32 v4, {vr(vLane)}, 1, 3
v_xor_b32 v4, v4, v2
v_and_b32 v3, 15, {vr(vLane)}
v_lshlrev_b32 v3, 7, v3
v_lshl_add_u32 {vr(vXR)}, v4, 4, v3""")
    if int(os.environ.get('CPF', '1')):
        K(f"v_lshlrev_b32 v5, 4, {vr(vLane)}")
        code_prefetch(K, sT0, 5, 252, "code_end", 5, sWave)
    K("s_waitcnt lgkmcnt(0)")
    srd(K, S_WS, P(KA_WS), WS_SIZE)
    stamp(K, 0, S_WS)
    srd(K, S_WSX, P(KA_WS), 0 if 'nost' in DIAG else WS_SIZE)
    K(f"""s_mov_b32 {sr(sScale)}, 1.0
s_mov_b32 {sr(sWcolStep)}, 64
s_mov_b32 {sr(sPart)}, 0
s_mov_b32 {sr(sRot)}, 0
s_mov_b32 {sr(sCb0)}, 0
s_mov_b32 {sr(sMask)}, -1
s_mov_b32 {sr(sDS)}, 2048
v_and_b32 v6, 3, {vr(vLane)}
v_lshrrev_b32 v7, 5, {vr(vLane)}
v_lshlrev_b32 v7, 1, v7
v_xor_b32 v5, v6, v7
v_lshlrev_b32 v6, 4, v5
v_lshrrev_b32 v7, 2, {vr(vLane)}
s_cmp_ge_u32 {sr(sChunk)}, {16+NQ}
s_cbranch_scc1 k1_typeA
s_cmp_ge_u32 {sr(sChunk)}, 16
s_cbranch_scc1 k1_typeQ""")
    def common(K, actp, actsz, actstride, wstride, rows_per_wave):
        srd(K, S_ACT, actp, actsz)
        K(f"""s_mov_b32 {sr(sActStride)}, {8*actstride}
s_mul_i32 {sr(sActBase)}, {sr(sKt0)}, {32*actstride}
s_mov_b32 {sr(sWstride16)}, {16*wstride}
s_mul_i32 {sr(sWbase)}, {sr(sWave)}, {rows_per_wave*wstride}
s_mul_i32 {sr(sSlotW)}, {sr(sWave)}, {rows_per_wave*64}
v_mul_u32_u24 {vr(vW)}, {wstride}, v7
v_add_u32 {vr(vW)}, {vr(vW)}, v6
v_lshrrev_b32 v8, 3, {vr(vLane)}
v_mul_u32_u24 v8, {actstride}, v8
v_and_b32 v9, 7, {vr(vLane)}
v_lshrrev_b32 v2, 4, {vr(vLane)}
v_xor_b32 v9, v9, v2
v_lshl_add_u32 {vr(vXD)}, v9, 4, v8
v_xor_b32 v9, 4, v9
v_lshl_add_u32 {vr(vXD+1)}, v9, 4, v8""")
    def ovec(K, order, dt, us):
        K(f"v_and_b32 v2, 15, {vr(vLane)}\nv_lshlrev_b32 v2, 4, v2\nv_bfe_u32 v3, {vr(vLane)}, 4, 1\nv_lshrrev_b32 v4, 5, {vr(vLane)}")
        if order == 'T': K(f"s_mov_b32 {sr(sT2)}, {dt}\nv_mul_lo_u32 v3, v3, {sr(sT2)}\nv_lshl_add_u32 v9, v4, 9, v3")
        else: K("v_lshlrev_b32 v3, 9, v3\nv_lshl_add_u32 v9, v4, 10, v3")
        K(f"""v_add_u32 {vr(vO)}, v2, v9
v_add_u32 {vr(vO+1)}, 256, {vr(vO)}
v_add_u32 {vr(vO+2)}, {us}, {vr(vO)}
v_add_u32 {vr(vO+3)}, {us}, {vr(vO+1)}""")
    common(K, P(KA_CKV), SZ_CKV, 1024, 8192, 128)
    K(f"""s_and_b32 {sr(sCb)}, {sr(sChunk)}, 7
s_lshl_b32 {sr(sCb)}, {sr(sCb)}, 4
s_add_u32 {sr(sCbEnd)}, {sr(sCb)}, 16
s_mov_b32 {sr(sPf)}, {sr(sCb)}
s_mov_b32 {sr(sCb0)}, {sr(sCb)}
s_mov_b32 {sr(sMask)}, 15
s_and_b32 {sr(sRot)}, {sr(sChunk)}, {ROTM}
s_lshl_b32 {sr(sRot)}, {sr(sRot)}, {ROTS}
s_mov_b32 {sr(sWsize)}, {SZ_WUK}
s_mov_b32 {sr(sHS)}, {64*16384}
s_lshl_b32 {sr(sOutBase)}, {sr(sKt0)}, 14
s_add_u32 {sr(sOutBase)}, {sr(sOutBase)}, {WS_KVB}
s_cmp_ge_u32 {sr(sChunk)}, 8
s_cbranch_scc1 k1_typeV""")
    srd(K, S_W, P(KA_WUK), SZ_WUK)
    ovec(K, 'T', 1024, 16384)
    mainloop(K, "k1_K", 32, 'T', False, False, "k1_end")
    K.label("k1_typeV")
    srd(K, S_W, P(KA_WUV), SZ_WUK)
    ovec(K, 'N', 0, 16384)
    K(f"s_add_u32 {sr(sOutBase)}, {sr(sOutBase)}, 8192")
    mainloop(K, "k1_V", 32, 'N', False, False, "k1_end")
    K.label("k1_typeQ")
    common(K, P(KA_BX), SZ_BX, 1152, 8192, 144)
    ovec(K, 'T', 1024, 8192)
    srd(K, S_W, P(KA_WQ), SZ_WQ)
    qb, qr = divmod(128, NQ)
    K(f"""s_sub_u32 {sr(sT0)}, {sr(sChunk)}, 16
s_mul_i32 {sr(sCb)}, {sr(sT0)}, {qb}
s_min_u32 {sr(sT1)}, {sr(sT0)}, {qr}
s_add_u32 {sr(sCb)}, {sr(sCb)}, {sr(sT1)}
s_cmp_lt_u32 {sr(sT0)}, {qr}
s_cselect_b32 {sr(sCbEnd)}, {qb+1}, {qb}
s_add_u32 {sr(sCbEnd)}, {sr(sCbEnd)}, {sr(sCb)}""")
    if NQ == 8:
        K(f"""s_mov_b32 {sr(sCb0)}, {sr(sCb)}
s_mov_b32 {sr(sMask)}, 15
s_and_b32 {sr(sRot)}, {sr(sChunk)}, {ROTM}
s_lshl_b32 {sr(sRot)}, {sr(sRot)}, {ROTS}""")
    K(f"""s_mov_b32 {sr(sPf)}, {sr(sCb)}
s_mov_b32 {sr(sWsize)}, {SZ_WQ}
s_mov_b32 {sr(sHS)}, {64*8192}
s_mov_b32 {sr(sScale)}, {f32bits(C_B)}
s_lshl_b32 {sr(sOutBase)}, {sr(sKt0)}, 13
s_add_u32 {sr(sOutBase)}, {sr(sOutBase)}, {WS_QB}""")
    mainloop(K, "k1_T576", 36, 'T', True, False, "k1_end")
    K.label("k1_typeA")
    common(K, P(KA_AX), SZ_AX, 1152, 3456, 144)
    srd(K, S_W, P(KA_AWQKV), SZ_AWQKV)
    NA = 16 - NQ - 2
    K(f"""s_sub_u32 {sr(sAc)}, {sr(sChunk)}, {16+NQ}
s_mov_b32 {sr(sWsize)}, {SZ_AWQKV}
s_cmp_ge_u32 {sr(sAc)}, {NA}
s_cbranch_scc1 k1_typeAV
s_mul_i32 {sr(sCb)}, {sr(sAc)}, {36 // NA}
s_add_u32 {sr(sCbEnd)}, {sr(sCb)}, {36 // NA}
s_mov_b32 {sr(sPf)}, {sr(sCb)}
s_mov_b32 {sr(sSc0)}, {f32bits(C_A)}
s_lshl_b32 {sr(sOutBase)}, {sr(sKt0)}, 12
s_add_u32 {sr(sOutBase)}, {sr(sOutBase)}, {WS_QA}
s_add_u32 {sr(sOut)}, {sr(sOutBase)}, 4096
v_and_b32 v2, 15, {vr(vLane)}
v_lshlrev_b32 {vr(vR16)}, 4, v2
v_lshlrev_b32 v2, 3, v2
v_add_u32 {vr(vRL)}, 3072, v2""")
    assert 36 % NA == 0
    mainloop(K, "k1_S576", 36, 'T', True, 'scat', "k1_end")
    K.label("k1_typeAV")
    K(f"""s_sub_u32 {sr(sT0)}, {sr(sAc)}, {NA}
s_mul_i32 {sr(sCb)}, {sr(sT0)}, 9
s_mov_b32 {sr(sPf)}, {sr(sCb)}
s_mov_b32 {sr(sPart)}, 2304
s_add_u32 {sr(sWbase)}, {sr(sWbase)}, 2304
s_add_u32 {sr(sCbEnd)}, {sr(sCb)}, 9
s_lshl_b32 {sr(sOutBase)}, {sr(sKt0)}, 12
s_add_u32 {sr(sOutBase)}, {sr(sOutBase)}, {WS_KVA+1024}""")
    ovec(K, 'N', 0, 4096)
    mainloop(K, "k1_N576", 36, 'N', False, True, "k1_Aextra")
    K.label("k1_Aextra")
    K(f"""s_cmp_lg_u32 {sr(sAc)}, {NA}
s_cbranch_scc1 k1_end
v_lshrrev_b32 v2, 4, {vr(vLane)}
v_lshlrev_b32 v2, 18, v2
v_bfe_u32 v3, {vr(vLane)}, 1, 2
v_lshlrev_b32 v3, 9, v3
v_add_u32 v2, v2, v3
v_bfe_u32 v3, {vr(vLane)}, 3, 1
v_lshlrev_b32 v3, 12, v3
v_add_u32 v2, v2, v3
v_and_b32 v3, 1, {vr(vLane)}
v_lshlrev_b32 v3, 6, v3
v_add_u32 v2, v2, v3
v_add_u32 v2, {18*16}, v2
v_mov_b32 v4, 0x3f803f80
v_mov_b32 v5, 0x3f803f80
v_mov_b32 v6, 0x3f803f80
v_mov_b32 v7, 0x3f803f80
s_lshl_b32 {sr(sT0)}, {sr(sKt0)}, 12
s_add_u32 {sr(sT0)}, {sr(sT0)}, {WS_KVA+1024}""")
    for n in range(8):
        K(f"buffer_store_dwordx4 v[4:7], v2, {sr(S_WS,4)}, {sr(sT0)} offen")
        K(f"s_add_u32 {sr(sT0)}, {sr(sT0)}, {4*262144}")
    K.label("k1_end")
    stamp(K, 3, S_WS)
    if STAMP:
        K("s_waitcnt vmcnt(0)")
        stamp(K, 4, S_WS)
    K.label("k1_exit")
    K("s_endpgm")
    return K
```

```python
from dsl import *
from layout import *
import os
CPF = int(os.environ.get('CPF', '1'))
STF2 = os.environ.get('STF2', 'sc1')

S_WS = 8; S_KV = 12; S_W1 = 28; S_W2 = 32; S_L = 52
sH = 16; sJ = 17; sWave = 18; sK = 19; sKf = 20; sMaskK = 21; sDoff = 22; sDslot = 23
sT0 = 24; sT1 = 25; sT2 = 26; sT3 = 27
sKVbase = 36; sQt0 = 37; sFB = 38; sU = 39; sN = 40; sAoff = 41; sJunk = 42; sM0 = 43; sLo = 44; sHi = 45; sGw = 46; sKslot = 47; sPair = 50; sQt1 = 56; sBQ0 = 61; sBKV = 62; sQoff = 4; sWoS = 6; sWoD = 48
sPtr = 48
sTri = 64
JUNK = 98304
aO = 0; aQ = 128; aK = 192; aV = 224
vLane = 1; vL16 = 2; vAK = 3; vAV = 4; vD = 5; vNinf = 6; vL = 8
vM = 10
vT = 12
vNegM = 16; vS = 48; vP = 112; vE = 144
def Oa(s, d): return ar(aO + (s * 4 + d) * 16, 16)
def Qa(s, ds): return ar(aQ + (s * 8 + ds) * 4, 4)
def Sv(p, s): return vS + (p * 2 + s) * 16
def Pv(p, s, ks): return vP + ((p * 2 + s) * 2 + ks) * 4

def X(p, subs=(0, 1), raw=False):
    out = []
    for ds in range(8):
        for s in subs:
            d = vr(Sv(p, s), 16)
            c = d if ds else ("0" if raw else vr(vNegM + s * 16, 16))
            out.append(f"v_mfma_f32_32x32x16_bf16 {d}, {ar(aK + ds*4, 4)}, {Qa(s, ds)}, {c}")
    return out
def Y(p, subs=(0, 1), vb=aV):
    out = []
    for ks in range(2):
        for d in range(4):
            for s in subs:
                out.append(f"v_mfma_f32_32x32x16_bf16 {Oa(s, d)}, {ar(vb + (d*2+ks)*4, 4)}, {vr(Pv(p, s, ks), 4)}, {Oa(s, d)}")
    return out
def softmax_ops(p, subs=(0, 1)):
    seq = []
    for ks in range(2):
        for s in subs:
            for r in range(8 * ks, 8 * ks + 8): seq.append((s, ks, r))
    ops = []
    n = len(seq)
    for i in range(n + 2):
        if i < n:
            s, ks, r = seq[i]; ops.append((f"v_exp_f32 {vr(Sv(p,s)+r)}, {vr(Sv(p,s)+r)}", 8))
        if 0 <= i - 1 < n:
            s, ks, r = seq[i - 1]; ops.append((f"v_add_f32 {vr(vL+s)}, {vr(Sv(p,s)+r)}, {vr(vL+s)}", 4))
        if 0 <= i - 2 < n and (i - 2) % 2 == 1:
            s, ks, r = seq[i - 2]
            ops.append((f"v_cvt_pk_bf16_f32 {vr(Pv(p,s,ks)+(r%8)//2)}, {vr(Sv(p,s)+r-1)}, {vr(Sv(p,s)+r)}", 4))
    return ops
def kread(u2, ds): return f"ds_read_b128 {ar(aK + ds*4, 4)}, {vr(vAK)} offset:{u2*16384 + ds*1024}"
def vread(u2, i): return f"ds_read_b128 {ar(aV + i*4, 4)}, {vr(vAV)} offset:{u2*16384 + 8192 + i*1024}"
VORD = [0, 2, 4, 6, 1, 3, 5, 7]
def dma(i):
    t = ""
    if i % 4 == 0:
        t += f"s_add_u32 m0, {sr(sM0)}, {(i//4)*4096}\n"
        t += f"s_add_u32 {sr(sDoff)}, {sr(sDoff)}, {4096 if i else 28672}\n"
    return t + f"buffer_load_dwordx4 {vr(vL16)}, {sr(S_KV,4)}, {sr(sDoff)} offen offset:{(i%4)*1024} lds"
def tri(s): return [f"v_cndmask_b32 {vr(vNegM+s*16+r)}, {vr(vNegM+s*16+r)}, {vr(vNinf)}, {sr(sTri+2*r,2)}" for r in range(16)]

START = 3
NSLOT = 5; RING = NSLOT * 32768
COST = {'R': 4, 'R2': 6, 'D': 16, 'S': 4}
def spread(ops, room, g0, g1):
    n = len(room); tot = sum(c for _, c in ops); cap = sum(room[g % n] for g in range(g0, g1))
    res = []; g = g0; acc = 0.0; tgt = room[g0 % n] * tot / cap; used = 0
    for t, c in ops:
        while (acc + c / 2 > tgt or used + c > room[g % n]) and g < g1 - 1:
            g += 1; tgt += room[g % n] * tot / cap; used = 0
        assert used + c <= room[g % n], ("no room", g, t)
        res.append(g); acc += c; used += c
    return res

RD = [0, 1, 2, 4, 6, 8, 10, 11]
DG = [21, 25, 29, 35, 39, 45, 51, 57]
def steady_plan():
    mem = {g: [] for g in range(64)}; fix = {g: [] for g in range(64)}; room = [24] * 64
    for i, g in enumerate(RD):
        mem[g].append(vread(0, VORD[i])); mem[16 + g].append(kread(0, i))
        mem[32 + g].append(vread(1, VORD[i])); mem[48 + g].append(kread(1, i))
    mem[16] = ["s_waitcnt vmcnt(16)", "s_barrier"] + mem[16]
    for i, g in enumerate(DG):
        mem[g].append(f"buffer_load_dwordx4 {vr(vL16)}, {sr(S_KV,4)}, {sr(sDoff)} offen offset:{(i%4)*1024} lds")
    fix[19] += [f"s_mov_b32 m0, {sr(sDslot)}", f"s_add_u32 {sr(sDoff)}, {sr(sDoff)}, 28672"]
    fix[37] += [f"s_add_u32 m0, {sr(sDslot)}, 4096", f"s_add_u32 {sr(sDoff)}, {sr(sDoff)}, 4096"]
    fix[41] += [f"s_add_u32 {sr(sDslot)}, {sr(sDslot)}, 32768", f"s_cmp_ge_u32 {sr(sDslot)}, {RING}"]
    fix[43] += [f"s_cselect_b32 {sr(sT0)}, {RING}, 0", f"s_sub_u32 {sr(sDslot)}, {sr(sDslot)}, {sr(sT0)}"]
    fix[46] += [f"v_mov_b32 {vr(vAV)}, {vr(vAK)}"]
    fix[53] += [f"s_add_u32 {sr(sKslot)}, {sr(sKslot)}, 32768", f"s_cmp_ge_u32 {sr(sKslot)}, {RING}"]
    fix[55] += [f"s_cselect_b32 {sr(sKslot)}, 0, {sr(sKslot)}"]
    fix[60] += [f"v_add_u32 {vr(vAK)}, {sr(sKslot)}, {vr(vL16)}"]
    fix[61] += [f"s_add_u32 {sr(sK)}, {sr(sK)}, 1"]
    for g in range(64):
        for m in mem[g]: room[g] -= 16 if m.startswith("buffer") else 4
        room[g] -= 4 * len(fix[g])
    room[16] = 0
    for g in (15, 31, 47): room[g] -= 4
    room[31] -= 8
    room[63] -= 12
    od = softmax_ops(1); ev = softmax_ops(0)
    god = spread(od, room, 16 + START, 48 + START); gev = spread(ev, room, 48 + START, 80 + START)
    return mem, fix, od, god, ev, gev
PLAN = steady_plan()
def ev_first(): return [t for (t, c), g in zip(PLAN[4], PLAN[5]) if g < 64]
def ev_rest(): return [(t, c) for (t, c), g in zip(PLAN[4], PLAN[5]) if g >= 64]

def steady(K):
    mem, fix, od, god, ev, gev = PLAN
    fill = {g: [] for g in range(64)}
    for (t, c), g in zip(ev, gev):
        if g >= 64: fill[g - 64].append(t)
    for (t, c), g in zip(od, god): fill[g].append(t)
    for (t, c), g in zip(ev, gev):
        if g < 64: fill[g].append(t)
    ms = X(1) + Y(0) + X(0) + Y(1)
    K.label("b_loop")
    for g in range(64):
        K(ms[g]); K.extend(mem[g]); K.extend(fill[g]); K.extend(fix[g])
        if g == 31:
            K(f"s_cmp_eq_u32 {sr(sK)}, {sr(sMaskK)}\ns_cbranch_scc1 b_m1")
            K.label("b_m1r")
            COLD.append(lambda K: (K.label("b_m1"), K.extend(tri(0)), K("s_branch b_m1r")))
        if g % 16 == 15: K("s_waitcnt lgkmcnt(0)")
    K(f"s_cmp_lt_u32 {sr(sK)}, {sr(sKf)}\ns_cbranch_scc1 b_loop")

def tail(K, w):
    last = 7 - w
    tiles = lambda i: (0, 1) if i <= w else (1,)
    K.label(f"b_tail{w}")
    for q in range(2):
        src = sKslot if q == 0 else sPair
        K(f"s_add_u32 {sr(sPair+q)}, {sr(src)}, 32768\ns_cmp_ge_u32 {sr(sPair+q)}, {RING}\ns_cselect_b32 {sr(sPair+q)}, 0, {sr(sPair+q)}")
    phases = []
    for i in range(1, last + 1): phases += [('X', i), ('Y', i - 1)]
    phases.append(('Y', last))
    queue = [(0, t, c) for t, c in ev_rest()]
    slot = 0
    for pi, (ty, i) in enumerate(phases):
        p = i & 1; tl = tiles(i)
        pre = []; reads = []
        if ty == 'X':
            if i == w: pre += tri(0)
            if i == last: pre += tri(1)
            ms = X(p, tl)
            u = i - 1
            if u % 2 == 0 and u > 0: pre.append(f"v_mov_b32 {vr(vAV)}, {vr(vAK)}")
            reads = [vread(u & 1, VORD[r]) for r in range(8)]
        else:
            ms = Y(p, tl)
            if i == last: ms = Y(p, tl, aK)
            if i + 2 <= last:
                u = i + 2
                if u % 2 == 0 and u > 2: pre.append(f"v_add_u32 {vr(vAK)}, {sr(sPair + u//2 - 2)}, {vr(vL16)}")
                reads = [kread(u & 1, r) for r in range(8)]
            elif i + 1 == last:
                u = last
                if u % 2 == 0: pre.append(f"v_mov_b32 {vr(vAV)}, {vr(vAK)}")
                reads = [vread(u & 1, VORD[r]).replace(ar(aV + VORD[r]*4, 4), ar(aK + VORD[r]*4, 4)) for r in range(8)]
        K.extend(pre)
        if pre: K("s_nop 0")
        K("s_waitcnt lgkmcnt(0)")
        n = len(ms)
        rg = RD if n == 16 else [0, 0, 1, 1, 2, 2, 3, 3]
        for g in range(n):
            if ty == 'Y':
                need = Ins(ms[g]).srcAB
                idx = max([q for q, (e, t, c) in enumerate(queue) if Ins(t).w & need], default=-1)
                if idx >= 0:
                    for e, t, c in queue[:idx + 1]: K(t)
                    queue = queue[idx + 1:]; K("s_nop 1")
            K(ms[g]); room = 24
            if ty == 'Y' and i == 0 and g == 0: K("s_waitcnt vmcnt(0)\ns_barrier"); room = 0
            first = True
            for r in range(8):
                if reads and rg[r] == g: K(reads[r]); room -= 4 if first else 6; first = False
            if g == n - 1: room -= 4
            while queue and queue[0][0] <= slot and queue[0][2] <= room:
                K(queue[0][1]); room -= queue[0][2]; queue = queue[1:]
            slot += 1
        if ty == 'X': queue += [(slot + START, t, c) for t, c in softmax_ops(p, tl)]
    for e, t, c in queue: K(t)
    K("s_branch b_done")

def rowmax(K, regs, dst, init=None):
    r = list(regs)
    if init is None: K(f"v_max_f32 {vr(dst)}, {vr(r[0])}, {vr(r[1])}"); r = r[2:]
    while r: K(f"v_max3_f32 {vr(dst)}, {vr(dst)}, {vr(r[0])}, {vr(r[1])}"); r = r[2:]
def xhalf(K, reg, op):
    K(f"v_mov_b32 {vr(vT)}, {vr(reg)}\ns_nop 1\nv_permlane32_swap_b32 {vr(reg)}, {vr(vT)}\n{op} {vr(reg)}, {vr(reg)}, {vr(vT)}")

def check_l(K, regs, okl):
    K(f"s_mov_b64 vcc, exec")
    for r in regs:
        K(f"v_cmp_le_f32 {sr(sT0,2)}, {sr(sLo)}, {vr(r)}\nv_cmp_ge_f32 {sr(sT2,2)}, {sr(sHi)}, {vr(r)}")
        K(f"s_and_b64 vcc, vcc, {sr(sT0,2)}\ns_and_b64 vcc, vcc, {sr(sT2,2)}")
    K(f"s_cmp_eq_u64 vcc, exec\ns_cbranch_scc0 {okl}")

COLD = []
def pair(): return [(f"s_mov_b32 {sr(sM0)}, {sr(sDslot)}\ns_add_u32 {sr(sDslot)}, {sr(sDslot)}, 32768\n" if i == 0 else "") + dma(i) for i in range(8)]
def setupB(K):
    K(f"""s_lshl_b32 {sr(sKf)}, {sr(sJ)}, 2
s_lshl_b32 {sr(sBQ0)}, {sr(sJ)}, 3
s_add_u32 {sr(sQt1)}, {sr(sBQ0)}, 7
s_add_u32 {sr(sBQ0)}, {sr(sBQ0)}, {sr(sWave)}
s_sub_u32 {sr(sQt1)}, {sr(sQt1)}, {sr(sWave)}
s_sub_u32 {sr(sMaskK)}, {sr(sKf)}, 1
s_cmp_eq_u32 {sr(sWave)}, 0
s_cselect_b32 {sr(sMaskK)}, {sr(sMaskK)}, 0x7fffffff
s_lshl_b32 {sr(sBKV)}, {sr(sH)}, 20
s_add_u32 {sr(sBKV)}, {sr(sBKV)}, {WS_KVB}
s_lshl_b32 {sr(sDslot)}, {sr(sWave)}, 13
s_add_u32 {sr(sDoff)}, {sr(sBKV)}, {sr(sDslot)}
s_sub_u32 {sr(sDoff)}, {sr(sDoff)}, 28672
s_mov_b32 {sr(sK)}, 0
s_mov_b32 {sr(sKslot)}, 32768""")
    for s in range(2):
        K(f"""s_lshl_b32 {sr(sQoff+s)}, {sr(sH)}, 6
s_add_u32 {sr(sQoff+s)}, {sr(sQoff+s)}, {sr(sQt1 if s else sBQ0)}
s_lshl_b32 {sr(sQoff+s)}, {sr(sQoff+s)}, 13
s_add_u32 {sr(sQoff+s)}, {sr(sQoff+s)}, {WS_QB}""")
def preB():
    q = []
    for s in range(2):
        for i in range(8):
            q.append(f"buffer_load_dwordx4 {Qa(s, i)}, {vr(vL16)}, {sr(S_WS,4)}, {sr(sQoff+s)} offen offset:{(i%4)*1024}"
                     + (f"\ns_add_u32 {sr(sQoff+s)}, {sr(sQoff+s)}, 4096" if i == 3 else ""))
    return pair() + q + pair()

def attnB(K):
    K(f"""v_mov_b32 {vr(vAK)}, {vr(vL16)}
v_mov_b32 {vr(vAV)}, {vr(vL16)}
v_mov_b32 {vr(vL)}, 0
v_mov_b32 {vr(vL+1)}, 0
s_barrier""")
    for r in range(4): K(f"v_mov_b32 {vr(vE+r)}, 0")
    for ds in range(8): K(kread(0, ds))
    K("s_waitcnt lgkmcnt(0)")
    d23 = pair() + pair()
    for m, d in zip(X(0, raw=True), d23): K(m); K(d)
    for ds in range(8): K(kread(1, ds))
    K(f"v_add_u32 {vr(vAK)}, 32768, {vr(vAK)}\ns_nop 1")
    zero = [f"v_mfma_f32_32x32x16_bf16 {ar(aO+16*i,16)}, {vr(vE,4)}, {vr(vE,4)}, 0" for i in range(8)]
    for s in range(2):
        K(zero.pop()); rowmax(K, range(Sv(0, s), Sv(0, s) + 16), vM + s); xhalf(K, vM + s, "v_max_f32")
    for s in range(2):
        for r in range(16):
            if r % 8 == 0: K(zero.pop())
            K(f"v_sub_f32 {vr(vNegM+s*16+r)}, 0, {vr(vM+s)}")
    K(f"s_cmp_eq_u32 {sr(sBQ0)}, 0\ns_cbranch_scc1 b_m0")
    K.label("b_m0r")
    COLD.append(lambda K: (K.label("b_m0"), K.extend(tri(0)), K("s_branch b_m0r")))
    for s in range(2):
        K(zero.pop())
        for r in range(16): K(f"v_add_f32 {vr(Sv(0,s)+r)}, {vr(vNegM+s*16+r)}, {vr(Sv(0,s)+r)}")
    K.extend(ev_first())
    stamp(K, 2, S_WS, 1 << 17)
    K(f"s_waitcnt lgkmcnt(0)\ns_cmp_eq_u32 {sr(sKf)}, 0\ns_cbranch_scc1 b_tails")
    steady(K)
    K.label("b_tails")
    for w in (1, 2, 3): K(f"s_cmp_eq_u32 {sr(sWave)}, {w}\ns_cbranch_scc1 b_tail{w}")
    for w in range(4): tail(K, w)
    K.label("b_done")
    stamp(K, 3, S_WS, 1 << 17)
    for s in range(2): xhalf(K, vL + s, "v_add_f32")
    check_l(K, [vL, vL + 1], "b_fb")
    COLD.append(lambda K: (K.label("b_fb"), fallbackB(K), K("s_branch b_ok")))
    K.label("b_ok")
    K(f"""v_rcp_f32 {vr(vM)}, {vr(vL)}
v_rcp_f32 {vr(vL)}, {vr(vL+1)}
s_lshl_b32 {sr(sT1)}, {sr(sH)}, 13
s_add_u32 {sr(sT1)}, {sr(sT1)}, {WS_CTX}
s_nop 7""")
    for s in range(2):
        K(f"s_lshl_b32 {sr(sT0)}, {sr(sQt1 if s else sBQ0)}, 18\ns_add_u32 {sr(sT0)}, {sr(sT0)}, {sr(sT1)}")
        rc = vL if s else vM
        for d in range(4):
            b = vS + ((s * 4 + d) % 4) * 16; pk = vP + ((s * 4 + d) % 4) * 8
            for r in range(16): K(f"v_accvgpr_read_b32 {vr(b+r)}, {ar(aO+(s*4+d)*16+r)}")
            for r in range(8): K(f"v_pk_mul_f32 {vr(b+2*r,2)}, {vr(b+2*r,2)}, {vr(rc,2)} op_sel_hi:[1,0]")
            for r in range(8): K(f"v_cvt_pk_bf16_f32 {vr(pk+r)}, {vr(b+2*r)}, {vr(b+2*r+1)}")
            for t in range(2):
                K(f"buffer_store_dwordx4 {vr(pk+4*t,4)}, {vr(vL16)}, {sr(S_WS,4)}, {sr(sT0)} offen offset:{(d%2)*2048+t*1024} {STF2}")
            if d == 1: K(f"s_add_u32 {sr(sT0)}, {sr(sT0)}, 4096")

def fallbackB(K):
    def loadK():
        for ds in range(8):
            K(f"buffer_load_dwordx4 {ar(aK+4*ds,4)}, {vr(vL16)}, {sr(S_WS,4)}, {sr(sAoff)} offen offset:{(ds%4)*1024}")
            if ds % 4 == 3: K(f"s_add_u32 {sr(sAoff)}, {sr(sAoff)}, 4096")
    def masks(nm):
        K(f"s_cmp_lg_u32 {sr(sU)}, {sr(sBQ0)}\ns_cbranch_scc1 {nm}_a")
        K.extend(tri(0)); K.label(nm + "_a")
        K(f"s_cmp_le_u32 {sr(sU)}, {sr(sBQ0)}\ns_cbranch_scc1 {nm}_b")
        for r in range(16): K(f"v_mov_b32 {vr(vNegM+r)}, {vr(vNinf)}")
        K.label(nm + "_b")
        K(f"s_cmp_lg_u32 {sr(sU)}, {sr(sQt1)}\ns_cbranch_scc1 {nm}_c")
        K.extend(tri(1)); K.label(nm + "_c"); K("s_nop 1")
    for r in range(32): K(f"v_mov_b32 {vr(vNegM+r)}, 0")
    K(f"v_mov_b32 {vr(vM)}, {vr(vNinf)}\nv_mov_b32 {vr(vM+1)}, {vr(vNinf)}\ns_mov_b32 {sr(sU)}, 0\ns_mov_b32 {sr(sAoff)}, {sr(sBKV)}")
    K.label("fb1")
    loadK(); K(f"s_add_u32 {sr(sAoff)}, {sr(sAoff)}, 8192")
    masks("fb1m"); K("s_waitcnt vmcnt(0)")
    K.extend(X(0)); K("s_nop 15")
    for s in range(2): rowmax(K, range(Sv(0, s), Sv(0, s) + 16), vM + s, init=True)
    K(f"s_add_u32 {sr(sU)}, {sr(sU)}, 1\ns_cmp_le_u32 {sr(sU)}, {sr(sQt1)}\ns_cbranch_scc1 fb1")
    for s in range(2):
        xhalf(K, vM + s, "v_max_f32")
        for r in range(16): K(f"v_sub_f32 {vr(vNegM+s*16+r)}, 0, {vr(vM+s)}")
    for i in range(128): K(f"v_accvgpr_write_b32 {ar(aO+i)}, 0")
    K(f"v_mov_b32 {vr(vL)}, 0\nv_mov_b32 {vr(vL+1)}, 0\ns_mov_b32 {sr(sU)}, 0\ns_mov_b32 {sr(sAoff)}, {sr(sBKV)}")
    K.label("fb2")
    loadK()
    for i in range(8):
        K(f"buffer_load_dwordx4 {ar(aV+4*i,4)}, {vr(vL16)}, {sr(S_WS,4)}, {sr(sAoff)} offen offset:{(i%4)*1024}")
        if i % 4 == 3: K(f"s_add_u32 {sr(sAoff)}, {sr(sAoff)}, 4096")
    masks("fb2m"); K("s_waitcnt vmcnt(0)")
    K.extend(X(0)); K("s_nop 15")
    for t, c in softmax_ops(0): K(t)
    K("s_nop 1"); K.extend(Y(0))
    K(f"s_add_u32 {sr(sU)}, {sr(sU)}, 1\ns_cmp_le_u32 {sr(sU)}, {sr(sQt1)}\ns_cbranch_scc1 fb2")
    for s in range(2): xhalf(K, vL + s, "v_add_f32")

xS = 16; xP = 48; xQ = 64; xO = 120
vKL = 7; vVL = 248
sSplit = 57; sR = 58; sAbase = 59; sTrip = 60
def attnA(K, n, D=4):
    nm = f"att{n}"
    KB = lambda b: b * 16
    def loadl(b):
        return [f"buffer_load_dwordx4 {ar(KB(b),4)}, {vr(vL16)}, {sr(S_WS,4)}, {sr(sAoff)} offen",
                f"buffer_load_dword {ar(KB(b)+4)}, {vr(vKL)}, {sr(S_L,4)}, {sr(sAoff)} offen offset:3072",
                f"buffer_load_dwordx4 {ar(KB(b)+8,4)}, {vr(vVL)}, {sr(S_WS,4)}, {sr(sAoff)} offen offset:1024",
                f"buffer_load_dwordx4 {ar(KB(b)+12,4)}, {vr(vVL)}, {sr(S_WS,4)}, {sr(sAoff)} offen offset:2048\ns_add_u32 {sr(sAoff)}, {sr(sAoff)}, 4096"]
    def loads(b): K.extend(loadl(b))
    def QK(b, s, p):
        d = vr(xS + p * 16, 16)
        return [f"v_mfma_f32_32x32x16_bf16 {d}, {ar(KB(b),4)}, {vr(xQ+s*8,4)}, 0",
                f"v_mfma_f32_32x32x16_bf16 {d}, {ar(KB(b)+4,4)}, {vr(xQ+s*8+4,4)}, {d}"]
    def PV(b, s, p):
        o = vr(xO + s * 16, 16)
        return [f"v_mfma_f32_32x32x16_bf16 {o}, {ar(KB(b)+8+4*t,4)}, {vr(xP+p*8+4*t,4)}, {o}" for t in range(2)]
    def SM(p):
        g = []
        for q in range(4):
            t = [f"v_exp_f32 {vr(xS+p*16+4*q+r)}, {vr(xS+p*16+4*q+r)}" for r in range(4)]
            t += [f"v_cvt_pk_bf16_f32 {vr(xP+p*8+2*q+r)}, {vr(xS+p*16+4*q+2*r)}, {vr(xS+p*16+4*q+2*r+1)}" for r in range(2)]
            g.append(t)
        return g
    def setm(s, src, K=K):
        K(f"v_sub_f32 {vr(vM)}, 0, {vr(src)}\nv_cvt_pk_bf16_f32 {vr(vM)}, {vr(vM)}, 0")
        K(f"v_cndmask_b32 {vr(xQ+s*8+5)}, {vr(vM)}, 0, {sr(sTri+32,2)}")
    K.label(nm)
    K(f"""s_lshr_b32 {sr(sT0)}, {sr(sWave)}, {sr(sSplit)}
s_mul_i32 {sr(sT0)}, {sr(sT0)}, {n}
s_add_u32 {sr(sQt0)}, {sr(sQt0)}, {sr(sT0)}
s_lshl_b32 {sr(sT0)}, {sr(sH)}, 6
s_add_u32 {sr(sT0)}, {sr(sT0)}, {sr(sQt0)}
s_lshl_b32 {sr(sT0)}, {sr(sT0)}, 12
s_add_u32 {sr(sT0)}, {sr(sT0)}, {WS_QA}
s_mov_b32 {sr(sAoff)}, {sr(sKVbase)}""")
    K(loadl(D - 1)[0]); K(loadl(D - 1)[1])
    for s in range(n):
        K(f"buffer_load_dwordx4 {vr(xQ+s*8,4)}, {vr(vL16)}, {sr(S_WS,4)}, {sr(sT0)} offen")
        K(f"buffer_load_dword {vr(xQ+s*8+4)}, {vr(vKL)}, {sr(S_L,4)}, {sr(sT0)} offen offset:3072")
        K(f"s_add_u32 {sr(sT0)}, {sr(sT0)}, 4096")
    K(f"s_mov_b32 {sr(sAoff)}, {sr(sAbase)}")
    for b in range(D - 1): loads(b)
    for b in range(D):
        K(f"v_accvgpr_write_b32 {ar(KB(b)+5)}, {vr(vT+1)}\nv_accvgpr_write_b32 {ar(KB(b)+6)}, 0\nv_accvgpr_write_b32 {ar(KB(b)+7)}, 0")
    for s in range(n):
        for r in range(5, 8): K(f"v_mov_b32 {vr(xQ+s*8+r)}, 0")
    for r in range(16): K(f"v_mov_b32 {vr(xP+r)}, 0")
    K("s_nop 1")
    for s in range(n): K(f"v_mfma_f32_32x32x16_bf16 {vr(xO+16*s,16)}, {vr(xP,4)}, {vr(xP,4)}, 0")
    for r in range(8): K(f"v_accvgpr_write_b32 {ar(KB(D-1)+8+r)}, 0")
    K(f"s_waitcnt vmcnt({4*(D-1)})")
    for s in range(n): K(f"v_cndmask_b32 {vr(xQ+s*8+4)}, {vr(xQ+s*8+4)}, 0, {sr(sTri+32,2)}")
    K("s_nop 0"); K.extend(QK(D - 1, 0, 0))
    for s in range(n):
        if s + 1 < n: K.extend(QK(D - 1, s + 1, (s + 1) & 1))
        K("s_nop 11")
        rowmax(K, range(xS + (s & 1) * 16, xS + (s & 1) * 16 + 16), vM); xhalf(K, vM, "v_max_f32"); setm(s, vM)
    stamp(K, 5, S_WS, 1 << 17)
    K(f"s_mov_b32 {sr(sU)}, {sr(sTrip)}")
    K(f"s_waitcnt vmcnt({4*(D-2)})")
    K.extend(QK(0, 0, 0))
    K("s_nop 11")
    T = D * n
    assert T % 2 == 0
    def iteration(last):
        extra = preB() if last else []
        step = (4 * T) // len(extra) if last else 0
        issued = 0
        for t in range(T):
            u, s = divmod(t, n); p = t & 1
            un, sn = divmod(t + 1, n); up, sp = divmod(t - 1 + T, n)
            sm = SM(p)
            ld = loadl((u - 1) % D)
            at = {(0, 0): ld[0], (0, 1): ld[1], (0, 3): ld[2], (1, 0): ld[3]}
            if last and u > 0: at = {}
            if not last:
                if sn == 0: K(f"s_waitcnt vmcnt({4*(D-2) - (1 if n == 2 else 0)})")
            elif sn == 0 and un < D:
                K(f"s_waitcnt vmcnt({4*(D-2-un) + issued if un < D - 1 else issued - lastpos})")
            ms = QK(un % D, sn, p ^ 1) + PV(up % D, sp, p ^ 1)
            for q in range(4):
                if not (last and un == D and q < 2): K(ms[q])
                if (s, q) in at:
                    K(at[(s, q)]); issued += 1
                    if (s, q) == (1, 0): lastpos = issued
                elif last and extra and (4 * t + q) >= 5 and ((4 * t + q) % step == step - 1 or len(extra) >= 4 * T - (4 * t + q)):
                    K(extra.pop(0)); issued += 1
                K.extend(sm[q])
        K.extend(extra)
    K(f"s_sub_u32 {sr(sU)}, {sr(sU)}, 1")
    K.label(nm + "_loop")
    iteration(False)
    K(f"s_sub_u32 {sr(sU)}, {sr(sU)}, 1\ns_cmp_lg_u32 {sr(sU)}, 0\ns_cbranch_scc1 {nm}_loop")
    iteration(True)
    K("s_nop 1")
    K.extend(PV((D - 1), n - 1, (T - 1) & 1))
    stamp(K, 6, S_WS, 1 << 17)
    K(f"""s_mul_i32 {sr(sT0)}, {sr(sQt0)}, {36*1024}
s_add_u32 {sr(sT0)}, {sr(sT0)}, {WS_OAF}
s_lshl_b32 {sr(sT1)}, {sr(sH)}, 10
s_add_u32 {sr(sN)}, {sr(sT1)}, {sr(sT0)}
s_lshr_b32 {sr(sT2)}, {sr(sH)}, 3
s_lshl_b32 {sr(sT2)}, {sr(sT2)}, 10
s_add_u32 {sr(sT0)}, {sr(sT0)}, {sr(sT2)}
s_bfe_u32 {sr(sT2)}, {sr(sH)}, 0x10002
s_lshl_b32 {sr(sT2)}, {sr(sT2)}, 9
s_add_u32 {sr(sT0)}, {sr(sT0)}, {sr(sT2)}
s_and_b32 {sr(sT2)}, {sr(sH)}, 3
s_lshl_b32 {sr(sT2)}, {sr(sT2)}, 2
s_add_u32 {sr(sT0)}, {sr(sT0)}, {sr(sT2)}
s_add_u32 {sr(sFB)}, {sr(sT0)}, {32*1024}
v_mov_b32 {vr(vT+2)}, 0x80000000
v_cndmask_b32 {vr(vT+2)}, {vr(vL16)}, {vr(vT+2)}, {sr(sTri+32,2)}
s_cmp_eq_u32 {sr(sSplit)}, 0
s_cbranch_scc1 {nm}_fin""")
    K(f"s_mul_i32 {sr(sT0)}, {sr(sWave)}, 24576\ns_add_u32 {sr(sT0)}, {sr(sT0)}, 65536\nv_add_u32 {vr(vT)}, {sr(sT0)}, {vr(vL16)}")
    for s in range(n):
        for q in range(3): K(f"ds_write_b128 {vr(vT)}, {vr(xO+s*16+4*q,4)} offset:{(s*3+q)*1024}")
    K(f"s_waitcnt lgkmcnt(0)\ns_barrier\ns_mov_b32 {sr(sU)}, 1")
    K.label(nm + "_cmb")
    K(f"""s_xor_b32 {sr(sT0)}, {sr(sWave)}, {sr(sU)}
s_mul_i32 {sr(sT0)}, {sr(sT0)}, 24576
s_add_u32 {sr(sT0)}, {sr(sT0)}, 65536
v_add_u32 {vr(vT)}, {sr(sT0)}, {vr(vL16)}""")
    for s0 in range(0, n, 4):
        ss = range(s0, min(n, s0 + 4))
        for s in ss:
            for q in range(3): K(f"ds_read_b128 {vr(xS+(s-s0)*12+4*q,4)}, {vr(vT)} offset:{(s*3+q)*1024}")
        K("s_waitcnt lgkmcnt(0)")
        for s in ss:
            for r in range(11): K(f"v_add_f32 {vr(xO+s*16+r)}, {vr(xO+s*16+r)}, {vr(xS+(s-s0)*12+r)}")
    K(f"""s_add_u32 {sr(sU)}, {sr(sU)}, 1
s_lshr_b32 {sr(sT0)}, {sr(sU)}, {sr(sSplit)}
s_cmp_eq_u32 {sr(sT0)}, 0
s_cbranch_scc1 {nm}_cmb
s_barrier""")
    K.label(nm + "_fin")
    K("s_nop 7")
    for s in range(n):
        o = xO + s * 16
        K(f"s_lshl_b32 {sr(sT0)}, 1, {sr(sSplit)}\ns_sub_u32 {sr(sT0)}, {sr(sT0)}, 1\ns_and_b32 {sr(sT0)}, {sr(sT0)}, {s}")
        K(f"s_cmp_lg_u32 {sr(sT0)}, {sr(sR)}\ns_cbranch_scc1 {nm}_skip{s}")
        check_l(K, [o + 10], f"{nm}_fb{s}")
        def exact(K, s=s, o=o):
            K.label(f"{nm}_fb{s}"); K("s_waitcnt vmcnt(0)")
            K(f"v_mov_b32 {vr(xQ+s*8+5)}, 0\nv_mov_b32 {vr(vL)}, {vr(vNinf)}\ns_mov_b32 {sr(sAoff)}, {sr(sKVbase)}\ns_mov_b32 {sr(sU)}, 64")
            K.label(f"{nm}_f1_{s}")
            K.extend(loadl(0)); K("s_waitcnt vmcnt(0)"); K.extend(QK(0, s, 0)); K("s_nop 11"); rowmax(K, range(xS, xS + 16), vL, init=True)
            K(f"s_sub_u32 {sr(sU)}, {sr(sU)}, 1\ns_cmp_lg_u32 {sr(sU)}, 0\ns_cbranch_scc1 {nm}_f1_{s}")
            xhalf(K, vL, "v_max_f32"); setm(s, vL, K)
            for r in range(16): K(f"v_mov_b32 {vr(o+r)}, 0")
            K(f"s_mov_b32 {sr(sAoff)}, {sr(sKVbase)}\ns_mov_b32 {sr(sU)}, 64")
            K.label(f"{nm}_f2_{s}")
            K.extend(loadl(0)); K("s_waitcnt vmcnt(0)"); K.extend(QK(0, s, 0)); K("s_nop 11")
            for g in SM(0): K.extend(g)
            K("s_nop 1"); K.extend(PV(0, s, 0))
            K(f"s_sub_u32 {sr(sU)}, {sr(sU)}, 1\ns_cmp_lg_u32 {sr(sU)}, 0\ns_cbranch_scc1 {nm}_f2_{s}")
            K("s_nop 11")
            K(f"s_branch {nm}_ok{s}")
        COLD.append(exact)
        K.label(f"{nm}_ok{s}")
        K(f"v_rcp_f32 {vr(o+10)}, {vr(o+10)}\ns_nop 0")
        for r in range(10): K(f"v_mul_f32 {vr(o+r)}, {vr(o+10)}, {vr(o+r)}")
        for r in range(5): K(f"v_cvt_pk_bf16_f32 {vr(o+12+r if r < 4 else o+11)}, {vr(o+2*r)}, {vr(o+2*r+1)}")
        K(f"buffer_store_dwordx4 {vr(o+12,4)}, {vr(vL16)}, {sr(S_WS,4)}, {sr(sN)} offen")
        K(f"buffer_store_dword {vr(o+11)}, {vr(vT+2)}, {sr(S_WS,4)}, {sr(sFB)} offen")
        K.label(f"{nm}_skip{s}")
        K(f"s_add_u32 {sr(sN)}, {sr(sN)}, {36*1024}\ns_add_u32 {sr(sFB)}, {sr(sFB)}, {36*1024}")
    K("s_branch k2_B")

ATAB = eval(os.environ.get('ATAB', '[(4,0),(7,1),(3,0),(5,1),(3,1),(4,2),(2,2),None]'))
def dispatchA(K):
    qt = 0
    K(f"""s_lshl_b32 {sr(sKVbase)}, {sr(sH)}, 18
s_add_u32 {sr(sKVbase)}, {sr(sKVbase)}, {WS_KVA}
v_mov_b32 {vr(vT+1)}, 0x3f80""")
    for j, e in enumerate(ATAB):
        if e is None: continue
        n, ls = e
        K(f"""s_cmp_lg_u32 {sr(sJ)}, {j}
s_cbranch_scc1 a_not{j}
s_mov_b32 {sr(sQt0)}, {qt}
s_mov_b32 {sr(sSplit)}, {ls}
s_mov_b32 {sr(sTrip)}, {16 >> ls}
s_and_b32 {sr(sR)}, {sr(sWave)}, {(1 << ls) - 1}
s_mul_i32 {sr(sAbase)}, {sr(sR)}, {(64 >> ls) * 4096}
s_add_u32 {sr(sAbase)}, {sr(sAbase)}, {sr(sKVbase)}
s_branch att{n}
a_not{j}:""")
        qt += n * (4 >> ls)
    assert qt == 64, qt
    K.extend(preB())
    K("s_waitcnt vmcnt(8)\ns_branch k2_B3")
    for n in sorted({e[0] for e in ATAB if e}): attnA(K, n)

WOJ = eval(os.environ.get('WOJ', '(0,2,4)'))
WOST = 65536 + 9216
def wo_issue(K):
    vW = 240; vWl = 241
    K(f"s_mov_b32 {sr(sGw)}, 3")
    for i, j in enumerate(WOJ): K(f"s_cmp_eq_u32 {sr(sJ)}, {j}\ns_cselect_b32 {sr(sGw)}, {i}, {sr(sGw)}")
    K(f"""s_cmp_eq_u32 {sr(sGw)}, 3
s_cbranch_scc1 k2_nowo
s_lshl_b32 {sr(sT0)}, {sr(sH)}, 2
s_add_u32 {sr(sT0)}, {sr(sT0)}, {sr(sWave)}
s_mul_i32 {sr(sJunk)}, {sr(sWave)}, 24576
s_add_u32 {sr(sJunk)}, {sr(sJunk)}, {WOST}
v_lshrrev_b32 v20, 2, {vr(vLane)}
v_mul_u32_u24 v21, 1152, v20
v_and_b32 v22, 3, {vr(vLane)}
v_lshlrev_b32 v22, 4, v22
v_add_u32 {vr(vW)}, v21, v22
s_mul_i32 {sr(sT1)}, {sr(sT0)}, {32*1152}
s_mul_i32 {sr(sT2)}, {sr(sGw)}, 384
s_add_u32 {sr(sT1)}, {sr(sT1)}, {sr(sT2)}
s_lshl_b32 {sr(sWoD)}, {sr(sT0)}, 11
s_mul_i32 {sr(sT3)}, {sr(sGw)}, {6*262144}
s_add_u32 {sr(sWoD)}, {sr(sWoD)}, {sr(sT3)}
s_add_u32 {sr(sWoD)}, {sr(sWoD)}, {WS_WOF}""")
    for i in range(12):
        K(f"s_add_u32 m0, {sr(sJunk)}, {i*1024 - (i%6)*64}")
        K(f"s_add_u32 {sr(sT1)}, {sr(sT1)}, {16*1152}" if i == 6 else "s_nop 0")
        K(f"buffer_load_dwordx4 {vr(vW)}, {sr(S_W2,4)}, {sr(sT1)} offen offset:{(i%6)*64} lds")
    K(f"""v_bfe_u32 v23, v20, 2, 1
v_lshlrev_b32 v23, 2, v23
v_lshrrev_b32 v24, 3, v20
v_lshlrev_b32 v24, 1, v24
v_add_u32 v23, v23, v24
v_bfe_u32 v24, v20, 1, 1
v_add_u32 v23, v23, v24
v_mul_u32_u24 v23, 18, v23
v_and_b32 v24, 1, v20
v_add_u32 v23, v23, v24
v_add_u32 v23, 16, v23
v_mul_u32_u24 v23, 1152, v23
v_add_u32 {vr(vWl)}, v23, v22
s_mul_i32 {sr(sT3)}, {sr(sGw)}, 6
s_lshl_b32 {sr(sT1)}, {sr(sWave)}, 1
s_add_u32 {sr(sT1)}, {sr(sT1)}, {sr(sT3)}
s_mov_b32 {sr(sT0)}, {sr(sH)}
s_mul_i32 {sr(sT2)}, {sr(sH)}, {18*1152}
s_cmp_lg_u32 {sr(sWave)}, 3
s_cbranch_scc1 k2_wo1
s_and_b32 {sr(sT0)}, {sr(sH)}, 3
s_mul_i32 {sr(sT2)}, {sr(sT0)}, {144*1152}
s_add_u32 {sr(sT0)}, {sr(sT0)}, 32
s_lshr_b32 {sr(sT1)}, {sr(sH)}, 2
s_min_u32 {sr(sT1)}, {sr(sT1)}, 2
s_lshl_b32 {sr(sT1)}, {sr(sT1)}, 1
s_add_u32 {sr(sT1)}, {sr(sT1)}, {sr(sT3)}
v_mov_b32 {vr(vW)}, {vr(vWl)}
k2_wo1:
s_mul_i32 {sr(sWoD+1)}, {sr(sT1)}, {36*1024}
s_lshl_b32 {sr(sT0)}, {sr(sT0)}, 10
s_add_u32 {sr(sWoD+1)}, {sr(sWoD+1)}, {sr(sT0)}
s_add_u32 {sr(sWoD+1)}, {sr(sWoD+1)}, {WS_WOFA}
s_lshl_b32 {sr(sT1)}, {sr(sT1)}, 6
s_add_u32 {sr(sT2)}, {sr(sT2)}, {sr(sT1)}""")
    for i in range(2):
        K(f"s_add_u32 m0, {sr(sJunk)}, {(12+i)*1024 - i*64}\ns_nop 0")
        K(f"buffer_load_dwordx4 {vr(vW)}, {sr(S_W1,4)}, {sr(sT2)} offen offset:{i*64} lds")
    K.label("k2_nowo")

def wo_finish(K):
    vTr = 18; R0 = 32
    K(f"""s_cmp_eq_u32 {sr(sGw)}, 3
s_cbranch_scc1 k2_B2
v_lshrrev_b32 v20, 5, {vr(vLane)}
v_lshlrev_b32 {vr(vTr)}, 8, v20
v_bfe_u32 v21, {vr(vLane)}, 2, 2
v_lshlrev_b32 v21, 6, v21
v_add_u32 {vr(vTr)}, {vr(vTr)}, v21
v_bfe_u32 v21, {vr(vLane)}, 4, 1
v_lshlrev_b32 v21, 5, v21
v_add_u32 {vr(vTr)}, {vr(vTr)}, v21
v_and_b32 v21, 3, {vr(vLane)}
v_lshlrev_b32 v21, 3, v21
v_add_u32 {vr(vTr)}, {vr(vTr)}, v21
v_add_u32 {vr(vTr)}, {sr(sJunk)}, {vr(vTr)}""")
    for i in range(14):
        K(f"ds_read_b64_tr_b16 {vr(R0+4*i,2)}, {vr(vTr)} offset:{i*1024}")
        K(f"ds_read_b64_tr_b16 {vr(R0+4*i+2,2)}, {vr(vTr)} offset:{i*1024+512}")
        if i % 4 == 3: K("s_waitcnt lgkmcnt(4)")
    K("s_waitcnt vmcnt(0) lgkmcnt(0)")
    for i in range(6):
        for k in range(2):
            K(f"buffer_store_dwordx4 {vr(R0+4*(6*k+i),4)}, {vr(vL16)}, {sr(S_WS,4)}, {sr(sWoD)} offen offset:{k*1024} {STF2}")
        K(f"s_add_u32 {sr(sWoD)}, {sr(sWoD)}, 262144")
    for i in range(2):
        K(f"buffer_store_dwordx4 {vr(R0+4*(12+i),4)}, {vr(vL16)}, {sr(S_WS,4)}, {sr(sWoD+1)} offen {STF2}")
        K(f"s_add_u32 {sr(sWoD+1)}, {sr(sWoD+1)}, {36*1024}")
    K("s_branch k2_B3")

def srd(K, d, p, size):
    K(f"s_mov_b32 {sr(d)}, {sr(p)}\ns_mov_b32 {sr(d+1)}, {sr(p+1)}\ns_mov_b32 {sr(d+2)}, {size}\ns_mov_b32 {sr(d+3)}, 0x20000")

def build():
    K = Kernel("attn_kernel"); K.force_vgpr = 512
    K.hot = ["b_loop"] + [f"att{n}_loop" for n in range(1, 9)] + [f"b_tail{w}" for w in range(4)]
    K(f"""s_cmp_ge_u32 s2, 256
s_cbranch_scc1 k2_exit
s_load_dwordx2 {sr(sPtr,2)}, s[0:1], {KA_AWO}
s_load_dwordx2 {sr(sPtr+2,2)}, s[0:1], {KA_WO}
s_load_dwordx2 {sr(sPtr+4,2)}, s[0:1], {KA_WS}
v_and_b32 {vr(vLane)}, 63, v0
v_lshrrev_b32 {vr(vT)}, 6, v0
v_lshlrev_b32 {vr(vL16)}, 4, {vr(vLane)}
s_and_b32 {sr(sT0)}, s2, 7
s_lshr_b32 {sr(sT1)}, s2, 3
v_readfirstlane_b32 {sr(sWave)}, {vr(vT)}
s_lshr_b32 {sr(sJ)}, {sr(sT1)}, 2
s_sub_u32 {sr(sJ)}, 7, {sr(sJ)}
s_and_b32 {sr(sT1)}, {sr(sT1)}, 3
s_lshl_b32 {sr(sH)}, {sr(sT0)}, 2
s_add_u32 {sr(sH)}, {sr(sH)}, {sr(sT1)}
v_mov_b32 {vr(vNinf)}, 0xff800000
s_mov_b32 {sr(sLo)}, {f32bits(2.0**-64)}
s_mov_b32 {sr(sHi)}, {f32bits(2.0**64)}
v_and_b32 {vr(vD)}, 31, {vr(vLane)}
v_lshlrev_b32 {vr(vKL)}, 3, {vr(vD)}
s_and_b32 {sr(sT0)}, {sr(sH)}, 1
s_xor_b32 {sr(sT0)}, {sr(sT0)}, 1
s_mul_i32 {sr(sT0)}, {sr(sT0)}, {262144 - 4}
s_add_u32 {sr(sT0)}, {sr(sT0)}, 4
v_add_u32 {vr(vKL)}, {sr(sT0)}, {vr(vKL)}
v_lshrrev_b32 {vr(vT)}, 5, {vr(vLane)}
v_lshlrev_b32 {vr(vT)}, 2, {vr(vT)}
v_sub_u32 {vr(vD)}, {vr(vD)}, {vr(vT)}""")
    K(f"""v_and_b32 {vr(vT)}, 31, {vr(vLane)}
v_cmp_gt_u32 {sr(sT0,2)}, 19, {vr(vT)}
v_cmp_eq_u32 {sr(sT2,2)}, 22, {vr(vT)}
v_mov_b32 {vr(vVL)}, 0x80000000
s_or_b64 vcc, {sr(sT0,2)}, {sr(sT2,2)}
v_cndmask_b32 {vr(vVL)}, {vr(vVL)}, {vr(vL16)}, vcc""")
    for r in range(16): K(f"v_cmp_gt_i32 {sr(sTri+2*r,2)}, {8*(r>>2)+(r&3)}, {vr(vD)}")
    K(f"v_cmp_lt_u32 {sr(sTri+32,2)}, 31, {vr(vLane)}")
    if CPF: code_prefetch(K, sT0, vT, 252, "oproj_kernel", vL16, sWave)
    K("s_waitcnt lgkmcnt(0)")
    srd(K, S_WS, sPtr + 4, WS_SIZE); srd(K, S_KV, sPtr + 4, WS_SIZE)
    srd(K, S_W1, sPtr, SZ_AWO); srd(K, S_W2, sPtr + 2, SZ_WO)
    K(f"s_sub_u32 {sr(S_L)}, {sr(S_WS)}, 262144\ns_subb_u32 {sr(S_L+1)}, {sr(S_WS+1)}, 0\ns_mov_b32 {sr(S_L+2)}, {WS_SIZE}\ns_mov_b32 {sr(S_L+3)}, 0x20000")
    stamp(K, 0, S_WS, 1 << 17)
    if STAMP: K("s_waitcnt vmcnt(0)")
    setupB(K)
    wo_issue(K)
    dispatchA(K)
    K.label("k2_B")
    stamp(K, 7, S_WS, 1 << 17)
    wo_finish(K)
    K.label("k2_B2")
    K("s_waitcnt vmcnt(0)")
    K.label("k2_B3")
    stamp(K, 1, S_WS, 1 << 17)
    attnB(K)
    stamp(K, 4, S_WS, 1 << 17)
    K.label("k2_exit")
    K("s_endpgm")
    for f in COLD: f(K)
    return K
```

```python
from dsl import *
from layout import *
import os

S_WS = 8; S_OUT = 12; S_C = 16; S_W = 56; S_X = 20
sWave = 28; sQt = 29; sMc = 30; sKh = 31; sT0 = 32; sT1 = 33; sT2 = 34; sC = 35; sW = 36; sN = 39; sOut = 40
sSlotW = 41; sSlotR = 42; sTile = 43; sCnt = 44; sX = 45; sPtr = 48
vLane = 1; vL16 = 2; vRd = 3; vOut = 5; vAcc = 16; vWb = 64; vX = 160; vPk = 208
P = int(os.environ.get('K3P', '3'))
R = P + 1
RC = 4
assert P + 1 <= RC
def cfrag(st, k): return ar(((st % RC) * 4 + k) * 4, 4)
def wfrag(st, k, m): return vr(vWb + ((st & 1) * 12 + k * 3 + m) * 4, 4)
def issue(st):
    out = []
    for m in range(3):
        out.append([f"s_add_u32 m0, {sr(sSlotW)}, {m*1024}", f"buffer_load_dwordx4 {vr(vL16)}, {sr(S_W+4*m,4)}, {sr(sW+m)} offen lds", f"s_add_u32 {sr(sW+m)}, {sr(sW+m)}, 4096"])
    for k in range(4):
        out.append(["", f"buffer_load_dwordx4 {cfrag(st, k)}, {vr(vL16)}, {sr(S_C,4)}, {sr(sC)} offen offset:{k*1024}", ""])
    out[-1][2] = f"s_add_u32 {sr(sC)}, {sr(sC)}, 4096"
    return out
def nextW(): return f"s_add_u32 {sr(sSlotW)}, {sr(sSlotW)}, 12288\ns_cmp_ge_u32 {sr(sSlotW)}, {R*12288}\ns_cselect_b32 {sr(sT0)}, {R*12288}, 0\ns_sub_u32 {sr(sSlotW)}, {sr(sSlotW)}, {sr(sT0)}"
def issue_all(K, st):
    for a, b, c in issue(st): K(a); K("s_nop 0" if a else ""); K(b); K(c)
    K(nextW())
def wreads(st): return [f"ds_read_b128 {wfrag(st, k, m)}, {vr(vRd)} offset:{(k*3+m)*1024}" for k in range(4) for m in range(3)]
def nextR(): return f"s_add_u32 {sr(sSlotR)}, {sr(sSlotR)}, 12288\ns_cmp_ge_u32 {sr(sSlotR)}, {R*12288}\ns_cselect_b32 {sr(sSlotR)}, 0, {sr(sSlotR)}\nv_add_u32 {vr(vRd)}, {sr(sSlotR)}, {vr(vL16)}"
def mf(st): return [f"v_mfma_f32_32x32x16_bf16 {vr(vAcc+m*16,16)}, {wfrag(st, k, m)}, {cfrag(st, k)}, {vr(vAcc+m*16,16)}" for k in range(4) for m in range(3)]

SA = int(os.environ.get('K3SA', '36'))
def tile(K, nm, early=False, extra=None):
    K(f"s_mul_i32 {sr(sSlotW)}, {sr(sWave)}, 3072\ns_mov_b32 {sr(sSlotR)}, 0\nv_mov_b32 {vr(vRd)}, {vr(vL16)}")
    for st in range(P): issue_all(K, st)
    for r in range(48): K(f"v_mov_b32 {vr(vAcc+r)}, 0")
    K(f"s_waitcnt vmcnt({7*(P-1)})\ns_barrier")
    K.extend(wreads(0)); issue_all(K, P); K(nextR())
    def stage(st, iss, nwait, nextw=True):
        K(f"s_waitcnt vmcnt({nwait}) lgkmcnt(0)\ns_barrier")
        ms = mf(st); rd = wreads(st + 1)
        at = {g: i for i, g in enumerate((1, 3, 5, 6, 8, 10, 11)) if i < len(iss)}
        for g in range(12):
            K(ms[g])
            if g in at: K(iss[at[g]][1])
            if g < 6: K(rd[2 * g]); K(rd[2 * g + 1])
            if g in at: K(iss[at[g]][2])
            if g + 1 in at: K(iss[at[g + 1]][0])
            if g == 7 and nextw: K(nextW())
            if g == 9: K(nextR())
    assert P + 1 == RC
    K.label(nm + "_loop")
    for st in range(RC):
        stage(st, issue(st + 1 + P), 7 * (P - 1))
        if early and st == 0: K(f"s_cmp_eq_u32 {sr(sN)}, 1\ns_cbranch_scc1 {nm}_out")
    K(f"s_sub_u32 {sr(sN)}, {sr(sN)}, 1\ns_cmp_lg_u32 {sr(sN)}, 0\ns_cbranch_scc1 {nm}_loop")
    if extra:
        n = len(extra) // RC
        for st in range(RC): stage(st, [("", x, "") for x in extra[st * n:(st + 1) * n]], max(0, 7 * (P - 1 - st)) + n * st, False)
    K.label(nm + "_out")
    K("s_waitcnt lgkmcnt(0)\ns_nop 9")

def out_store(K, src, m, half, pk):
    for r in range(4): K(f"v_cvt_pk_bf16_f32 {vr(pk+r)}, {vr(src+2*r)}, {vr(src+2*r+1)}")
    K(f"s_nop 1\nv_permlane32_swap_b32 {vr(pk)}, {vr(pk+2)}\nv_permlane32_swap_b32 {vr(pk+1)}, {vr(pk+3)}")
    K(f"buffer_store_dwordx4 {vr(pk,4)}, {vr(vOut)}, {sr(S_OUT,4)}, {sr(sOut)} offen offset:{m*64 + half*32} {os.environ.get('STF3', '')}")

def srd(K, d, p, size):
    K(f"s_mov_b32 {sr(d)}, {sr(p)}\ns_mov_b32 {sr(d+1)}, {sr(p+1)}\ns_mov_b32 {sr(d+2)}, {size}\ns_mov_b32 {sr(d+3)}, 0x20000")

def build():
    K = Kernel("oproj_kernel"); K.force_vgpr = 512
    K.hot = ["k3b_loop", "k3a_loop"]
    K(f"""s_cmp_ge_u32 s2, 256
s_cbranch_scc1 k3_exit
s_load_dwordx4 {sr(sPtr,4)}, s[0:1], {KA_OUT}
s_load_dwordx2 {sr(sPtr+4,2)}, s[0:1], {KA_WS}
v_and_b32 {vr(vLane)}, 63, v0
v_lshrrev_b32 v6, 6, v0
v_lshlrev_b32 {vr(vL16)}, 4, {vr(vLane)}
s_and_b32 {sr(sT0)}, s2, 7
s_lshr_b32 {sr(sT1)}, s2, 3
v_readfirstlane_b32 {sr(sWave)}, v6
v_and_b32 v7, 31, {vr(vLane)}
v_mul_u32_u24 v7, 2304, v7
v_lshrrev_b32 v8, 5, {vr(vLane)}
v_lshlrev_b32 v8, 4, v8
v_add_u32 {vr(vOut)}, v7, v8
s_and_b32 {sr(sKh)}, {sr(sT0)}, 1
s_lshr_b32 {sr(sT0)}, {sr(sT0)}, 1
s_lshl_b32 {sr(sT0)}, {sr(sT0)}, 2
s_and_b32 {sr(sT2)}, {sr(sT1)}, 3
s_add_u32 {sr(sT0)}, {sr(sT0)}, {sr(sT2)}
s_lshr_b32 {sr(sMc)}, {sr(sT1)}, 2
s_mul_i32 {sr(sTile)}, {sr(sT0)}, 6
s_add_u32 {sr(sTile)}, {sr(sTile)}, {sr(sMc)}
s_lshl_b32 {sr(sQt)}, {sr(sT0)}, 2
s_add_u32 {sr(sQt)}, {sr(sQt)}, {sr(sWave)}
s_mul_i32 {sr(sOut)}, {sr(sQt)}, {32*2304}
s_waitcnt lgkmcnt(0)""")
    srd(K, S_WS, sPtr + 4, WS_SIZE); srd(K, S_OUT, sPtr, SZ_OUT);
    srd(K, S_C, sPtr + 4, WS_SIZE); srd(K, S_X, sPtr + 4, WS_SIZE);
    for m in range(3): srd(K, S_W + 4 * m, sPtr + 4, WS_SIZE)
    stamp(K, 0, S_WS, 2 << 17)
    if STAMP: K("s_waitcnt vmcnt(0)")
    K(f"""s_cmp_ge_u32 {sr(sMc)}, 6
s_cbranch_scc1 k3_A
s_mul_i32 {sr(sT0)}, {sr(sKh)}, {SA*4096}
s_cmp_eq_u32 {sr(sKh)}, 0
s_cselect_b32 {sr(sN)}, {SA // RC}, {(64 - SA) // RC}
s_lshl_b32 {sr(sT1)}, {sr(sN)}, 14
s_lshl_b32 {sr(sC)}, {sr(sQt)}, 18
s_add_u32 {sr(sC)}, {sr(sC)}, {sr(sT0)}
s_add_u32 {sr(sC)}, {sr(sC)}, {WS_CTX}
s_add_u32 {sr(S_C+2)}, {sr(sC)}, {sr(sT1)}
s_mul_i32 {sr(sW)}, {sr(sMc)}, {3*262144}
s_add_u32 {sr(sW)}, {sr(sW)}, {sr(sT0)}
s_lshl_b32 {sr(sT0)}, {sr(sWave)}, 10
s_add_u32 {sr(sW)}, {sr(sW)}, {sr(sT0)}
s_add_u32 {sr(sW)}, {sr(sW)}, {WS_WOF}
s_add_u32 {sr(sW+1)}, {sr(sW)}, 262144
s_add_u32 {sr(sW+2)}, {sr(sW)}, 524288
s_sub_u32 {sr(sT1)}, {sr(sT1)}, 3072
s_add_u32 {sr(S_W+2)}, {sr(sW)}, {sr(sT1)}
s_add_u32 {sr(S_W+6)}, {sr(sW+1)}, {sr(sT1)}
s_add_u32 {sr(S_W+10)}, {sr(sW+2)}, {sr(sT1)}
s_mul_i32 {sr(sT0)}, {sr(sMc)}, 192
s_add_u32 {sr(sOut)}, {sr(sOut)}, {sr(sT0)}
s_add_u32 {sr(sOut)}, {sr(sOut)}, 1152
s_lshl_b32 {sr(sX)}, {sr(sTile)}, 2
s_add_u32 {sr(sX)}, {sr(sX)}, {sr(sWave)}
s_mul_i32 {sr(sX)}, {sr(sX)}, 12288
s_add_u32 {sr(sX)}, {sr(sX)}, {WS_XCH}
s_add_u32 {sr(sX+1)}, {sr(sX)}, 4096
s_add_u32 {sr(sX+2)}, {sr(sX)}, 8192""")
    xl = [f"buffer_load_dwordx4 {vr(vX+4*i,4)}, {vr(vL16)}, {sr(S_X,4)}, {sr(sX+i//4)} offen offset:{(i%4)*1024} sc1" for i in range(12)]
    K(f"s_sub_u32 {sr(sN)}, {sr(sN)}, 1\ns_cmp_eq_u32 {sr(sKh)}, 0\ns_cselect_b32 {sr(S_X+2)}, {WS_SIZE}, 0")
    tile(K, "k3b", extra=xl)
    stamp(K, 1, S_WS, 2 << 17)
    K(f"s_cmp_eq_u32 {sr(sKh)}, 0\ns_cbranch_scc1 k3_own")
    for i in range(12):
        K(f"buffer_store_dwordx4 {vr(vAcc+4*i,4)}, {vr(vL16)}, {sr(S_WS,4)}, {sr(sX+i//4)} offen offset:{(i%4)*1024} sc1")
    K("s_branch k3_end")
    K.label("k3_own")
    stamp(K, 3, S_WS, 2 << 17)
    K(f"s_mov_b32 {sr(sN)}, 0x100000")
    K("s_branch k3_chk")
    K.label("k3_poll")
    K.extend(xl)
    K.label("k3_chk")
    K(f"s_sub_u32 {sr(sN)}, {sr(sN)}, 1\ns_cbranch_scc1 k3_got\ns_waitcnt vmcnt(0)")
    K(f"v_max_u32 v6, {vr(vX)}, {vr(vX+1)}")
    for r in range(2, 48, 2): K(f"v_max3_u32 v6, v6, {vr(vX+r)}, {vr(vX+r+1)}")
    K(f"v_cmp_eq_u32 vcc, -1, v6\ns_cmp_lg_u64 vcc, 0\ns_cbranch_scc1 k3_poll")
    K.label("k3_got")
    K("s_waitcnt vmcnt(0)")
    stamp(K, 4, S_WS, 2 << 17)
    for m in range(3):
        for r in range(16): K(f"v_add_f32 {vr(vAcc+m*16+r)}, {vr(vAcc+m*16+r)}, {vr(vX+16*m+r)}")
        for h in range(2): out_store(K, vAcc + m * 16 + 8 * h, m, h, vPk + 4 * (2 * m + h))
    stamp(K, 5, S_WS, 2 << 17)
    K("s_branch k3_end")
    K.label("k3_A")
    K(f"""s_sub_u32 {sr(sMc)}, {sr(sMc)}, 6
s_lshl_b32 {sr(sMc)}, {sr(sMc)}, 1
s_add_u32 {sr(sMc)}, {sr(sMc)}, {sr(sKh)}
s_mov_b32 {sr(sCnt)}, {sr(sOut)}""")
    K.label("k3_Aloop")
    K(f"""s_mul_i32 {sr(sC)}, {sr(sQt)}, {36*1024}
s_add_u32 {sr(sC)}, {sr(sC)}, {WS_OAF}
s_add_u32 {sr(S_C+2)}, {sr(sC)}, {36*1024}
s_mul_i32 {sr(sW)}, {sr(sMc)}, {3*36*1024}
s_lshl_b32 {sr(sT0)}, {sr(sWave)}, 10
s_add_u32 {sr(sW)}, {sr(sW)}, {sr(sT0)}
s_add_u32 {sr(sW)}, {sr(sW)}, {WS_WOFA}
s_add_u32 {sr(sW+1)}, {sr(sW)}, {36*1024}
s_add_u32 {sr(sW+2)}, {sr(sW)}, {72*1024}
s_add_u32 {sr(S_W+2)}, {sr(sW)}, {36*1024 - 3072}
s_add_u32 {sr(S_W+6)}, {sr(sW+1)}, {36*1024 - 3072}
s_add_u32 {sr(S_W+10)}, {sr(sW+2)}, {36*1024 - 3072}
s_mul_i32 {sr(sT0)}, {sr(sMc)}, 192
s_add_u32 {sr(sOut)}, {sr(sCnt)}, {sr(sT0)}
s_mov_b32 {sr(sN)}, {12 // RC}""")
    tile(K, "k3a", early=True)
    stamp(K, 1, S_WS, 2 << 17)
    for m in range(3):
        for h in range(2): out_store(K, vAcc + m * 16 + 8 * h, m, h, vPk + 4 * (2 * m + h))
    K(f"""s_waitcnt vmcnt(6)
s_barrier
s_add_u32 {sr(sMc)}, {sr(sMc)}, 4
s_cmp_lt_u32 {sr(sMc)}, 6
s_cbranch_scc1 k3_Aloop""")
    K.label("k3_end")
    stamp(K, 2, S_WS, 2 << 17)
    K.label("k3_exit")
    K("s_endpgm")
    return K
```

```python
from dsl import *
from layout import *

SLOT = 36864
XST = 65536
import os
PFMODE = os.environ.get('PF', '1')
ROTM = int(os.environ.get('ROTM', '3')); ROTS = int(os.environ.get('ROTS', '2'))
DIAG = os.environ.get('DIAG', '')
STF = os.environ.get('STF', 'sc1')
S_ACT = 8; S_W = 12; S_WS = 16; S_WSX = 20
sWave = 24; sTb = 25; sChunk = 26; sCb = 27; sCbEnd = 28; sWstride16 = 29
sWbase = 30
sWcolStep = 31; sOutBase = 32; sHS = 33; sDS = 34; sScale = 35
sT0 = 36; sT1 = 37; sT2 = 38; sT3 = 39
sSlotR = 40
sSlotW = 41
sWoff = 42
sOut = 43; sWsize = 44; sActStride = 45; sActBase = 46; sPf = 47; sAc = 48; sPart = 76; sUS = 77; sRot = 78; sCb0 = 79; sMask = 80; sRow = 81; sPfN = 82; S_PF = 84; S_ZERO = 88; sPfCol = 83; sColMask = 92; sPfRun = 93; sRow4 = 94; sScB = 95; sSc0 = 96; sKt0 = 49; sGw = 50
sPfOff = 51; sPtr = 52
vPF = 30; vJunk = 180; vLane = 1; vW = 16; vLaneT = 19; vO = 20; vXD = 24; vXR = 26; vT = 176; vSA = 232; vR16 = 17; vRL = 18; vWF = 32; vAcc = 64; vP = 128; vXV = 144

def srd(K, d, p, size):
    K(f"s_mov_b32 {sr(d)}, {sr(p)}\ns_mov_b32 {sr(d+1)}, {sr(p+1)}\ns_mov_b32 {sr(d+2)}, {size}\ns_mov_b32 {sr(d+3)}, 0x20000")

def xfrag(t, k):
    return ar((k * 4 + t) * 4, 4) if k < 16 else vr(vXV + ((k - 16) * 4 + t) * 4, 4)
def acc(par, t, c): return vAcc + par * 32 + (t * 2 + c) * 4

def dma_slab(KD, NS):
    g = []
    for n in range(NS // 4):
        t = f"s_add_u32 m0, {sr(sSlotW)}, {n*1024}\n"
        if n: t += f"s_add_u32 {sr(sWoff)}, {sr(sWoff)}, {sr(sWstride16)}\n"
        else: t += "s_nop 0\n"
        t += f"buffer_load_dwordx4 {vr(vW)}, {sr(S_W,4)}, {sr(sWoff)} offen lds"
        g.append(t)
    return g

def slab_setup():
    return f"""s_add_u32 {sr(sWoff)}, {sr(sPf)}, {sr(sRot)}
s_and_b32 {sr(sWoff)}, {sr(sWoff)}, {sr(sMask)}
s_or_b32 {sr(sWoff)}, {sr(sWoff)}, {sr(sCb0)}
s_mul_i32 {sr(sWoff)}, {sr(sWoff)}, {sr(sWcolStep)}
s_add_u32 {sr(sWoff)}, {sr(sWoff)}, {sr(sWbase)}
s_cmp_lt_u32 {sr(sPf)}, {sr(sCbEnd)}
s_cselect_b32 {sr(S_W+2)}, {sr(sWsize) if 'nodma' not in DIAG else 0}, 0
s_add_u32 {sr(sPf)}, {sr(sPf)}, 1"""

def slab_done(SLOT):
    return f"""s_add_u32 {sr(sSlotW)}, {sr(sSlotW)}, {SLOT}
s_sub_u32 {sr(sT0)}, {sr(sSlotW)}, {4*SLOT}
s_cmp_ge_u32 {sr(sSlotW)}, {4*SLOT}
s_cselect_b32 {sr(sSlotW)}, {sr(sT0)}, {sr(sSlotW)}"""

def av_offsets():
    o = [f"s_lshl_b32 {sr(sT1)}, {sr(sT1)}, 5", f"v_and_b32 v2, 15, {vr(vLane)}", f"v_add_u32 v2, {sr(sT1)}, v2"]
    for c in range(2):
        if c: o.append("v_add_u32 v2, 16, v2")
        o += ["v_mul_u32_u24 v3, 3641, v2",
              "v_lshrrev_b32 v3, 16, v3", "v_mul_u32_u24 v4, 18, v3", "v_sub_u32 v4, v2, v4",
              "v_lshlrev_b32 v3, 18, v3", "v_lshl_add_u32 v3, v4, 4, v3",
              f"v_add_u32 {vr(vO+c)}, v3, v9", f"v_add_u32 {vr(vO+2+c)}, 4096, {vr(vO+c)}"]
    return o

def scatter_epilogue(par):
    e = [f"s_sub_u32 {sr(sT1)}, {sr(sCb)}, 1", f"s_cmp_lt_u32 {sr(sT1)}, 18\ns_cselect_b32 {sr(sScale)}, {sr(sSc0)}, 1.0",
         f"s_lshl_b32 {sr(sT1)}, {sr(sT1)}, 3", f"v_lshrrev_b32 v2, 4, {vr(vLane)}", f"v_add_u32 v2, {sr(sT1)}, v2"]
    for c in range(2):
        a = vSA + 2 * c
        if c: e.append("v_add_u32 v2, 4, v2")
        e += ["v_mul_u32_u24 v3, 7282, v2", "v_lshrrev_b32 v3, 16, v3", "v_mul_u32_u24 v4, 9, v3", "v_sub_u32 v4, v2, v4",
              "v_cmp_lt_u32 vcc, 4, v4", "v_lshlrev_b32 v3, 19, v3", "v_subrev_u32 v5, 5, v4", "v_cndmask_b32 v8, 0, v9, vcc",
              "v_cndmask_b32 v5, v4, v5, vcc", "v_cmp_eq_u32 vcc, 4, v4", "v_lshrrev_b32 v4, 1, v5", "v_lshl_add_u32 v8, v4, 9, v8",
              "v_and_b32 v5, 1, v5", "v_lshl_add_u32 v8, v5, 3, v8", f"v_add_u32 v8, {vr(vR16)}, v8",
              f"v_cndmask_b32 v8, v8, {vr(vRL)}, vcc", f"v_add_u32 {vr(a)}, v3, v8",
              "v_cndmask_b32 v4, v7, v6, vcc", f"v_add_u32 {vr(a+1)}, {vr(a)}, v4"]
    for r in range(32): e.append(f"v_mul_f32 {vr(vAcc+par*32+r)}, {sr(sScale)}, {vr(vAcc+par*32+r)}")
    for k in range(16): e.append(f"v_cvt_pk_bf16_f32 {vr(vP+k)}, {vr(vAcc+par*32+2*k)}, {vr(vAcc+par*32+2*k+1)}")
    e = [(x, 4 * (x.count('\n') + 1)) for x in e]
    for c in range(2):
        for t in range(4):
            e.append((f"buffer_store_dwordx2 {vr(vP+(t*2+c)*2,2)}, {vr(vSA+2*c+(t&1))}, {sr(S_WSX,4)}, {sr(sOutBase if t < 2 else sOut)} offen", 16))
    return e

def epilogue(par, order, scale, av):
    if av == 'scat': return scatter_epilogue(par)
    e = []
    e.append((f"s_sub_u32 {sr(sT1)}, {sr(sCb)}, 1", 4))
    e += [(x, 4) for x in [f"s_add_u32 {sr(sT1)}, {sr(sT1)}, {sr(sRot)}", f"s_and_b32 {sr(sT1)}, {sr(sT1)}, {sr(sMask)}", f"s_or_b32 {sr(sT1)}, {sr(sT1)}, {sr(sCb0)}"]]
    if av:
        e.append((f"s_mov_b32 {sr(sOut)}, {sr(sOutBase)}", 4))
        e += [(x, 4) for x in av_offsets()]
    else:
        e += [(x, 4) for x in [
            f"s_lshr_b32 {sr(sT2)}, {sr(sT1)}, 2", f"s_mul_i32 {sr(sT2)}, {sr(sT2)}, {sr(sHS)}",
            f"s_and_b32 {sr(sT1)}, {sr(sT1)}, 3", f"s_mul_i32 {sr(sT1)}, {sr(sT1)}, {sr(sDS)}",
            f"s_add_u32 {sr(sOut)}, {sr(sT1)}, {sr(sT2)}", f"s_add_u32 {sr(sOut)}, {sr(sOut)}, {sr(sOutBase)}"]]
    swaps = []
    for i in range(4):
        src = (acc(par, i, 0), acc(par, i, 1)) if order == 'T' else (acc(par, i & 2, i & 1), acc(par, (i & 2) + 1, i & 1))
        for h in range(2):
            if scale:
                for r in range(4): e.append((f"v_mul_f32 {vr(src[h]+r)}, {sr(sScale)}, {vr(src[h]+r)}", 4))
            for r in range(2): e.append((f"v_cvt_pk_bf16_f32 {vr(vP+4*i+2*h+r)}, {vr(src[h]+2*r)}, {vr(src[h]+2*r+1)}", 4))
        e += swaps
        swaps = [(f"v_permlane16_swap_b32 {vr(vP+4*i+r)}, {vr(vP+4*i+2+r)}", 4) for r in range(2)] if order == 'T' else []
    e += [("s_nop 1", 4)] * (1 if swaps else 0) + swaps
    for i in range(4):
        e.append((f"buffer_store_dwordx4 {vr(vP+4*i,4)}, {vr(vO+i)}, {sr(S_WSX,4)}, {sr(sOut)} offen {STF}", 16))
    return e

def wreads(k, par, ring):
    r = vWF + (ring & 3) * 8
    return [f"ds_read_b64_tr_b16 {vr(r+4*c+2*h,2)}, {vr(vT+2*par+c)} offset:{k*2048+h*256}" for c in range(2) for h in range(2)]

def mfmas(k, par, order, ring):
    out = []
    for c in range(2):
        for t in range(4):
            a = vr(acc(par, t, c), 4); w = vr(vWF + (ring & 3) * 8 + 4 * c, 4); x = xfrag(t, k); z = a if k else "0"
            out.append(f"v_mfma_f32_16x16x32_bf16 {a}, {w}, {x}, {z}" if order == 'T' else f"v_mfma_f32_16x16x32_bf16 {a}, {x}, {w}, {z}")
    return out
def setT(par):
    return [f"v_add_u32 {vr(vT+2*par)}, {sr(sSlotR)}, {vr(vLaneT)}", f"v_xor_b32 {vr(vT+2*par+1)}, 32, {vr(vT+2*par)}"]

def body(K, NS, order, par, scale, av):
    epi = epilogue(par ^ 1, order, scale, av)
    SLOT = geom(NS)[0]
    ND = NS // 4; NK = NS // 2; r0 = (par * NK) % 4 if NK % 4 else 0
    su = slab_setup().split('\n'); sd = slab_done(SLOT).split('\n')
    NP = 2 if NS == 32 else 3
    vm = []
    for n in range(ND):
        g = dma_slab(None, NS)[n].split('\n')
        vm.append(((su if n == 0 else []) + [x for x in g[:2] if x != "s_nop 0"], g[2], 'D'))
    for n in range(NP):
        p = sd if n == 0 else []
        if n == 0 and par == 1:
            p = p + [f"s_add_u32 {sr(sPfCol)}, {sr(sPfCol)}, 256", f"s_and_b32 {sr(sPfCol)}, {sr(sPfCol)}, {sr(sColMask)}",
                     f"s_sub_u32 {sr(sPfN)}, {sr(sPfN)}, 1", f"s_cmp_ge_i32 {sr(sPfN)}, 0\ns_cselect_b32 {sr(S_PF+2)}, {sr(sWsize)}, 0",
                     f"s_add_u32 {sr(sPfRun)}, {sr(sPfOff)}, {sr(sPfCol)}"]
        elif n == 0: p = p + [f"s_add_u32 {sr(sPfRun)}, {sr(sPfRun)}, {sr(sRow4 if NS == 32 else sRow)}"]
        else: p = p + [f"s_add_u32 {sr(sPfRun)}, {sr(sPfRun)}, {sr(sRow4)}"]
        vm.append((p, f"buffer_load_dwordx4 {vr(vJunk+4*n,4)}, {vr(vPF)}, {sr(S_PF,4)}, {sr(sPfRun)} offen ; junk", 'P'))
    q = [e for e in epi if not e[0].startswith("buffer_store")]
    vm += [([], e[0], 'S') for e in epi if e[0].startswith("buffer_store")]
    def glue(l):
        o = []
        for x in l:
            if x.startswith("s_cselect") and o: o[-1] += "\n" + x
            else: o.append(x)
        return o
    vm = [(glue(p), m, k) for p, m, k in vm]
    nvm = len(vm); log = []
    slots = [8 * k + g for k in range(NK - 2) for g in (4, 6)]
    late = [f"s_add_u32 {sr(sSlotR)}, {sr(sSlotR)}, {SLOT}", f"s_cmp_ge_u32 {sr(sSlotR)}, {4*SLOT}\ns_cselect_b32 {sr(sSlotR)}, 0, {sr(sSlotR)}"] + setT(par ^ 1)
    sep = 6 if nvm <= NK - 1 else 3; nextvm = 12
    for k in range(NK):
        K("s_waitcnt lgkmcnt(4)")
        ms = mfmas(k, par, order, r0 + k)
        kk = k + 2
        rd = wreads(kk, par, r0 + kk) if kk < NK else wreads(kk - NK, par ^ 1, r0 + kk)
        for g in range(8):
            G = 8 * k + g
            K(ms[g]); room = 12 if av == 'scat' else 8
            if k == NK - 2 and g == 0:
                assert not late and log.count('D') == ND
                K(f"s_waitcnt vmcnt({nvm - ND + len(log)})\ns_barrier")
            if g < 4: K(rd[g]); room -= 4
            if g == 7: room -= 4
            if vm and not vm[0][0] and (g in (4, 5, 6) or (vm[0][2] == 'S' and sep == 3 and g != 7)) and G >= nextvm and not (vm[0][2] == 'S' and q):
                K(vm[0][1]); log.append(vm[0][2]); vm.pop(0); room = 0; nextvm = G + (4 if vm and vm[0][2] == 'D' else sep - 2 + (1 if sep == 3 else 0))
            while room > 0:
                if vm and vm[0][0]: t = vm[0][0].pop(0)
                elif late and G >= 8 * (NK - 5): t = late.pop(0)
                elif q and G >= 8: t = q.pop(0)[0]
                else: break
                K(t); room -= 4 * (t.count('\n') + 1)
    assert not q and not vm
    K(f"s_add_u32 {sr(sCb)}, {sr(sCb)}, 1")
    dstamp(K, sCb, S_WS, 3 << 17)
    last = max(i for i, x in enumerate(log) if x == 'D')
    return len(log) - 1 - last

def tail(K, par, order, scale, av):
    stamp(K, 2, S_WS)
    K("s_nop 7")
    for t, c in epilogue(par, order, scale, av): K(t)

XPF = int(os.environ.get('XPF', '2'))
LC = int(os.environ.get('LC', '3'))
NQ = int(os.environ.get('NQ', '10'))
PF2 = int(os.environ.get('PF2', '1'))
PFAT = int(os.environ.get('PFAT', '1'))
def geom(NS):
    return (32768, 65536, 3) if NS == 32 else (36864, 73728, 2)

def xprologue(K, NS, order_, scale, av):
    NC = NS // 4
    SL, XB, NX = geom(NS)
    order = []
    def issue(c):
        K(f"s_add_u32 {sr(sT0)}, {sr(sActBase)}, {c*128}")
        for n in range(8):
            K(f"s_add_u32 m0, {sr(sT3)}, {(c%NX)*8192 + n*1024}")
            if n: K(f"s_add_u32 {sr(sT0)}, {sr(sT0)}, {sr(sActStride)}")
            else: K("s_nop 0")
            K(f"buffer_load_dwordx4 {vr(vXD+((n^(n>>1))&1))}, {sr(S_ACT,4)}, {sr(sT0)} offen lds")
            order.append(('x', c))
    def slab(i):
        K(slab_setup())
        for g in dma_slab(None, NS): K(g); order.append(('w', i))
        K(slab_done(SL))
    def upto(tag): return len(order) - 1 - max(i for i, o in enumerate(order) if o == tag)
    K(f"s_mul_i32 {sr(sT3)}, {sr(sWave)}, {NX*8192}")
    K(f"s_add_u32 {sr(sT3)}, {sr(sT3)}, {XB}")
    def xpf():
        K(f"""s_lshr_b32 {sr(sT1)}, s2, 3
s_and_b32 {sr(sT1)}, {sr(sT1)}, {(1 << LC) - 1}
s_lshl_b32 {sr(sT1)}, {sr(sT1)}, 2
s_add_u32 {sr(sT1)}, {sr(sT1)}, {sr(sWave)}
s_lshl_b32 {sr(sT2)}, {sr(sTb)}, {LC + 2}
s_add_u32 {sr(sT1)}, {sr(sT1)}, {sr(sT2)}
s_mul_i32 {sr(sT1)}, {sr(sT1)}, {(64 >> LC) * NS * 32}
v_lshlrev_b32 v2, 4, {vr(vLane)}""")
        both = av and int(os.environ.get('XB', '0'))
        if both: srd(K, S_ZERO, sPtr + KA_BX // 4, SZ_BX)
        for n in range(((64 >> LC) * NS * 32 + 1023) // 1024):
            for d in ([S_ZERO] if both else []) + [S_ACT]:
                K(f"buffer_load_dwordx4 {vr(vJunk+4*n,4)}, v2, {sr(d,4)}, {sr(sT1)} offen offset:{(n%4)*1024} ; junk"); order.append(('q', n))
            if n % 4 == 3: K(f"s_add_u32 {sr(sT1)}, {sr(sT1)}, 4096")
    if XPF == 1: xpf()
    if XPF == 2: slab(0); xpf(); issue(0)
    else: issue(0); slab(0)
    for c in range(1, NX): issue(c)
    if order_ == 'N':
        K(f"v_bfe_u32 v2, {vr(vLane)}, 3, 1\nv_lshlrev_b32 v2, 10, v2\nv_add_u32 {vr(vXR)}, v2, {vr(vXR)}")
    K(f"v_add_u32 {vr(vXR)}, {sr(sT3)}, {vr(vXR)}\nv_xor_b32 {vr(vXR+1)}, 64, {vr(vXR)}")
    K(f"""s_lshr_b32 {sr(sRow)}, {sr(sWstride16)}, 4
s_lshr_b32 {sr(sRow4)}, {sr(sWstride16)}, 2
s_lshr_b32 {sr(sPfOff)}, {sr(sKt0)}, 1
s_mul_i32 {sr(sPfOff)}, {sr(sPfOff)}, {NS//2}
s_mul_i32 {sr(sPfOff)}, {sr(sPfOff)}, {sr(sRow)}
s_mul_i32 {sr(sT1)}, {sr(sCb)}, {sr(sWcolStep)}
s_add_u32 {sr(sPfOff)}, {sr(sPfOff)}, {sr(sT1)}
s_add_u32 {sr(sPfOff)}, {sr(sPfOff)}, {sr(sPart)}
s_mov_b32 {sr(S_PF)}, {sr(S_W)}
s_mov_b32 {sr(S_PF+1)}, {sr(S_W+1)}
s_mov_b32 {sr(S_PF+2)}, {sr(sWsize) if PFMODE == '1' else 0}
s_mov_b32 {sr(S_PF+3)}, 0x20000
s_sub_u32 {sr(sPfN)}, {sr(sCbEnd)}, {sr(sCb)}
s_mul_i32 {sr(sPfN)}, {sr(sPfN)}, {sr(sWcolStep)}
s_add_u32 {sr(sPfN)}, {sr(sPfN)}, {255 + 127 - 512}
s_lshr_b32 {sr(sPfN)}, {sr(sPfN)}, 8
s_min_u32 {sr(sPfN)}, {sr(sPfN)}, {2 if PFMODE == '1' else 0}
s_lshl_b32 {sr(sT1)}, {sr(sRot)}, 6
s_lshl_b32 {sr(sColMask)}, {sr(sMask)}, 6
s_or_b32 {sr(sColMask)}, {sr(sColMask)}, 63
s_add_u32 {sr(sPfCol)}, {sr(sT1)}, 256
v_and_b32 v2, 31, {vr(vLane)}
v_lshlrev_b32 v2, 4, v2
v_add_u32 v2, {sr(sT1)}, v2
v_and_b32 v2, {sr(sColMask)}, v2
v_lshrrev_b32 v3, 5, {vr(vLane)}
v_mul_lo_u32 v3, v3, {sr(sRow)}
v_add_u32 v31, v2, v3
v_and_b32 v2, 15, {vr(vLane)}
v_lshlrev_b32 v2, 4, v2
v_lshrrev_b32 v3, 4, {vr(vLane)}
v_mul_lo_u32 v3, v3, {sr(sRow)}
v_add_u32 {vr(vPF)}, v2, v3
v_mov_b32 {vr(vT)}, {vr(vLaneT)}
v_xor_b32 {vr(vT+1)}, 32, {vr(vLaneT)}
s_mov_b32 {sr(sSlotR)}, {SL}""")
    K.extend(setT(1))
    def pf0():
        K(f"s_mov_b32 {sr(sPfRun)}, {sr(sPfOff)}\ns_lshl_b32 {sr(sT1)}, {sr(sRow)}, 1")
        for n in range(NS // 4):
            K(f"buffer_load_dwordx4 {vr(vJunk+4*n,4)}, v31, {sr(S_PF,4)}, {sr(sPfRun)} offen ; junk\ns_add_u32 {sr(sPfRun)}, {sr(sPfRun)}, {sr(sT1)}"); order.append(('p', n))
    def pfgroup(g):
        K(f"s_lshl_b32 {sr(sT1)}, {sr(sRot)}, 6\ns_add_u32 {sr(sT1)}, {sr(sT1)}, {256*g}\ns_and_b32 {sr(sT1)}, {sr(sT1)}, {sr(sColMask)}\ns_add_u32 {sr(sPfRun)}, {sr(sPfOff)}, {sr(sT1)}")
        n = (NS // 2 + 3) // 4
        for i in range(n):
            K(f"buffer_load_dwordx4 {vr(vJunk+4*i,4)}, {vr(vPF)}, {sr(S_PF,4)}, {sr(sPfRun)} offen ; junk\ns_add_u32 {sr(sPfRun)}, {sr(sPfRun)}, {sr(sRow4)}"); order.append(('p', i))
        return n
    if PF2 == 1: pfgroup(0)
    for c in range(NC):
        if c == 0: K(f"s_waitcnt vmcnt({min(upto(('w', 0)), upto(('x', 0)))})\ns_barrier")
        else: K(f"s_waitcnt vmcnt({upto(('x', c))})")
        if os.environ.get("PST"): K(f"s_memtime s[{sPtr+2*c}:{sPtr+2*c+1}]")
        for i in range(2):
            for t in range(4):
                to = 2048 * t if order_ == 'T' else 4096 * (t >> 1) + 1024 * (t & 1)
                K(f"ds_read_b128 {xfrag(t, 2*c+i)}, {vr(vXR+((i^t)&1))} offset:{(c%NX)*8192 + to}")
        K("s_waitcnt lgkmcnt(6)")
        for i in range(2): K.extend(wreads(2 * c + i, 0, i))
        K("s_waitcnt lgkmcnt(8)" if not os.environ.get("PST") else "s_waitcnt lgkmcnt(0)")
        if c + NX < NC: issue(c + NX)
        if c == NC - NX - 2: slab(1)
        if c == NC - 1 - PFAT and not PF2: pf0()
        if c == PF2 - 2: pfgroup(0)
        K("s_waitcnt lgkmcnt(0)")
        for i in range(2): K.extend(mfmas(2 * c + i, 0, order_, i))
    if os.environ.get("PST"):
        K("s_waitcnt lgkmcnt(0)")
        for c in range(NC): K(f"v_mov_b32 v14, s{sPtr+2*c}\nv_lshrrev_b32 v13, 6, v0\nv_lshl_add_u32 v13, s2, 2, v13\nv_lshlrev_b32 v13, 7, v13\nv_add_u32 v13, {WS_STAMP + (4 << 17) + c*4}, v13\nbuffer_store_dword v14, v13, {sr(S_WS,4)}, 0 offen")
    stamp(K, 1, S_WS)
    K("s_barrier")
    for k in range(2): K.extend(wreads(k, 1, (NS // 2) % 4 + k))
    slab(2)
    dstamp(K, sPf, S_WS, (3 << 17) + 64)
    nd = body(Kernel("x"), NS, order_, 0, scale, av) - upto(('w', 2))
    n1 = pfgroup(1) if PF2 else 0
    K(f"s_mov_b32 {sr(S_ZERO)}, {sr(S_W)}\ns_mov_b32 {sr(S_ZERO+1)}, {sr(S_W+1)}\ns_mov_b32 {sr(S_ZERO+2)}, 0\ns_mov_b32 {sr(S_ZERO+3)}, 0x20000")
    for n in range(n1, nd): K(f"buffer_load_dword {vr(vJunk+24)}, {vr(vPF)}, {sr(S_ZERO,4)}, 0 offen ; junk")
    if av == 'scat': K("v_mov_b32 v6, 128\nv_mov_b32 v7, 256\nv_mov_b32 v9, 0x40000")
    K(f"s_add_u32 {sr(sCb)}, {sr(sCb)}, 1")

def mainloop(K, name, NS, order, scale, av, done):
    K.label(name)
    xprologue(K, NS, order, scale, av)
    K.label(name + "_l1")
    body(K, NS, order, 1, scale, av)
    K(f"s_cmp_ge_u32 {sr(sCb)}, {sr(sCbEnd)}")
    K(f"s_cbranch_scc1 {name}_t1")
    body(K, NS, order, 0, scale, av)
    K(f"s_cmp_lt_u32 {sr(sCb)}, {sr(sCbEnd)}")
    K(f"s_cbranch_scc1 {name}_l1")
    K("s_waitcnt lgkmcnt(0)")
    tail(K, 0, order, scale, av)
    K(f"s_branch {done}")
    K.label(name + "_t1")
    K("s_waitcnt lgkmcnt(0)")
    tail(K, 1, order, scale, av)
    K(f"s_branch {done}")

def build():
    K = Kernel("proj_kernel"); K.force_vgpr = 512
    K.hot = [f"k1_{n}_l1" for n in ("K", "V", "T576", "S576", "N576")]
    P = lambda ka: sPtr + ka // 4
    K(f"""s_cmp_ge_u32 s2, 256
s_cbranch_scc1 k1_exit
s_load_dwordx16 {sr(sPtr,16)}, s[0:1], 0
s_load_dwordx8 {sr(sPtr+16,8)}, s[0:1], 64
v_and_b32 {vr(vLane)}, 63, v0
v_lshrrev_b32 v2, 6, v0
s_and_b32 {sr(sT0)}, s2, 7
s_lshr_b32 {sr(sT1)}, s2, 3
v_readfirstlane_b32 {sr(sWave)}, v2
s_lshr_b32 {sr(sTb)}, {sr(sT1)}, {LC}
s_and_b32 {sr(sT1)}, {sr(sT1)}, {(1 << LC) - 1}
s_lshr_b32 {sr(sChunk)}, {sr(sT0)}, {LC - 2}
s_lshl_b32 {sr(sChunk)}, {sr(sChunk)}, {LC}
s_add_u32 {sr(sChunk)}, {sr(sChunk)}, {sr(sT1)}
s_and_b32 {sr(sT0)}, {sr(sT0)}, {(1 << (LC - 2)) - 1}
s_lshl_b32 {sr(sT0)}, {sr(sT0)}, {5 - LC}
s_add_u32 {sr(sTb)}, {sr(sTb)}, {sr(sT0)}
s_lshl_b32 {sr(sKt0)}, {sr(sTb)}, 3
s_lshl_b32 {sr(sT0)}, {sr(sWave)}, 1
s_add_u32 {sr(sKt0)}, {sr(sKt0)}, {sr(sT0)}
v_lshrrev_b32 v2, 4, {vr(vLane)}
v_lshlrev_b32 {vr(vLaneT)}, 9, v2
v_bfe_u32 v3, {vr(vLane)}, 2, 2
v_lshl_add_u32 {vr(vLaneT)}, v3, 6, {vr(vLaneT)}
v_and_b32 v3, 1, v2
v_lshl_add_u32 {vr(vLaneT)}, v3, 5, {vr(vLaneT)}
v_and_b32 v3, 3, {vr(vLane)}
v_lshl_add_u32 {vr(vLaneT)}, v3, 3, {vr(vLaneT)}
v_bfe_u32 v4, {vr(vLane)}, 1, 3
v_xor_b32 v4, v4, v2
v_and_b32 v3, 15, {vr(vLane)}
v_lshlrev_b32 v3, 7, v3
v_lshl_add_u32 {vr(vXR)}, v4, 4, v3""")
    if int(os.environ.get('CPF', '1')):
        K(f"v_lshlrev_b32 v5, 4, {vr(vLane)}")
        code_prefetch(K, sT0, 5, 252, "code_end", 5, sWave)
    def descr(K, actp, actsz, wp, wsz):
        K("s_waitcnt lgkmcnt(0)")
        srd(K, S_W, wp, wsz); srd(K, S_ACT, actp, actsz); srd(K, S_WS, P(KA_WS), WS_SIZE)
        srd(K, S_WSX, P(KA_WS), 0 if 'nost' in DIAG else WS_SIZE)
        stamp(K, 0, S_WS)
    K(f"""s_mov_b32 {sr(sScale)}, 1.0
s_mov_b32 {sr(sWcolStep)}, 64
s_mov_b32 {sr(sPart)}, 0
s_mov_b32 {sr(sRot)}, 0
s_mov_b32 {sr(sCb0)}, 0
s_mov_b32 {sr(sMask)}, -1
s_mov_b32 {sr(sDS)}, 2048
v_and_b32 v6, 3, {vr(vLane)}
v_lshrrev_b32 v7, 5, {vr(vLane)}
v_lshlrev_b32 v7, 1, v7
v_xor_b32 v5, v6, v7
v_lshlrev_b32 v6, 4, v5
v_lshrrev_b32 v7, 2, {vr(vLane)}
s_cmp_ge_u32 {sr(sChunk)}, {16+NQ}
s_cbranch_scc1 k1_typeA
s_cmp_ge_u32 {sr(sChunk)}, 16
s_cbranch_scc1 k1_typeQ""")
    def common(K, actp, actsz, actstride, wstride, rows_per_wave):
        K(f"""s_mov_b32 {sr(sActStride)}, {8*actstride}
s_mul_i32 {sr(sActBase)}, {sr(sKt0)}, {32*actstride}
s_mov_b32 {sr(sWstride16)}, {16*wstride}
s_mul_i32 {sr(sWbase)}, {sr(sWave)}, {rows_per_wave*wstride}
s_mul_i32 {sr(sSlotW)}, {sr(sWave)}, {rows_per_wave*64}
v_mul_u32_u24 {vr(vW)}, {wstride}, v7
v_add_u32 {vr(vW)}, {vr(vW)}, v6
v_lshrrev_b32 v8, 3, {vr(vLane)}
v_mul_u32_u24 v8, {actstride}, v8
v_and_b32 v9, 7, {vr(vLane)}
v_lshrrev_b32 v2, 4, {vr(vLane)}
v_xor_b32 v9, v9, v2
v_lshl_add_u32 {vr(vXD)}, v9, 4, v8
v_xor_b32 v9, 4, v9
v_lshl_add_u32 {vr(vXD+1)}, v9, 4, v8""")
    def ovec(K, order, dt, us):
        K(f"v_and_b32 v2, 15, {vr(vLane)}\nv_lshlrev_b32 v2, 4, v2\nv_bfe_u32 v3, {vr(vLane)}, 4, 1\nv_lshrrev_b32 v4, 5, {vr(vLane)}")
        if order == 'T': K(f"s_mov_b32 {sr(sT2)}, {dt}\nv_mul_lo_u32 v3, v3, {sr(sT2)}\nv_lshl_add_u32 v9, v4, 9, v3")
        else: K("v_lshlrev_b32 v3, 9, v3\nv_lshl_add_u32 v9, v4, 10, v3")
        K(f"""v_add_u32 {vr(vO)}, v2, v9
v_add_u32 {vr(vO+1)}, 256, {vr(vO)}
v_add_u32 {vr(vO+2)}, {us}, {vr(vO)}
v_add_u32 {vr(vO+3)}, {us}, {vr(vO+1)}""")
    common(K, P(KA_CKV), SZ_CKV, 1024, 8192, 128)
    K(f"""s_and_b32 {sr(sCb)}, {sr(sChunk)}, 7
s_lshl_b32 {sr(sCb)}, {sr(sCb)}, 4
s_add_u32 {sr(sCbEnd)}, {sr(sCb)}, 16
s_mov_b32 {sr(sPf)}, {sr(sCb)}
s_mov_b32 {sr(sCb0)}, {sr(sCb)}
s_mov_b32 {sr(sMask)}, 15
s_and_b32 {sr(sRot)}, {sr(sChunk)}, {ROTM}
s_lshl_b32 {sr(sRot)}, {sr(sRot)}, {ROTS}
s_mov_b32 {sr(sWsize)}, {SZ_WUK}
s_mov_b32 {sr(sHS)}, {64*16384}
s_lshl_b32 {sr(sOutBase)}, {sr(sKt0)}, 14
s_add_u32 {sr(sOutBase)}, {sr(sOutBase)}, {WS_KVB}
s_cmp_ge_u32 {sr(sChunk)}, 8
s_cbranch_scc1 k1_typeV""")
    ovec(K, 'T', 1024, 16384)
    descr(K, P(KA_CKV), SZ_CKV, P(KA_WUK), SZ_WUK)
    mainloop(K, "k1_K", 32, 'T', False, False, "k1_end")
    K.label("k1_typeV")
    ovec(K, 'N', 0, 16384)
    K(f"s_add_u32 {sr(sOutBase)}, {sr(sOutBase)}, 8192")
    descr(K, P(KA_CKV), SZ_CKV, P(KA_WUV), SZ_WUK)
    mainloop(K, "k1_V", 32, 'N', False, False, "k1_end")
    K.label("k1_typeQ")
    common(K, P(KA_BX), SZ_BX, 1152, 8192, 144)
    ovec(K, 'T', 1024, 8192)
    qb, qr = divmod(128, NQ)
    K(f"""s_sub_u32 {sr(sT0)}, {sr(sChunk)}, 16
s_mul_i32 {sr(sCb)}, {sr(sT0)}, {qb}
s_min_u32 {sr(sT1)}, {sr(sT0)}, {qr}
s_add_u32 {sr(sCb)}, {sr(sCb)}, {sr(sT1)}
s_cmp_lt_u32 {sr(sT0)}, {qr}
s_cselect_b32 {sr(sCbEnd)}, {qb+1}, {qb}
s_add_u32 {sr(sCbEnd)}, {sr(sCbEnd)}, {sr(sCb)}""")
    if NQ == 8:
        K(f"""s_mov_b32 {sr(sCb0)}, {sr(sCb)}
s_mov_b32 {sr(sMask)}, 15
s_and_b32 {sr(sRot)}, {sr(sChunk)}, {ROTM}
s_lshl_b32 {sr(sRot)}, {sr(sRot)}, {ROTS}""")
    K(f"""s_mov_b32 {sr(sPf)}, {sr(sCb)}
s_mov_b32 {sr(sWsize)}, {SZ_WQ}
s_mov_b32 {sr(sHS)}, {64*8192}
s_mov_b32 {sr(sScale)}, {f32bits(C_B)}
s_lshl_b32 {sr(sOutBase)}, {sr(sKt0)}, 13
s_add_u32 {sr(sOutBase)}, {sr(sOutBase)}, {WS_QB}""")
    descr(K, P(KA_BX), SZ_BX, P(KA_WQ), SZ_WQ)
    mainloop(K, "k1_T576", 36, 'T', True, False, "k1_end")
    K.label("k1_typeA")
    common(K, P(KA_AX), SZ_AX, 1152, 3456, 144)
    NA = 16 - NQ - 2
    K(f"""s_sub_u32 {sr(sAc)}, {sr(sChunk)}, {16+NQ}
s_mov_b32 {sr(sWsize)}, {SZ_AWQKV}
s_cmp_ge_u32 {sr(sAc)}, {NA}
s_cbranch_scc1 k1_typeAV
s_mul_i32 {sr(sCb)}, {sr(sAc)}, {36 // NA}
s_add_u32 {sr(sCbEnd)}, {sr(sCb)}, {36 // NA}
s_mov_b32 {sr(sPf)}, {sr(sCb)}
s_mov_b32 {sr(sSc0)}, {f32bits(C_A)}
s_lshl_b32 {sr(sOutBase)}, {sr(sKt0)}, 12
s_add_u32 {sr(sOutBase)}, {sr(sOutBase)}, {WS_QA}
s_add_u32 {sr(sOut)}, {sr(sOutBase)}, 4096
v_and_b32 v2, 15, {vr(vLane)}
v_lshlrev_b32 {vr(vR16)}, 4, v2
v_lshlrev_b32 v2, 3, v2
v_add_u32 {vr(vRL)}, 3072, v2""")
    assert 36 % NA == 0
    descr(K, P(KA_AX), SZ_AX, P(KA_AWQKV), SZ_AWQKV)
    mainloop(K, "k1_S576", 36, 'T', True, 'scat', "k1_house")
    K.label("k1_typeAV")
    K(f"""s_sub_u32 {sr(sT0)}, {sr(sAc)}, {NA}
s_mul_i32 {sr(sCb)}, {sr(sT0)}, 9
s_mov_b32 {sr(sPf)}, {sr(sCb)}
s_mov_b32 {sr(sPart)}, 2304
s_add_u32 {sr(sWbase)}, {sr(sWbase)}, 2304
s_add_u32 {sr(sCbEnd)}, {sr(sCb)}, 9
s_lshl_b32 {sr(sOutBase)}, {sr(sKt0)}, 12
s_add_u32 {sr(sOutBase)}, {sr(sOutBase)}, {WS_KVA+1024}""")
    ovec(K, 'N', 0, 4096)
    descr(K, P(KA_AX), SZ_AX, P(KA_AWQKV), SZ_AWQKV)
    mainloop(K, "k1_N576", 36, 'N', False, True, "k1_Aextra")
    K.label("k1_Aextra")
    K(f"""s_cmp_lg_u32 {sr(sAc)}, {NA}
s_cbranch_scc1 k1_house
v_lshrrev_b32 v2, 4, {vr(vLane)}
v_lshlrev_b32 v2, 18, v2
v_bfe_u32 v3, {vr(vLane)}, 1, 2
v_lshlrev_b32 v3, 9, v3
v_add_u32 v2, v2, v3
v_bfe_u32 v3, {vr(vLane)}, 3, 1
v_lshlrev_b32 v3, 12, v3
v_add_u32 v2, v2, v3
v_and_b32 v3, 1, {vr(vLane)}
v_lshlrev_b32 v3, 6, v3
v_add_u32 v2, v2, v3
v_add_u32 v2, {18*16}, v2
v_mov_b32 v4, 0x3f803f80
v_mov_b32 v5, 0x3f803f80
v_mov_b32 v6, 0x3f803f80
v_mov_b32 v7, 0x3f803f80
s_lshl_b32 {sr(sT0)}, {sr(sKt0)}, 12
s_add_u32 {sr(sT0)}, {sr(sT0)}, {WS_KVA+1024}""")
    for n in range(8):
        K(f"buffer_store_dwordx4 v[4:7], v2, {sr(S_WS,4)}, {sr(sT0)} offen")
        K(f"s_add_u32 {sr(sT0)}, {sr(sT0)}, {4*262144}")
    K.label("k1_house")
    if int(os.environ.get('WOPF', '1')):
        assert NQ == 10
        K(f"""s_lshl_b32 {sr(sGw)}, {sr(sAc)}, 3
s_add_u32 {sr(sGw)}, {sr(sGw)}, {sr(sTb)}
s_lshl_b32 {sr(sGw)}, {sr(sGw)}, 2
s_add_u32 {sr(sGw)}, {sr(sGw)}, {sr(sWave)}
s_mul_i32 {sr(sT2)}, {sr(sGw)}, 24576
v_lshlrev_b32 v2, 4, {vr(vLane)}
s_mov_b32 {sr(sT0)}, 6""")
        srd(K, S_W, P(KA_WO), SZ_WO); srd(K, S_ACT, P(KA_AWO), SZ_AWO)
        K.label("k1_h1")
        for n in range(4): K(f"buffer_load_dwordx4 {vr(vJunk+4*n,4)}, v2, {sr(S_W,4)}, {sr(sT2)} offen offset:{n*1024} ; junk")
        K(f"""s_add_u32 {sr(sT2)}, {sr(sT2)}, 4096
s_sub_u32 {sr(sT0)}, {sr(sT0)}, 1
s_cmp_lg_u32 {sr(sT0)}, 0
s_cbranch_scc1 k1_h1
s_lshl_b32 {sr(sT2)}, {sr(sGw)}, 12""")
        for n in range(4): K(f"buffer_load_dwordx4 {vr(vJunk+4*n,4)}, v2, {sr(S_ACT,4)}, {sr(sT2)} offen offset:{n*1024} ; junk")
    K.label("k1_end")
    stamp(K, 3, S_WS)
    if STAMP:
        K("s_waitcnt vmcnt(0)")
        stamp(K, 4, S_WS)
    K.label("k1_exit")
    K("s_endpgm")
    return K
```

```python
from dsl import *
from layout import *
import os
CPF = int(os.environ.get('CPF', '1'))
FILLF = os.environ.get('FILLF', ''); OAFF = os.environ.get('OAFF', '')
STF2 = os.environ.get('STF2', 'sc1')

S_WS = 8; S_KV = 12; S_W1 = 28; S_W2 = 32; S_L = 52
sH = 16; sJ = 17; sWave = 18; sK = 19; sKf = 20; sMaskK = 21; sDoff = 22; sDslot = 23
sT0 = 24; sT1 = 25; sT2 = 26; sT3 = 27
sKVbase = 36; sQt0 = 37; sFB = 38; sU = 39; sN = 40; sAoff = 41; sJunk = 42; sM0 = 43; sLo = 44; sHi = 45; sGw = 46; sKslot = 47; sPair = 50; sQt1 = 56; sBQ0 = 61; sBKV = 62; sQoff = 4; sWoS = 6; sWoD = 48
sPtr = 48
sTri = 64
JUNK = 98304
aO = 0; aQ = 128; aK = 192; aV = 224
vLane = 1; vL16 = 2; vAK = 3; vAV = 4; vD = 5; vNinf = 6; vL = 8
vM = 10
vT = 12
vNegM = 16; vS = 48; vP = 112; vE = 144
vO1 = 160
def Oa(s, d): return ar(aO + d * 16, 16) if s == 0 else vr(vO1 + d * 16, 16)
def Qa(s, ds): return ar(aQ + (s * 8 + ds) * 4, 4)
def Sv(p, s): return vS + (p * 2 + s) * 16
def Pv(p, s, ks): return vP + ((p * 2 + s) * 2 + ks) * 4

def X(p, subs=(0, 1), raw=False):
    out = []
    for ds in range(8):
        for s in subs:
            d = vr(Sv(p, s), 16)
            c = d if ds else ("0" if raw else vr(vNegM + s * 16, 16))
            out.append(f"v_mfma_f32_32x32x16_bf16 {d}, {ar(aK + ds*4, 4)}, {Qa(s, ds)}, {c}")
    return out
def Y(p, subs=(0, 1), vb=aV):
    out = []
    for ks in range(2):
        for d in range(4):
            for s in subs:
                out.append(f"v_mfma_f32_32x32x16_bf16 {Oa(s, d)}, {ar(vb + (d*2+ks)*4, 4)}, {vr(Pv(p, s, ks), 4)}, {Oa(s, d)}")
    return out
def softmax_ops(p, subs=(0, 1)):
    seq = []
    for ks in range(2):
        for s in subs:
            for r in range(8 * ks, 8 * ks + 8): seq.append((s, ks, r))
    ops = []
    n = len(seq)
    for i in range(n + 2):
        if i < n:
            s, ks, r = seq[i]; ops.append((f"v_exp_f32 {vr(Sv(p,s)+r)}, {vr(Sv(p,s)+r)}", 8))
        if 0 <= i - 1 < n and not (os.environ.get('DIAG2') == 'noadd' and (i - 1) % 8):
            s, ks, r = seq[i - 1]; ops.append((f"v_add_f32 {vr(vL+s)}, {vr(Sv(p,s)+r)}, {vr(vL+s)}", 4))
        if 0 <= i - 2 < n and (i - 2) % 2 == 1:
            s, ks, r = seq[i - 2]
            ops.append((f"v_cvt_pk_bf16_f32 {vr(Pv(p,s,ks)+(r%8)//2)}, {vr(Sv(p,s)+r-1)}, {vr(Sv(p,s)+r)}", 4))
    return ops
def kread(u2, ds): return f"ds_read_b128 {ar(aK + ds*4, 4)}, {vr(vAK)} offset:{u2*16384 + ds*1024}"
def vread(u2, i): return f"ds_read_b128 {ar(aV + i*4, 4)}, {vr(vAV)} offset:{u2*16384 + 8192 + i*1024}"
VORD = [0, 2, 4, 6, 1, 3, 5, 7]
def dma(i):
    t = ""
    if i % 4 == 0:
        t += f"s_add_u32 m0, {sr(sM0)}, {(i//4)*4096}\n"
        t += f"s_add_u32 {sr(sDoff)}, {sr(sDoff)}, {4096 if i else 28672}\n"
    return t + f"buffer_load_dwordx4 {vr(vL16)}, {sr(S_KV,4)}, {sr(sDoff)} offen offset:{(i%4)*1024} lds"
def tri(s): return [f"v_cndmask_b32 {vr(vNegM+s*16+r)}, {vr(vNegM+s*16+r)}, {vr(vNinf)}, {sr(sTri+2*r,2)}" for r in range(16)]

START = 3
NSLOT = 5; RING = NSLOT * 32768
COST = {'R': 4, 'R2': 6, 'D': 16, 'S': 4}
def spread(ops, room, g0, g1):
    n = len(room); tot = sum(c for _, c in ops); cap = sum(room[g % n] for g in range(g0, g1))
    res = []; g = g0; acc = 0.0; tgt = room[g0 % n] * tot / cap; used = 0
    for t, c in ops:
        while (acc + c / 2 > tgt or used + c > room[g % n]) and g < g1 - 1:
            g += 1; tgt += room[g % n] * tot / cap; used = 0
        assert used + c <= room[g % n], ("no room", g, t)
        res.append(g); acc += c; used += c
    return res

RD = [0, 1, 2, 4, 6, 8, 10, 11]
DG = [21, 25, 29, 35, 39, 45, 51, 57]
def steady_plan():
    mem = {g: [] for g in range(64)}; fix = {g: [] for g in range(64)}; room = [24] * 64
    for i, g in enumerate(RD):
        mem[g].append(vread(0, VORD[i])); mem[16 + g].append(kread(0, i))
        mem[32 + g].append(vread(1, VORD[i])); mem[48 + g].append(kread(1, i))
    mem[16] = ["s_waitcnt vmcnt(16)", "s_barrier"] + mem[16]
    for i, g in enumerate(DG):
        mem[g].append(f"buffer_load_dwordx4 {vr(vL16)}, {sr(S_KV,4)}, {sr(sDoff)} offen offset:{(i%4)*1024} lds")
    fix[19] += [f"s_mov_b32 m0, {sr(sDslot)}", f"s_add_u32 {sr(sDoff)}, {sr(sDoff)}, 28672"]
    fix[37] += [f"s_add_u32 m0, {sr(sDslot)}, 4096", f"s_add_u32 {sr(sDoff)}, {sr(sDoff)}, 4096"]
    fix[41] += [f"s_add_u32 {sr(sDslot)}, {sr(sDslot)}, 32768", f"s_cmp_ge_u32 {sr(sDslot)}, {RING}"]
    fix[43] += [f"s_cselect_b32 {sr(sT0)}, {RING}, 0", f"s_sub_u32 {sr(sDslot)}, {sr(sDslot)}, {sr(sT0)}"]
    fix[46] += [f"v_mov_b32 {vr(vAV)}, {vr(vAK)}"]
    fix[53] += [f"s_add_u32 {sr(sKslot)}, {sr(sKslot)}, 32768", f"s_cmp_ge_u32 {sr(sKslot)}, {RING}"]
    fix[55] += [f"s_cselect_b32 {sr(sKslot)}, 0, {sr(sKslot)}"]
    fix[60] += [f"v_add_u32 {vr(vAK)}, {sr(sKslot)}, {vr(vL16)}"]
    fix[61] += [f"s_add_u32 {sr(sK)}, {sr(sK)}, 1"]
    for g in range(64):
        for m in mem[g]: room[g] -= 16 if m.startswith("buffer") else 4
        room[g] -= 4 * len(fix[g])
    room[16] = 0
    for g in (15, 31, 47): room[g] -= 4
    room[31] -= 8
    room[63] -= 12
    od = softmax_ops(1); ev = softmax_ops(0)
    god = spread(od, room, 16 + START, 48 + START); gev = spread(ev, room, 48 + START, 80 + START)
    return mem, fix, od, god, ev, gev
PLAN = steady_plan()
def ev_first(): return [t for (t, c), g in zip(PLAN[4], PLAN[5]) if g < 64]
def ev_rest(): return [(t, c) for (t, c), g in zip(PLAN[4], PLAN[5]) if g >= 64]

def steady(K):
    mem, fix, od, god, ev, gev = PLAN
    fill = {g: [] for g in range(64)}
    for (t, c), g in zip(ev, gev):
        if g >= 64: fill[g - 64].append(t)
    for (t, c), g in zip(od, god): fill[g].append(t)
    for (t, c), g in zip(ev, gev):
        if g < 64: fill[g].append(t)
    ms = X(1) + Y(0) + X(0) + Y(1)
    K.label("b_loop")
    for g in range(64):
        K(ms[g]); K.extend(mem[g]); K.extend(fill[g]); K.extend(fix[g])
        if g == 31:
            K(f"s_cmp_eq_u32 {sr(sK)}, {sr(sMaskK)}\ns_cbranch_scc1 b_m1")
            K.label("b_m1r")
            COLD.append(lambda K: (K.label("b_m1"), K.extend(tri(0)), K("s_branch b_m1r")))
        if g % 16 == 15: K("s_waitcnt lgkmcnt(0)")
    K(f"s_cmp_lt_u32 {sr(sK)}, {sr(sKf)}\ns_cbranch_scc1 b_loop")

def tail(K, w):
    last = 7 - w
    tiles = lambda i: (0, 1) if i <= w else (1,)
    K.label(f"b_tail{w}")
    for q in range(2):
        src = sKslot if q == 0 else sPair
        K(f"s_add_u32 {sr(sPair+q)}, {sr(src)}, 32768\ns_cmp_ge_u32 {sr(sPair+q)}, {RING}\ns_cselect_b32 {sr(sPair+q)}, 0, {sr(sPair+q)}")
    phases = []
    for i in range(1, last + 1): phases += [('X', i), ('Y', i - 1)]
    phases.append(('Y', last))
    queue = [(0, t, c) for t, c in ev_rest()]
    slot = 0
    for pi, (ty, i) in enumerate(phases):
        p = i & 1; tl = tiles(i)
        pre = []; reads = []
        if ty == 'X':
            if i == w: pre += tri(0)
            if i == last: pre += tri(1)
            ms = X(p, tl)
            u = i - 1
            if u % 2 == 0 and u > 0: pre.append(f"v_mov_b32 {vr(vAV)}, {vr(vAK)}")
            reads = [vread(u & 1, VORD[r]) for r in range(8)]
        else:
            ms = Y(p, tl)
            if i == last: ms = Y(p, tl, aK)
            if i + 2 <= last:
                u = i + 2
                if u % 2 == 0 and u > 2: pre.append(f"v_add_u32 {vr(vAK)}, {sr(sPair + u//2 - 2)}, {vr(vL16)}")
                reads = [kread(u & 1, r) for r in range(8)]
            elif i + 1 == last:
                u = last
                if u % 2 == 0: pre.append(f"v_mov_b32 {vr(vAV)}, {vr(vAK)}")
                reads = [vread(u & 1, VORD[r]).replace(ar(aV + VORD[r]*4, 4), ar(aK + VORD[r]*4, 4)) for r in range(8)]
        K.extend(pre)
        if pre: K("s_nop 0")
        K("s_waitcnt lgkmcnt(0)")
        n = len(ms)
        rg = RD if n == 16 else [0, 0, 1, 1, 2, 2, 3, 3]
        for g in range(n):
            if ty == 'Y':
                need = Ins(ms[g]).srcAB
                idx = max([q for q, (e, t, c) in enumerate(queue) if Ins(t).w & need], default=-1)
                if idx >= 0:
                    for e, t, c in queue[:idx + 1]: K(t)
                    queue = queue[idx + 1:]; K("s_nop 1")
            K(ms[g]); room = 24
            if ty == 'Y' and i == 0 and g == 0: K("s_waitcnt vmcnt(0)\ns_barrier"); room = 0
            first = True
            for r in range(8):
                if reads and rg[r] == g: K(reads[r]); room -= 4 if first else 6; first = False
            if g == n - 1: room -= 4
            while queue and queue[0][0] <= slot and queue[0][2] <= room:
                K(queue[0][1]); room -= queue[0][2]; queue = queue[1:]
            slot += 1
        if ty == 'X': queue += [(slot + START, t, c) for t, c in softmax_ops(p, tl)]
    for e, t, c in queue: K(t)
    K("s_branch b_done")

def rowmax(K, regs, dst, init=None):
    r = list(regs)
    if init is None: K(f"v_max_f32 {vr(dst)}, {vr(r[0])}, {vr(r[1])}"); r = r[2:]
    while r: K(f"v_max3_f32 {vr(dst)}, {vr(dst)}, {vr(r[0])}, {vr(r[1])}"); r = r[2:]
def xhalf(K, reg, op):
    K(f"v_mov_b32 {vr(vT)}, {vr(reg)}\ns_nop 1\nv_permlane32_swap_b32 {vr(reg)}, {vr(vT)}\n{op} {vr(reg)}, {vr(reg)}, {vr(vT)}")

def check_l(K, regs, okl):
    K(f"s_mov_b64 vcc, exec")
    for r in regs:
        K(f"v_cmp_le_f32 {sr(sT0,2)}, {sr(sLo)}, {vr(r)}\nv_cmp_ge_f32 {sr(sT2,2)}, {sr(sHi)}, {vr(r)}")
        K(f"s_and_b64 vcc, vcc, {sr(sT0,2)}\ns_and_b64 vcc, vcc, {sr(sT2,2)}")
    K(f"s_cmp_eq_u64 vcc, exec\ns_cbranch_scc0 {okl}")

COLD = []
def pair(): return [(f"s_mov_b32 {sr(sM0)}, {sr(sDslot)}\ns_add_u32 {sr(sDslot)}, {sr(sDslot)}, 32768\n" if i == 0 else "") + dma(i) for i in range(8)]
def setupB(K):
    K(f"""s_lshl_b32 {sr(sKf)}, {sr(sJ)}, 2
s_lshl_b32 {sr(sBQ0)}, {sr(sJ)}, 3
s_add_u32 {sr(sQt1)}, {sr(sBQ0)}, 7
s_add_u32 {sr(sBQ0)}, {sr(sBQ0)}, {sr(sWave)}
s_sub_u32 {sr(sQt1)}, {sr(sQt1)}, {sr(sWave)}
s_sub_u32 {sr(sMaskK)}, {sr(sKf)}, 1
s_cmp_eq_u32 {sr(sWave)}, 0
s_cselect_b32 {sr(sMaskK)}, {sr(sMaskK)}, 0x7fffffff
s_lshl_b32 {sr(sBKV)}, {sr(sH)}, 20
s_add_u32 {sr(sBKV)}, {sr(sBKV)}, {WS_KVB}
s_lshl_b32 {sr(sDslot)}, {sr(sWave)}, 13
s_add_u32 {sr(sDoff)}, {sr(sBKV)}, {sr(sDslot)}
s_sub_u32 {sr(sDoff)}, {sr(sDoff)}, 28672
s_mov_b32 {sr(sK)}, 0
s_mov_b32 {sr(sKslot)}, 32768""")
    for s in range(2):
        K(f"""s_lshl_b32 {sr(sQoff+s)}, {sr(sH)}, 6
s_add_u32 {sr(sQoff+s)}, {sr(sQoff+s)}, {sr(sQt1 if s else sBQ0)}
s_lshl_b32 {sr(sQoff+s)}, {sr(sQoff+s)}, 13
s_add_u32 {sr(sQoff+s)}, {sr(sQoff+s)}, {WS_QB}""")
def preB():
    q = []
    for s in range(2):
        for i in range(8):
            q.append(f"buffer_load_dwordx4 {Qa(s, i)}, {vr(vL16)}, {sr(S_WS,4)}, {sr(sQoff+s)} offen offset:{(i%4)*1024}"
                     + (f"\ns_add_u32 {sr(sQoff+s)}, {sr(sQoff+s)}, 4096" if i == 3 else ""))
    return pair() + q + pair()

def attnB(K):
    K(f"""v_mov_b32 {vr(vAK)}, {vr(vL16)}
v_mov_b32 {vr(vAV)}, {vr(vL16)}
v_mov_b32 {vr(vL)}, 0
v_mov_b32 {vr(vL+1)}, 0
s_barrier""")
    for r in range(4): K(f"v_mov_b32 {vr(vE+r)}, 0")
    for ds in range(8): K(kread(0, ds))
    K("s_waitcnt lgkmcnt(0)")
    d23 = pair() + pair()
    for m, d in zip(X(0, raw=True), d23): K(m); K(d)
    for ds in range(8): K(kread(1, ds))
    K(f"v_add_u32 {vr(vAK)}, 32768, {vr(vAK)}\ns_nop 1")
    zero = [f"v_mfma_f32_32x32x16_bf16 {Oa(i >> 2, i & 3)}, {vr(vE,4)}, {vr(vE,4)}, 0" for i in range(8)]
    for s in range(2):
        K(zero.pop()); rowmax(K, range(Sv(0, s), Sv(0, s) + 16), vM + s); xhalf(K, vM + s, "v_max_f32")
    for s in range(2):
        for r in range(16):
            if r % 8 == 0: K(zero.pop())
            K(f"v_sub_f32 {vr(vNegM+s*16+r)}, 0, {vr(vM+s)}")
    K(f"s_cmp_eq_u32 {sr(sBQ0)}, 0\ns_cbranch_scc1 b_m0")
    K.label("b_m0r")
    COLD.append(lambda K: (K.label("b_m0"), K.extend(tri(0)), K("s_branch b_m0r")))
    for s in range(2):
        K(zero.pop())
        for r in range(16): K(f"v_add_f32 {vr(Sv(0,s)+r)}, {vr(vNegM+s*16+r)}, {vr(Sv(0,s)+r)}")
    K.extend(ev_first())
    stamp(K, 2, S_WS, 1 << 17)
    K(f"s_waitcnt lgkmcnt(0)\ns_cmp_eq_u32 {sr(sKf)}, 0\ns_cbranch_scc1 b_tails")
    steady(K)
    K.label("b_tails")
    for w in (1, 2, 3): K(f"s_cmp_eq_u32 {sr(sWave)}, {w}\ns_cbranch_scc1 b_tail{w}")
    for w in range(4): tail(K, w)
    K.label("b_done")
    stamp(K, 3, S_WS, 1 << 17)
    for s in range(2): xhalf(K, vL + s, "v_add_f32")
    check_l(K, [vL, vL + 1], "b_fb")
    COLD.append(lambda K: (K.label("b_fb"), fallbackB(K), K("s_branch b_ok")))
    K.label("b_ok")
    K(f"""v_rcp_f32 {vr(vM)}, {vr(vL)}
v_rcp_f32 {vr(vL)}, {vr(vL+1)}
s_lshl_b32 {sr(sT1)}, {sr(sH)}, 13
s_add_u32 {sr(sT1)}, {sr(sT1)}, {WS_CTX}
s_nop 7""")
    for s in range(2):
        K(f"s_lshl_b32 {sr(sT0)}, {sr(sQt1 if s else sBQ0)}, 18\ns_add_u32 {sr(sT0)}, {sr(sT0)}, {sr(sT1)}")
        rc = vL if s else vM
        for d in range(4):
            b = vS + d * 16 if s == 0 else vO1 + d * 16; pk = vP + d * 8
            if s == 0:
                for r in range(16): K(f"v_accvgpr_read_b32 {vr(b+r)}, {ar(aO+d*16+r)}")
            for r in range(8): K(f"v_pk_mul_f32 {vr(b+2*r,2)}, {vr(b+2*r,2)}, {vr(rc,2)} op_sel_hi:[1,0]")
            for r in range(8): K(f"v_cvt_pk_bf16_f32 {vr(pk+r)}, {vr(b+2*r)}, {vr(b+2*r+1)}")
            for t in range(2):
                K(f"buffer_store_dwordx4 {vr(pk+4*t,4)}, {vr(vL16)}, {sr(S_WS,4)}, {sr(sT0)} offen offset:{(d%2)*2048+t*1024} {STF2}")
            if d == 1: K(f"s_add_u32 {sr(sT0)}, {sr(sT0)}, 4096")

def fallbackB(K):
    def loadK():
        for ds in range(8):
            K(f"buffer_load_dwordx4 {ar(aK+4*ds,4)}, {vr(vL16)}, {sr(S_WS,4)}, {sr(sAoff)} offen offset:{(ds%4)*1024}")
            if ds % 4 == 3: K(f"s_add_u32 {sr(sAoff)}, {sr(sAoff)}, 4096")
    def masks(nm):
        K(f"s_cmp_lg_u32 {sr(sU)}, {sr(sBQ0)}\ns_cbranch_scc1 {nm}_a")
        K.extend(tri(0)); K.label(nm + "_a")
        K(f"s_cmp_le_u32 {sr(sU)}, {sr(sBQ0)}\ns_cbranch_scc1 {nm}_b")
        for r in range(16): K(f"v_mov_b32 {vr(vNegM+r)}, {vr(vNinf)}")
        K.label(nm + "_b")
        K(f"s_cmp_lg_u32 {sr(sU)}, {sr(sQt1)}\ns_cbranch_scc1 {nm}_c")
        K.extend(tri(1)); K.label(nm + "_c"); K("s_nop 1")
    for r in range(32): K(f"v_mov_b32 {vr(vNegM+r)}, 0")
    K(f"v_mov_b32 {vr(vM)}, {vr(vNinf)}\nv_mov_b32 {vr(vM+1)}, {vr(vNinf)}\ns_mov_b32 {sr(sU)}, 0\ns_mov_b32 {sr(sAoff)}, {sr(sBKV)}")
    K.label("fb1")
    loadK(); K(f"s_add_u32 {sr(sAoff)}, {sr(sAoff)}, 8192")
    masks("fb1m"); K("s_waitcnt vmcnt(0)")
    K.extend(X(0)); K("s_nop 15")
    for s in range(2): rowmax(K, range(Sv(0, s), Sv(0, s) + 16), vM + s, init=True)
    K(f"s_add_u32 {sr(sU)}, {sr(sU)}, 1\ns_cmp_le_u32 {sr(sU)}, {sr(sQt1)}\ns_cbranch_scc1 fb1")
    for s in range(2):
        xhalf(K, vM + s, "v_max_f32")
        for r in range(16): K(f"v_sub_f32 {vr(vNegM+s*16+r)}, 0, {vr(vM+s)}")
    for i in range(64): K(f"v_accvgpr_write_b32 {ar(aO+i)}, 0\nv_mov_b32 {vr(vO1+i)}, 0")
    K(f"v_mov_b32 {vr(vL)}, 0\nv_mov_b32 {vr(vL+1)}, 0\ns_mov_b32 {sr(sU)}, 0\ns_mov_b32 {sr(sAoff)}, {sr(sBKV)}")
    K.label("fb2")
    loadK()
    for i in range(8):
        K(f"buffer_load_dwordx4 {ar(aV+4*i,4)}, {vr(vL16)}, {sr(S_WS,4)}, {sr(sAoff)} offen offset:{(i%4)*1024}")
        if i % 4 == 3: K(f"s_add_u32 {sr(sAoff)}, {sr(sAoff)}, 4096")
    masks("fb2m"); K("s_waitcnt vmcnt(0)")
    K.extend(X(0)); K("s_nop 15")
    for t, c in softmax_ops(0): K(t)
    K("s_nop 1"); K.extend(Y(0))
    K(f"s_add_u32 {sr(sU)}, {sr(sU)}, 1\ns_cmp_le_u32 {sr(sU)}, {sr(sQt1)}\ns_cbranch_scc1 fb2")
    for s in range(2): xhalf(K, vL + s, "v_add_f32")

xS = 16; xP = 48; xQ = 64; xO = 120
vKL = 7; vVL = 248
sSplit = 57; sR = 58; sAbase = 59; sTrip = 60
KB = lambda b: b * 16
def loadA(b):
    return [f"buffer_load_dwordx4 {ar(KB(b),4)}, {vr(vL16)}, {sr(S_WS,4)}, {sr(sAoff)} offen",
            f"buffer_load_dword {ar(KB(b)+4)}, {vr(vKL)}, {sr(S_L,4)}, {sr(sAoff)} offen offset:3072",
            f"buffer_load_dwordx4 {ar(KB(b)+8,4)}, {vr(vVL)}, {sr(S_WS,4)}, {sr(sAoff)} offen offset:1024",
            f"buffer_load_dwordx4 {ar(KB(b)+12,4)}, {vr(vVL)}, {sr(S_WS,4)}, {sr(sAoff)} offen offset:2048\ns_add_u32 {sr(sAoff)}, {sr(sAoff)}, 4096"]
def attnA(K, n, D=4):
    nm = f"att{n}"
    loadl = loadA
    def loads(b): K.extend(loadl(b))
    def QK(b, s, p):
        d = vr(xS + p * 16, 16)
        return [f"v_mfma_f32_32x32x16_bf16 {d}, {ar(KB(b),4)}, {vr(xQ+s*8,4)}, 0",
                f"v_mfma_f32_32x32x16_bf16 {d}, {ar(KB(b)+4,4)}, {vr(xQ+s*8+4,4)}, {d}"]
    def PV(b, s, p):
        o = vr(xO + s * 16, 16)
        return [f"v_mfma_f32_32x32x16_bf16 {o}, {ar(KB(b)+8+4*t,4)}, {vr(xP+p*8+4*t,4)}, {o}" for t in range(2)]
    def SM(p):
        g = []
        for q in range(4):
            t = [f"v_exp_f32 {vr(xS+p*16+4*q+r)}, {vr(xS+p*16+4*q+r)}" for r in range(4)]
            t += [f"v_cvt_pk_bf16_f32 {vr(xP+p*8+2*q+r)}, {vr(xS+p*16+4*q+2*r)}, {vr(xS+p*16+4*q+2*r+1)}" for r in range(2)]
            g.append(t)
        return g
    def setm(s, src, K=K):
        K(f"v_sub_f32 {vr(vM)}, 0, {vr(src)}\nv_cvt_pk_bf16_f32 {vr(vM)}, {vr(vM)}, 0")
        K(f"v_cndmask_b32 {vr(xQ+s*8+5)}, {vr(vM)}, 0, {sr(sTri+32,2)}")
    K.label(nm)
    for b in range(D):
        K(f"v_accvgpr_write_b32 {ar(KB(b)+5)}, {vr(vT+1)}\nv_accvgpr_write_b32 {ar(KB(b)+6)}, 0\nv_accvgpr_write_b32 {ar(KB(b)+7)}, 0")
    for s in range(n):
        for r in range(5, 8): K(f"v_mov_b32 {vr(xQ+s*8+r)}, 0")
    for r in range(16): K(f"v_mov_b32 {vr(xP+r)}, 0")
    K("s_nop 1")
    for s in range(n): K(f"v_mfma_f32_32x32x16_bf16 {vr(xO+16*s,16)}, {vr(xP,4)}, {vr(xP,4)}, 0")
    for r in range(8): K(f"v_accvgpr_write_b32 {ar(KB(D-1)+8+r)}, 0")
    K(f"s_waitcnt vmcnt({4*(D-1) + 5})")
    for s in range(n): K(f"v_cndmask_b32 {vr(xQ+s*8+4)}, {vr(xQ+s*8+4)}, 0, {sr(sTri+32,2)}")
    K("s_nop 0"); K.extend(QK(D - 1, 0, 0))
    for s in range(n):
        if s + 1 < n: K.extend(QK(D - 1, s + 1, (s + 1) & 1))
        K("s_nop 11")
        rowmax(K, range(xS + (s & 1) * 16, xS + (s & 1) * 16 + 16), vM); xhalf(K, vM, "v_max_f32"); setm(s, vM)
    stamp(K, 5, S_WS, 1 << 17)
    K(f"s_mov_b32 {sr(sU)}, {sr(sTrip)}")
    K(f"s_waitcnt vmcnt({4*(D-2) + 5})")
    K.extend(QK(0, 0, 0))
    K("s_nop 11")
    T = D * n
    assert T % 2 == 0
    def iteration(last):
        extra = preB() if last else []
        step = (4 * T) // len(extra) if last else 0
        issued = 0
        for t in range(T):
            u, s = divmod(t, n); p = t & 1
            un, sn = divmod(t + 1, n); up, sp = divmod(t - 1 + T, n)
            sm = SM(p)
            ld = loadl((u - 1) % D)
            at = {(0, 0): ld[0], (0, 1): ld[1], (0, 3): ld[2], (1, 0): ld[3]}
            if last and u > 0: at = {}
            if not last:
                if sn == 0: K(f"s_waitcnt vmcnt({4*(D-2) - (1 if n == 2 else 0)})")
            elif sn == 0 and un < D:
                K(f"s_waitcnt vmcnt({4*(D-2-un) + issued if un < D - 1 else issued - lastpos})")
            ms = QK(un % D, sn, p ^ 1) + PV(up % D, sp, p ^ 1)
            for q in range(4):
                if not (last and un == D and q < 2): K(ms[q])
                if (s, q) in at:
                    K(at[(s, q)]); issued += 1
                    if (s, q) == (1, 0): lastpos = issued
                elif last and extra and (4 * t + q) >= 5 and ((4 * t + q) % step == step - 1 or len(extra) >= 4 * T - (4 * t + q)):
                    K(extra.pop(0)); issued += 1
                K.extend(sm[q])
        K.extend(extra)
    K(f"s_sub_u32 {sr(sU)}, {sr(sU)}, 1")
    K.label(nm + "_loop")
    iteration(False)
    K(f"s_sub_u32 {sr(sU)}, {sr(sU)}, 1\ns_cmp_lg_u32 {sr(sU)}, 0\ns_cbranch_scc1 {nm}_loop")
    iteration(True)
    K("s_nop 1")
    K.extend(PV((D - 1), n - 1, (T - 1) & 1))
    stamp(K, 6, S_WS, 1 << 17)
    K(f"""s_mul_i32 {sr(sT0)}, {sr(sQt0)}, {36*1024}
s_add_u32 {sr(sT0)}, {sr(sT0)}, {WS_OAF}
s_lshl_b32 {sr(sT1)}, {sr(sH)}, 10
s_add_u32 {sr(sN)}, {sr(sT1)}, {sr(sT0)}
s_lshr_b32 {sr(sT2)}, {sr(sH)}, 3
s_lshl_b32 {sr(sT2)}, {sr(sT2)}, 10
s_add_u32 {sr(sT0)}, {sr(sT0)}, {sr(sT2)}
s_bfe_u32 {sr(sT2)}, {sr(sH)}, 0x10002
s_lshl_b32 {sr(sT2)}, {sr(sT2)}, 9
s_add_u32 {sr(sT0)}, {sr(sT0)}, {sr(sT2)}
s_and_b32 {sr(sT2)}, {sr(sH)}, 3
s_lshl_b32 {sr(sT2)}, {sr(sT2)}, 2
s_add_u32 {sr(sT0)}, {sr(sT0)}, {sr(sT2)}
s_add_u32 {sr(sFB)}, {sr(sT0)}, {32*1024}
v_mov_b32 {vr(vT+2)}, 0x80000000
v_cndmask_b32 {vr(vT+2)}, {vr(vL16)}, {vr(vT+2)}, {sr(sTri+32,2)}
s_cmp_eq_u32 {sr(sSplit)}, 0
s_cbranch_scc1 {nm}_fin""")
    K(f"s_mul_i32 {sr(sT0)}, {sr(sWave)}, 24576\ns_add_u32 {sr(sT0)}, {sr(sT0)}, 65536\nv_add_u32 {vr(vT)}, {sr(sT0)}, {vr(vL16)}")
    for s in range(n):
        for q in range(3): K(f"ds_write_b128 {vr(vT)}, {vr(xO+s*16+4*q,4)} offset:{(s*3+q)*1024}")
    K(f"s_waitcnt lgkmcnt(0)\ns_barrier\ns_mov_b32 {sr(sU)}, 1")
    K.label(nm + "_cmb")
    K(f"""s_xor_b32 {sr(sT0)}, {sr(sWave)}, {sr(sU)}
s_mul_i32 {sr(sT0)}, {sr(sT0)}, 24576
s_add_u32 {sr(sT0)}, {sr(sT0)}, 65536
v_add_u32 {vr(vT)}, {sr(sT0)}, {vr(vL16)}""")
    for s0 in range(0, n, 4):
        ss = range(s0, min(n, s0 + 4))
        for s in ss:
            for q in range(3): K(f"ds_read_b128 {vr(xS+(s-s0)*12+4*q,4)}, {vr(vT)} offset:{(s*3+q)*1024}")
        K("s_waitcnt lgkmcnt(0)")
        for s in ss:
            for r in range(11): K(f"v_add_f32 {vr(xO+s*16+r)}, {vr(xO+s*16+r)}, {vr(xS+(s-s0)*12+r)}")
    K(f"""s_add_u32 {sr(sU)}, {sr(sU)}, 1
s_lshr_b32 {sr(sT0)}, {sr(sU)}, {sr(sSplit)}
s_cmp_eq_u32 {sr(sT0)}, 0
s_cbranch_scc1 {nm}_cmb
s_barrier""")
    K.label(nm + "_fin")
    K("s_nop 7")
    for s in range(n):
        o = xO + s * 16
        K(f"s_lshl_b32 {sr(sT0)}, 1, {sr(sSplit)}\ns_sub_u32 {sr(sT0)}, {sr(sT0)}, 1\ns_and_b32 {sr(sT0)}, {sr(sT0)}, {s}")
        K(f"s_cmp_lg_u32 {sr(sT0)}, {sr(sR)}\ns_cbranch_scc1 {nm}_skip{s}")
        check_l(K, [o + 10], f"{nm}_fb{s}")
        def exact(K, s=s, o=o):
            K.label(f"{nm}_fb{s}"); K("s_waitcnt vmcnt(0)")
            K(f"v_mov_b32 {vr(xQ+s*8+5)}, 0\nv_mov_b32 {vr(vL)}, {vr(vNinf)}\ns_mov_b32 {sr(sAoff)}, {sr(sKVbase)}\ns_mov_b32 {sr(sU)}, 64")
            K.label(f"{nm}_f1_{s}")
            K.extend(loadl(0)); K("s_waitcnt vmcnt(0)"); K.extend(QK(0, s, 0)); K("s_nop 11"); rowmax(K, range(xS, xS + 16), vL, init=True)
            K(f"s_sub_u32 {sr(sU)}, {sr(sU)}, 1\ns_cmp_lg_u32 {sr(sU)}, 0\ns_cbranch_scc1 {nm}_f1_{s}")
            xhalf(K, vL, "v_max_f32"); setm(s, vL, K)
            for r in range(16): K(f"v_mov_b32 {vr(o+r)}, 0")
            K(f"s_mov_b32 {sr(sAoff)}, {sr(sKVbase)}\ns_mov_b32 {sr(sU)}, 64")
            K.label(f"{nm}_f2_{s}")
            K.extend(loadl(0)); K("s_waitcnt vmcnt(0)"); K.extend(QK(0, s, 0)); K("s_nop 11")
            for g in SM(0): K.extend(g)
            K("s_nop 1"); K.extend(PV(0, s, 0))
            K(f"s_sub_u32 {sr(sU)}, {sr(sU)}, 1\ns_cmp_lg_u32 {sr(sU)}, 0\ns_cbranch_scc1 {nm}_f2_{s}")
            K("s_nop 11")
            K(f"s_branch {nm}_ok{s}")
        COLD.append(exact)
        K.label(f"{nm}_ok{s}")
        K(f"v_rcp_f32 {vr(o+10)}, {vr(o+10)}\ns_nop 0")
        for r in range(10): K(f"v_mul_f32 {vr(o+r)}, {vr(o+10)}, {vr(o+r)}")
        for r in range(5): K(f"v_cvt_pk_bf16_f32 {vr(o+12+r if r < 4 else o+11)}, {vr(o+2*r)}, {vr(o+2*r+1)}")
        K(f"buffer_store_dwordx4 {vr(o+12,4)}, {vr(vL16)}, {sr(S_WS,4)}, {sr(sN)} offen {OAFF}")
        K(f"buffer_store_dword {vr(o+11)}, {vr(vT+2)}, {sr(S_WS,4)}, {sr(sFB)} offen {OAFF}")
        K.label(f"{nm}_skip{s}")
        K(f"s_add_u32 {sr(sN)}, {sr(sN)}, {36*1024}\ns_add_u32 {sr(sFB)}, {sr(sFB)}, {36*1024}")
    K("s_branch k2_B")

ATAB = eval(os.environ.get('ATAB', '[(4,0),(7,1),(3,0),(5,1),(3,1),(4,2),(2,2),None]'))
def tableA(K):
    qt = 0; ns = ls_ = 0; qlo = qhi = 0
    for j, e in enumerate(ATAB):
        n, ls = e or (0, 0)
        ns |= n << (4 * j); ls_ |= ls << (4 * j)
        if j < 4: qlo |= qt << (8 * j)
        else: qhi |= (qt & 255) << (8 * (j - 4))
        qt += n * (4 >> ls)
    assert qt == 64, qt
    K(f"""s_lshl_b32 {sr(sKVbase)}, {sr(sH)}, 18
s_add_u32 {sr(sKVbase)}, {sr(sKVbase)}, {WS_KVA}
s_lshl_b32 {sr(sT0)}, {sr(sJ)}, 2
s_lshr_b32 {sr(sN)}, {ns}, {sr(sT0)}
s_and_b32 {sr(sN)}, {sr(sN)}, 15
s_lshr_b32 {sr(sSplit)}, {ls_}, {sr(sT0)}
s_and_b32 {sr(sSplit)}, {sr(sSplit)}, 15
s_mov_b32 {sr(sT1)}, {qhi}
s_cmp_lt_u32 {sr(sJ)}, 4
s_cselect_b32 {sr(sT1)}, {qlo}, {sr(sT1)}
s_lshl_b32 {sr(sT0)}, {sr(sJ)}, 3
s_lshr_b32 {sr(sQt0)}, {sr(sT1)}, {sr(sT0)}
s_and_b32 {sr(sQt0)}, {sr(sQt0)}, 255
s_lshr_b32 {sr(sTrip)}, 16, {sr(sSplit)}
s_lshr_b32 {sr(sT0)}, {sr(sWave)}, {sr(sSplit)}
s_lshl_b32 {sr(sT1)}, {sr(sT0)}, {sr(sSplit)}
s_sub_u32 {sr(sR)}, {sr(sWave)}, {sr(sT1)}
s_mul_i32 {sr(sT0)}, {sr(sT0)}, {sr(sN)}
s_add_u32 {sr(sQt0)}, {sr(sQt0)}, {sr(sT0)}
s_mul_i32 {sr(sAbase)}, {sr(sR)}, {sr(sTrip)}
s_lshl_b32 {sr(sAbase)}, {sr(sAbase)}, 14
s_add_u32 {sr(sAbase)}, {sr(sAbase)}, {sr(sKVbase)}
s_lshl_b32 {sr(sU)}, {sr(sH)}, 6
s_add_u32 {sr(sU)}, {sr(sU)}, {sr(sQt0)}
s_lshl_b32 {sr(sU)}, {sr(sU)}, 12
s_add_u32 {sr(sU)}, {sr(sU)}, {WS_QA}
s_mov_b32 {sr(sAoff)}, {sr(sKVbase)}""")

def fill_xch(K):
    K(f"""s_lshl_b32 {sr(sT0)}, s2, 2
s_add_u32 {sr(sT0)}, {sr(sT0)}, {sr(sWave)}
s_mul_i32 {sr(sT0)}, {sr(sT0)}, 4608
s_add_u32 {sr(sT0)}, {sr(sT0)}, {WS_XCH}
s_add_u32 {sr(sT1)}, {sr(sT0)}, 3584""")
    for r in range(4): K(f"v_mov_b32 {vr(244+r)}, -1")
    for n in range(4): K(f"buffer_store_dwordx4 {vr(244,4)}, {vr(vL16)}, {sr(S_WS,4)}, {sr(sT0)} offen offset:{n*1024} {FILLF}")
    K(f"buffer_store_dwordx4 {vr(244,4)}, {vr(vL16)}, {sr(S_WS,4)}, {sr(sT1)} offen {FILLF}")

def dispatchA(K):
    D = 4
    K(f"s_cmp_lg_u32 {sr(sN)}, 0\ns_cbranch_scc1 a_go")
    K.extend(preB()); fill_xch(K)
    K("s_waitcnt vmcnt(13)\ns_branch k2_B3")
    K.label("a_go")
    K(loadA(D - 1)[0]); K(loadA(D - 1)[1])
    NS_ = sorted({e[0] for e in ATAB if e})
    for s in range(NS_[-1]):
        if s in NS_: K(f"s_cmp_eq_u32 {sr(sN)}, {s}\ns_cbranch_scc1 a_q")
        K(f"buffer_load_dwordx4 {vr(xQ+s*8,4)}, {vr(vL16)}, {sr(S_WS,4)}, {sr(sU)} offen")
        K(f"buffer_load_dword {vr(xQ+s*8+4)}, {vr(vKL)}, {sr(S_L,4)}, {sr(sU)} offen offset:3072")
        K(f"s_add_u32 {sr(sU)}, {sr(sU)}, 4096")
    K.label("a_q")
    K(f"s_mov_b32 {sr(sAoff)}, {sr(sAbase)}")
    for b in range(D - 1): K.extend(loadA(b))
    srd(K, S_W1, sPtr, SZ_AWO); srd(K, S_W2, sPtr + 2, SZ_WO)
    wo_issue(K); fill_xch(K)
    K(f"v_mov_b32 {vr(vT+1)}, 0x3f80")
    for n in NS_[1:]: K(f"s_cmp_eq_u32 {sr(sN)}, {n}\ns_cbranch_scc1 att{n}")
    for n in NS_: attnA(K, n)

WOJ = eval(os.environ.get('WOJ', '(0,2,4)'))
WOST = 65536 + 9216
def wo_issue(K):
    vW = 240; vWl = 241
    for i, j in enumerate(WOJ): K(f"s_cmp_eq_u32 {sr(sJ)}, {j}\ns_cselect_b32 {sr(sGw)}, {i}, {sr(sGw)}")
    K(f"""s_cmp_eq_u32 {sr(sGw)}, 3
s_cbranch_scc1 k2_nowo
s_lshl_b32 {sr(sT0)}, {sr(sH)}, 2
s_add_u32 {sr(sT0)}, {sr(sT0)}, {sr(sWave)}
s_mul_i32 {sr(sJunk)}, {sr(sWave)}, 24576
s_add_u32 {sr(sJunk)}, {sr(sJunk)}, {WOST}
v_lshrrev_b32 v20, 2, {vr(vLane)}
v_mul_u32_u24 v21, 1152, v20
v_and_b32 v22, 3, {vr(vLane)}
v_lshlrev_b32 v22, 4, v22
v_add_u32 {vr(vW)}, v21, v22
s_mul_i32 {sr(sT1)}, {sr(sT0)}, {32*1152}
s_mul_i32 {sr(sT2)}, {sr(sGw)}, 384
s_add_u32 {sr(sT1)}, {sr(sT1)}, {sr(sT2)}
s_lshl_b32 {sr(sWoD)}, {sr(sT0)}, 11
s_mul_i32 {sr(sT3)}, {sr(sGw)}, {6*262144}
s_add_u32 {sr(sWoD)}, {sr(sWoD)}, {sr(sT3)}
s_add_u32 {sr(sWoD)}, {sr(sWoD)}, {WS_WOF}""")
    for i in range(12):
        K(f"s_add_u32 m0, {sr(sJunk)}, {i*1024 - (i%6)*64}")
        K(f"s_add_u32 {sr(sT1)}, {sr(sT1)}, {16*1152}" if i == 6 else "s_nop 0")
        K(f"buffer_load_dwordx4 {vr(vW)}, {sr(S_W2,4)}, {sr(sT1)} offen offset:{(i%6)*64} lds")
    K(f"""v_bfe_u32 v23, v20, 2, 1
v_lshlrev_b32 v23, 2, v23
v_lshrrev_b32 v24, 3, v20
v_lshlrev_b32 v24, 1, v24
v_add_u32 v23, v23, v24
v_bfe_u32 v24, v20, 1, 1
v_add_u32 v23, v23, v24
v_mul_u32_u24 v23, 18, v23
v_and_b32 v24, 1, v20
v_add_u32 v23, v23, v24
v_add_u32 v23, 16, v23
v_mul_u32_u24 v23, 1152, v23
v_add_u32 {vr(vWl)}, v23, v22
s_mul_i32 {sr(sT3)}, {sr(sGw)}, 6
s_lshl_b32 {sr(sT1)}, {sr(sWave)}, 1
s_add_u32 {sr(sT1)}, {sr(sT1)}, {sr(sT3)}
s_mov_b32 {sr(sT0)}, {sr(sH)}
s_mul_i32 {sr(sT2)}, {sr(sH)}, {18*1152}
s_cmp_lg_u32 {sr(sWave)}, 3
s_cbranch_scc1 k2_wo1
s_and_b32 {sr(sT0)}, {sr(sH)}, 3
s_mul_i32 {sr(sT2)}, {sr(sT0)}, {144*1152}
s_add_u32 {sr(sT0)}, {sr(sT0)}, 32
s_lshr_b32 {sr(sT1)}, {sr(sH)}, 2
s_min_u32 {sr(sT1)}, {sr(sT1)}, 2
s_lshl_b32 {sr(sT1)}, {sr(sT1)}, 1
s_add_u32 {sr(sT1)}, {sr(sT1)}, {sr(sT3)}
v_mov_b32 {vr(vW)}, {vr(vWl)}
k2_wo1:
s_mul_i32 {sr(sWoD+1)}, {sr(sT1)}, {36*1024}
s_lshl_b32 {sr(sT0)}, {sr(sT0)}, 10
s_add_u32 {sr(sWoD+1)}, {sr(sWoD+1)}, {sr(sT0)}
s_add_u32 {sr(sWoD+1)}, {sr(sWoD+1)}, {WS_WOFA}
s_lshl_b32 {sr(sT1)}, {sr(sT1)}, 6
s_add_u32 {sr(sT2)}, {sr(sT2)}, {sr(sT1)}""")
    for i in range(2):
        K(f"s_add_u32 m0, {sr(sJunk)}, {(12+i)*1024 - i*64}\ns_nop 0")
        K(f"buffer_load_dwordx4 {vr(vW)}, {sr(S_W1,4)}, {sr(sT2)} offen offset:{i*64} lds")
    K.label("k2_nowo")

def wo_finish(K):
    vTr = 18; R0 = 32
    K(f"""s_cmp_eq_u32 {sr(sGw)}, 3
s_cbranch_scc1 k2_B2
v_lshrrev_b32 v20, 5, {vr(vLane)}
v_lshlrev_b32 {vr(vTr)}, 8, v20
v_bfe_u32 v21, {vr(vLane)}, 2, 2
v_lshlrev_b32 v21, 6, v21
v_add_u32 {vr(vTr)}, {vr(vTr)}, v21
v_bfe_u32 v21, {vr(vLane)}, 4, 1
v_lshlrev_b32 v21, 5, v21
v_add_u32 {vr(vTr)}, {vr(vTr)}, v21
v_and_b32 v21, 3, {vr(vLane)}
v_lshlrev_b32 v21, 3, v21
v_add_u32 {vr(vTr)}, {vr(vTr)}, v21
v_add_u32 {vr(vTr)}, {sr(sJunk)}, {vr(vTr)}""")
    for i in range(14):
        K(f"ds_read_b64_tr_b16 {vr(R0+4*i,2)}, {vr(vTr)} offset:{i*1024}")
        K(f"ds_read_b64_tr_b16 {vr(R0+4*i+2,2)}, {vr(vTr)} offset:{i*1024+512}")
        if i % 4 == 3: K("s_waitcnt lgkmcnt(4)")
    K("s_waitcnt vmcnt(0) lgkmcnt(0)")
    for i in range(6):
        for k in range(2):
            K(f"buffer_store_dwordx4 {vr(R0+4*(6*k+i),4)}, {vr(vL16)}, {sr(S_WS,4)}, {sr(sWoD)} offen offset:{k*1024} {STF2}")
        K(f"s_add_u32 {sr(sWoD)}, {sr(sWoD)}, 262144")
    for i in range(2):
        K(f"buffer_store_dwordx4 {vr(R0+4*(12+i),4)}, {vr(vL16)}, {sr(S_WS,4)}, {sr(sWoD+1)} offen {STF2}")
        K(f"s_add_u32 {sr(sWoD+1)}, {sr(sWoD+1)}, {36*1024}")
    K("s_branch k2_B3")

def srd(K, d, p, size):
    K(f"s_mov_b32 {sr(d)}, {sr(p)}\ns_mov_b32 {sr(d+1)}, {sr(p+1)}\ns_mov_b32 {sr(d+2)}, {size}\ns_mov_b32 {sr(d+3)}, 0x20000")

def build():
    K = Kernel("attn_kernel"); K.force_vgpr = 512
    K.hot = ["b_loop"] + [f"att{n}_loop" for n in range(1, 9)] + [f"b_tail{w}" for w in range(4)]
    K(f"""s_cmp_ge_u32 s2, 256
s_cbranch_scc1 k2_exit
s_load_dwordx2 {sr(sPtr,2)}, s[0:1], {KA_AWO}
s_load_dwordx2 {sr(sPtr+2,2)}, s[0:1], {KA_WO}
s_load_dwordx2 {sr(sPtr+4,2)}, s[0:1], {KA_WS}
v_and_b32 {vr(vLane)}, 63, v0
v_lshrrev_b32 {vr(vT)}, 6, v0
v_lshlrev_b32 {vr(vL16)}, 4, {vr(vLane)}
s_and_b32 {sr(sT0)}, s2, 7
s_lshr_b32 {sr(sT1)}, s2, 3
v_readfirstlane_b32 {sr(sWave)}, {vr(vT)}
s_lshr_b32 {sr(sJ)}, {sr(sT1)}, 2
s_sub_u32 {sr(sJ)}, 7, {sr(sJ)}
s_and_b32 {sr(sT1)}, {sr(sT1)}, 3
s_lshl_b32 {sr(sH)}, {sr(sT0)}, 2
s_add_u32 {sr(sH)}, {sr(sH)}, {sr(sT1)}
v_mov_b32 {vr(vNinf)}, 0xff800000
s_mov_b32 {sr(sLo)}, {f32bits(2.0**-64)}
s_mov_b32 {sr(sHi)}, {f32bits(2.0**64)}
v_and_b32 {vr(vD)}, 31, {vr(vLane)}
v_lshlrev_b32 {vr(vKL)}, 3, {vr(vD)}
s_and_b32 {sr(sT0)}, {sr(sH)}, 1
s_xor_b32 {sr(sT0)}, {sr(sT0)}, 1
s_mul_i32 {sr(sT0)}, {sr(sT0)}, {262144 - 4}
s_add_u32 {sr(sT0)}, {sr(sT0)}, 4
v_add_u32 {vr(vKL)}, {sr(sT0)}, {vr(vKL)}
v_lshrrev_b32 {vr(vT)}, 5, {vr(vLane)}
v_lshlrev_b32 {vr(vT)}, 2, {vr(vT)}
v_sub_u32 {vr(vD)}, {vr(vD)}, {vr(vT)}""")
    K(f"""v_and_b32 {vr(vT)}, 31, {vr(vLane)}
v_cmp_gt_u32 {sr(sT0,2)}, 19, {vr(vT)}
v_cmp_eq_u32 {sr(sT2,2)}, 22, {vr(vT)}
v_mov_b32 {vr(vVL)}, 0x80000000
s_or_b64 vcc, {sr(sT0,2)}, {sr(sT2,2)}
v_cndmask_b32 {vr(vVL)}, {vr(vVL)}, {vr(vL16)}, vcc""")
    for r in range(16): K(f"v_cmp_gt_i32 {sr(sTri+2*r,2)}, {8*(r>>2)+(r&3)}, {vr(vD)}")
    K(f"v_cmp_lt_u32 {sr(sTri+32,2)}, 31, {vr(vLane)}")
    if CPF: code_prefetch(K, sT0, vT, 252, "oproj_kernel", vL16, sWave)
    setupB(K); tableA(K)
    K(f"s_mov_b32 {sr(sGw)}, 3")
    K("s_waitcnt lgkmcnt(0)")
    srd(K, S_WS, sPtr + 4, WS_SIZE); srd(K, S_KV, sPtr + 4, WS_SIZE)
    K(f"s_sub_u32 {sr(S_L)}, {sr(S_WS)}, 262144\ns_subb_u32 {sr(S_L+1)}, {sr(S_WS+1)}, 0\ns_mov_b32 {sr(S_L+2)}, {WS_SIZE}\ns_mov_b32 {sr(S_L+3)}, 0x20000")
    stamp(K, 0, S_WS, 1 << 17)
    if STAMP: K("s_waitcnt vmcnt(0)")
    dispatchA(K)
    K.label("k2_B")
    stamp(K, 7, S_WS, 1 << 17)
    wo_finish(K)
    K.label("k2_B2")
    K("s_waitcnt vmcnt(0)")
    K.label("k2_B3")
    stamp(K, 1, S_WS, 1 << 17)
    attnB(K)
    stamp(K, 4, S_WS, 1 << 17)
    K.label("k2_exit")
    K("s_endpgm")
    for f in COLD: f(K)
    return K
```

```python
from dsl import *
from layout import *
import os

S_WS = 8; S_OUT = 12; S_C = 16; S_W = 56; S_X = 20
sWave = 28; sQt = 29; sMc = 30; sKh = 31; sT0 = 32; sT1 = 33; sT2 = 34; sC = 35; sW = 36; sN = 39; sOut = 40
sSlotW = 41; sSlotR = 42; sTile = 43; sCnt = 44; sX = 45; sPtr = 48
vLane = 1; vL16 = 2; vRd = 3; vOut = 5; vAcc = 16; vWb = 64; vX = 160; vPk = 208
P = int(os.environ.get('K3P', '3'))
R = P + 1
RC = 4
assert P + 1 <= RC
def cfrag(st, k): return ar(((st % RC) * 4 + k) * 4, 4)
def wfrag(st, k, m): return vr(vWb + ((st & 1) * 12 + k * 3 + m) * 4, 4)
def issue(st):
    out = []
    for m in range(3):
        out.append([f"s_add_u32 m0, {sr(sSlotW)}, {m*1024}", f"buffer_load_dwordx4 {vr(vL16)}, {sr(S_W+4*m,4)}, {sr(sW+m)} offen lds", f"s_add_u32 {sr(sW+m)}, {sr(sW+m)}, 4096"])
    for k in range(4):
        out.append(["", f"buffer_load_dwordx4 {cfrag(st, k)}, {vr(vL16)}, {sr(S_C,4)}, {sr(sC)} offen offset:{k*1024}", ""])
    out[-1][2] = f"s_add_u32 {sr(sC)}, {sr(sC)}, 4096"
    return out
def nextW(): return f"s_add_u32 {sr(sSlotW)}, {sr(sSlotW)}, 12288\ns_cmp_ge_u32 {sr(sSlotW)}, {R*12288}\ns_cselect_b32 {sr(sT0)}, {R*12288}, 0\ns_sub_u32 {sr(sSlotW)}, {sr(sSlotW)}, {sr(sT0)}"
def issue_all(K, st):
    for a, b, c in issue(st): K(a); K("s_nop 0" if a else ""); K(b); K(c)
    K(nextW())
def wreads(st): return [f"ds_read_b128 {wfrag(st, k, m)}, {vr(vRd)} offset:{(k*3+m)*1024}" for k in range(4) for m in range(3)]
def nextR(): return f"s_add_u32 {sr(sSlotR)}, {sr(sSlotR)}, 12288\ns_cmp_ge_u32 {sr(sSlotR)}, {R*12288}\ns_cselect_b32 {sr(sSlotR)}, 0, {sr(sSlotR)}\nv_add_u32 {vr(vRd)}, {sr(sSlotR)}, {vr(vL16)}"
def mf(st): return [f"v_mfma_f32_32x32x16_bf16 {vr(vAcc+m*16,16)}, {wfrag(st, k, m)}, {cfrag(st, k)}, {vr(vAcc+m*16,16)}" for k in range(4) for m in range(3)]

SA = int(os.environ.get('K3SA', '36'))
def tile(K, nm, early=False, extra=None):
    K(f"s_mul_i32 {sr(sSlotW)}, {sr(sWave)}, 3072\ns_mov_b32 {sr(sSlotR)}, 0\nv_mov_b32 {vr(vRd)}, {vr(vL16)}")
    for st in range(P): issue_all(K, st)
    for r in range(48): K(f"v_mov_b32 {vr(vAcc+r)}, 0")
    K(f"s_waitcnt vmcnt({7*(P-1)})\ns_barrier")
    K.extend(wreads(0)); issue_all(K, P); K(nextR())
    def stage(st, iss, nwait, nextw=True):
        K(f"s_waitcnt vmcnt({nwait}) lgkmcnt(0)\ns_barrier")
        ms = mf(st); rd = wreads(st + 1)
        at = {g: i for i, g in enumerate((1, 3, 5, 6, 8, 10, 11)) if i < len(iss)}
        for g in range(12):
            K(ms[g])
            if g in at: K(iss[at[g]][1])
            if g < 6: K(rd[2 * g]); K(rd[2 * g + 1])
            if g in at: K(iss[at[g]][2])
            if g + 1 in at: K(iss[at[g + 1]][0])
            if g == 7 and nextw: K(nextW())
            if g == 9: K(nextR())
    assert P + 1 == RC
    K.label(nm + "_loop")
    for st in range(RC):
        stage(st, issue(st + 1 + P), 7 * (P - 1))
        if early and st == 0: K(f"s_cmp_eq_u32 {sr(sN)}, 1\ns_cbranch_scc1 {nm}_out")
    K(f"s_sub_u32 {sr(sN)}, {sr(sN)}, 1\ns_cmp_lg_u32 {sr(sN)}, 0\ns_cbranch_scc1 {nm}_loop")
    if extra:
        n = len(extra) // RC
        for st in range(RC): stage(st, [("", x, "") for x in extra[st * n:(st + 1) * n]], max(0, 7 * (P - 1 - st)) + n * st, False)
    K.label(nm + "_out")
    K("s_waitcnt lgkmcnt(0)\ns_nop 9")

def out_store(K, src, m, half, pk):
    for r in range(4): K(f"v_cvt_pk_bf16_f32 {vr(pk+r)}, {vr(src+2*r)}, {vr(src+2*r+1)}")
    K(f"s_nop 1\nv_permlane32_swap_b32 {vr(pk)}, {vr(pk+2)}\nv_permlane32_swap_b32 {vr(pk+1)}, {vr(pk+3)}")
    K(f"buffer_store_dwordx4 {vr(pk,4)}, {vr(vOut)}, {sr(S_OUT,4)}, {sr(sOut)} offen offset:{m*64 + half*32} {os.environ.get('STF3', '')}")

def srd(K, d, p, size):
    K(f"s_mov_b32 {sr(d)}, {sr(p)}\ns_mov_b32 {sr(d+1)}, {sr(p+1)}\ns_mov_b32 {sr(d+2)}, {size}\ns_mov_b32 {sr(d+3)}, 0x20000")

def build():
    K = Kernel("oproj_kernel"); K.force_vgpr = 512
    K.hot = ["k3b_loop", "k3a_loop"]
    K(f"""s_cmp_ge_u32 s2, 256
s_cbranch_scc1 k3_exit
s_load_dwordx4 {sr(sPtr,4)}, s[0:1], {KA_OUT}
s_load_dwordx2 {sr(sPtr+4,2)}, s[0:1], {KA_WS}
v_and_b32 {vr(vLane)}, 63, v0
v_lshrrev_b32 v6, 6, v0
v_lshlrev_b32 {vr(vL16)}, 4, {vr(vLane)}
s_and_b32 {sr(sT0)}, s2, 7
s_lshr_b32 {sr(sT1)}, s2, 3
v_readfirstlane_b32 {sr(sWave)}, v6
v_and_b32 v7, 31, {vr(vLane)}
v_mul_u32_u24 v7, 2304, v7
v_lshrrev_b32 v8, 5, {vr(vLane)}
v_lshlrev_b32 v8, 4, v8
v_add_u32 {vr(vOut)}, v7, v8
s_and_b32 {sr(sKh)}, {sr(sT0)}, 1
s_lshr_b32 {sr(sT0)}, {sr(sT0)}, 1
s_lshl_b32 {sr(sT0)}, {sr(sT0)}, 2
s_and_b32 {sr(sT2)}, {sr(sT1)}, 3
s_add_u32 {sr(sT0)}, {sr(sT0)}, {sr(sT2)}
s_lshr_b32 {sr(sMc)}, {sr(sT1)}, 2
s_mul_i32 {sr(sTile)}, {sr(sT0)}, 6
s_add_u32 {sr(sTile)}, {sr(sTile)}, {sr(sMc)}
s_lshl_b32 {sr(sQt)}, {sr(sT0)}, 2
s_add_u32 {sr(sQt)}, {sr(sQt)}, {sr(sWave)}
s_mul_i32 {sr(sOut)}, {sr(sQt)}, {32*2304}""")
    code_prefetch(K, 68, 9, 252, "code_end", vL16, sWave)
    K("s_waitcnt lgkmcnt(0)")
    srd(K, S_WS, sPtr + 4, WS_SIZE); srd(K, S_OUT, sPtr, SZ_OUT);
    srd(K, S_C, sPtr + 4, WS_SIZE); srd(K, S_X, sPtr + 4, WS_SIZE);
    for m in range(3): srd(K, S_W + 4 * m, sPtr + 4, WS_SIZE)
    stamp(K, 0, S_WS, 2 << 17)
    if STAMP: K("s_waitcnt vmcnt(0)")
    K(f"""s_cmp_ge_u32 {sr(sMc)}, 6
s_cbranch_scc1 k3_A
s_mul_i32 {sr(sT0)}, {sr(sKh)}, {SA*4096}
s_cmp_eq_u32 {sr(sKh)}, 0
s_cselect_b32 {sr(sN)}, {SA // RC}, {(64 - SA) // RC}
s_lshl_b32 {sr(sT1)}, {sr(sN)}, 14
s_lshl_b32 {sr(sC)}, {sr(sQt)}, 18
s_add_u32 {sr(sC)}, {sr(sC)}, {sr(sT0)}
s_add_u32 {sr(sC)}, {sr(sC)}, {WS_CTX}
s_add_u32 {sr(S_C+2)}, {sr(sC)}, {sr(sT1)}
s_mul_i32 {sr(sW)}, {sr(sMc)}, {3*262144}
s_add_u32 {sr(sW)}, {sr(sW)}, {sr(sT0)}
s_lshl_b32 {sr(sT0)}, {sr(sWave)}, 10
s_add_u32 {sr(sW)}, {sr(sW)}, {sr(sT0)}
s_add_u32 {sr(sW)}, {sr(sW)}, {WS_WOF}
s_add_u32 {sr(sW+1)}, {sr(sW)}, 262144
s_add_u32 {sr(sW+2)}, {sr(sW)}, 524288
s_sub_u32 {sr(sT1)}, {sr(sT1)}, 3072
s_add_u32 {sr(S_W+2)}, {sr(sW)}, {sr(sT1)}
s_add_u32 {sr(S_W+6)}, {sr(sW+1)}, {sr(sT1)}
s_add_u32 {sr(S_W+10)}, {sr(sW+2)}, {sr(sT1)}
s_mul_i32 {sr(sT0)}, {sr(sMc)}, 192
s_add_u32 {sr(sOut)}, {sr(sOut)}, {sr(sT0)}
s_add_u32 {sr(sOut)}, {sr(sOut)}, 1152
s_lshl_b32 {sr(sX)}, {sr(sTile)}, 2
s_add_u32 {sr(sX)}, {sr(sX)}, {sr(sWave)}
s_mul_i32 {sr(sX)}, {sr(sX)}, 12288
s_add_u32 {sr(sX)}, {sr(sX)}, {WS_XCH}
s_add_u32 {sr(sX+1)}, {sr(sX)}, 4096
s_add_u32 {sr(sX+2)}, {sr(sX)}, 8192""")
    xl = [f"buffer_load_dwordx4 {vr(vX+4*i,4)}, {vr(vL16)}, {sr(S_X,4)}, {sr(sX+i//4)} offen offset:{(i%4)*1024} sc1" for i in range(12)]
    K(f"s_sub_u32 {sr(sN)}, {sr(sN)}, 1\ns_cmp_eq_u32 {sr(sKh)}, 0\ns_cselect_b32 {sr(S_X+2)}, {WS_SIZE}, 0")
    tile(K, "k3b", extra=xl)
    stamp(K, 1, S_WS, 2 << 17)
    K(f"s_cmp_eq_u32 {sr(sKh)}, 0\ns_cbranch_scc1 k3_own")
    for i in range(12):
        K(f"buffer_store_dwordx4 {vr(vAcc+4*i,4)}, {vr(vL16)}, {sr(S_WS,4)}, {sr(sX+i//4)} offen offset:{(i%4)*1024} sc1")
    K("s_branch k3_end")
    K.label("k3_own")
    stamp(K, 3, S_WS, 2 << 17)
    K(f"s_mov_b32 {sr(sN)}, 0x40000")
    K("s_branch k3_chk")
    K.label("k3_poll")
    K.extend(xl)
    K.label("k3_chk")
    K(f"s_sub_u32 {sr(sN)}, {sr(sN)}, 1\ns_cbranch_scc1 k3_got\ns_waitcnt vmcnt(0)")
    K(f"v_max_u32 v6, {vr(vX)}, {vr(vX+1)}")
    for r in range(2, 48, 2): K(f"v_max3_u32 v6, v6, {vr(vX+r)}, {vr(vX+r+1)}")
    K(f"v_cmp_eq_u32 vcc, -1, v6\ns_cmp_lg_u64 vcc, 0\ns_cbranch_scc1 k3_poll")
    K.label("k3_got")
    K("s_waitcnt vmcnt(0)")
    stamp(K, 4, S_WS, 2 << 17)
    for m in range(3):
        for r in range(16): K(f"v_add_f32 {vr(vAcc+m*16+r)}, {vr(vAcc+m*16+r)}, {vr(vX+16*m+r)}")
        for h in range(2): out_store(K, vAcc + m * 16 + 8 * h, m, h, vPk + 4 * (2 * m + h))
    stamp(K, 5, S_WS, 2 << 17)
    K("s_branch k3_end")
    K.label("k3_A")
    K(f"""s_sub_u32 {sr(sMc)}, {sr(sMc)}, 6
s_lshl_b32 {sr(sMc)}, {sr(sMc)}, 1
s_add_u32 {sr(sMc)}, {sr(sMc)}, {sr(sKh)}
s_mov_b32 {sr(sCnt)}, {sr(sOut)}""")
    K.label("k3_Aloop")
    K(f"""s_mul_i32 {sr(sC)}, {sr(sQt)}, {36*1024}
s_add_u32 {sr(sC)}, {sr(sC)}, {WS_OAF}
s_add_u32 {sr(S_C+2)}, {sr(sC)}, {36*1024}
s_mul_i32 {sr(sW)}, {sr(sMc)}, {3*36*1024}
s_lshl_b32 {sr(sT0)}, {sr(sWave)}, 10
s_add_u32 {sr(sW)}, {sr(sW)}, {sr(sT0)}
s_add_u32 {sr(sW)}, {sr(sW)}, {WS_WOFA}
s_add_u32 {sr(sW+1)}, {sr(sW)}, {36*1024}
s_add_u32 {sr(sW+2)}, {sr(sW)}, {72*1024}
s_add_u32 {sr(S_W+2)}, {sr(sW)}, {36*1024 - 3072}
s_add_u32 {sr(S_W+6)}, {sr(sW+1)}, {36*1024 - 3072}
s_add_u32 {sr(S_W+10)}, {sr(sW+2)}, {36*1024 - 3072}
s_mul_i32 {sr(sT0)}, {sr(sMc)}, 192
s_add_u32 {sr(sOut)}, {sr(sCnt)}, {sr(sT0)}
s_mov_b32 {sr(sN)}, {12 // RC}""")
    tile(K, "k3a", early=True)
    stamp(K, 1, S_WS, 2 << 17)
    for m in range(3):
        for h in range(2): out_store(K, vAcc + m * 16 + 8 * h, m, h, vPk + 4 * (2 * m + h))
    K(f"""s_waitcnt vmcnt(6)
s_barrier
s_add_u32 {sr(sMc)}, {sr(sMc)}, 4
s_cmp_lt_u32 {sr(sMc)}, 6
s_cbranch_scc1 k3_Aloop""")
    K.label("k3_end")
    stamp(K, 2, S_WS, 2 << 17)
    K.label("k3_exit")
    K("s_endpgm")
    return K
```
